```python
import torch

def _softmax(x, axis=-1):
    return torch.softmax(x, dim=axis)
def _gelu(x):
    return torch.nn.functional.gelu(x, approximate="tanh")
def _silu(x):
    return torch.nn.functional.silu(x)
def _sigmoid(x):
    return torch.sigmoid(x)
def _layernorm(x, axis=-1, eps=1e-5):
    m = x.mean(dim=axis, keepdim=True)
    v = x.var(dim=axis, keepdim=True, unbiased=False)
    return (x - m) / torch.sqrt(v + eps)
def _scatter_add(tgt, idx, src, axis=0):
    return tgt.clone().index_add_(axis, idx, src)
def _segment_sum(src, seg, n):
    out = torch.zeros((n,) + src.shape[1:], dtype=src.dtype)
    return out.index_add_(0, seg, src)
def _pad(x, pw):
    flat = tuple(v for pair in reversed(pw) for v in pair)
    return torch.nn.functional.pad(x, flat)

kernel_name = 'concat_heads__mha_block_cached__sliding_block_cached__decode'

def setup_inputs():

    _w = (lambda a: (lambda t: t.to(torch.bfloat16) if t.is_floating_point() else t)(torch.as_tensor(a)))
    def _A_setup():
        B, Sq, D = 4, 1, 1024
        H, Sk, Dh = 32, 8192, 128
        return {
            "x": _w((lambda *s: torch.randn(*s, dtype=torch.bfloat16) * 0.8)(B, Sq, D)),
            "k_cache": _w((lambda *s: torch.randn(*s, dtype=torch.bfloat16) * 1.6)(B, H, Sk, Dh)),
            "v_cache": _w((lambda *s: torch.randn(*s, dtype=torch.bfloat16) * 0.2)(B, H, Sk, Dh)),
            "wq": _w((lambda *s: torch.randn(*s, dtype=torch.bfloat16) * 1.6)(D, H * Dh) * (D ** -0.5)),
            "wo": _w((lambda *s: torch.randn(*s, dtype=torch.bfloat16) * 0.2)(H * Dh, D) * ((H * Dh) ** -0.5)),
        }
    _A_in = _A_setup()

    def _B_setup():
        B, Sq, D = 4, 1, 1024
        Hq, Hkv, Sk, Dh = 32, 4, 8192, 128
        assert Hq % Hkv == 0, (Hq, Hkv)
        return {
            "x": _w((lambda *s: torch.randn(*s, dtype=torch.bfloat16) * 0.8)(B, Sq, D)),
            "k_cache": _w((lambda *s: torch.randn(*s, dtype=torch.bfloat16) * 1.6)(B, Hkv, Sk, Dh)),
            "v_cache": _w((lambda *s: torch.randn(*s, dtype=torch.bfloat16) * 0.2)(B, Hkv, Sk, Dh)),
            "wq": _w((lambda *s: torch.randn(*s, dtype=torch.bfloat16) * 1.6)(D, Hq * Dh) * (D ** -0.5)),
            "wo": _w((lambda *s: torch.randn(*s, dtype=torch.bfloat16) * 0.2)(Hq * Dh, D) * ((Hq * Dh) ** -0.5)),
        }
    _B_in = _B_setup()

    return {
        "A_x": _A_in["x"],
        "A_k_cache": _A_in["k_cache"],
        "A_v_cache": _A_in["v_cache"],
        "A_wq": _A_in["wq"],
        "A_wo": _A_in["wo"],
        "B_x": _B_in["x"],
        "B_k_cache": _B_in["k_cache"],
        "B_v_cache": _B_in["v_cache"],
        "B_wq": _B_in["wq"],
        "B_wo": _B_in["wo"],
    }

def reference(A_x, A_k_cache, A_v_cache, A_wq, A_wo, B_x, B_k_cache, B_v_cache, B_wq, B_wo):
    def _A_ref(x, k_cache, v_cache, wq, wo):
        B, Sq, D = x.shape
        H, Dh = 32, 128
        q = (lambda x, *d: x.permute(*d))((x @ wq).reshape(B, Sq, H, Dh), 0, 2, 1, 3)
        scores = torch.einsum("bhqd,bhkd->bhqk", q, k_cache) * (Dh ** -0.5)
        p = _softmax(scores, axis=-1)
        o = torch.einsum("bhqk,bhkd->bhqd", p, v_cache)
        return (lambda x, *d: x.permute(*d))(o, 0, 2, 1, 3).reshape(B, Sq, H * Dh) @ wo

    def _B_ref(x, k_cache, v_cache, wq, wo):
        B, Sq, D = x.shape
        Hq, Dh = 32, 128
        Hkv, Sk = k_cache.shape[1], k_cache.shape[2]
        W = min(4096, max(256, Sk // 4))
        rep = Hq // Hkv
        q = (lambda x, *d: x.permute(*d))((x @ wq).reshape(B, Sq, Hq, Dh), 0, 2, 1, 3)
        k = (lambda x, n, axis: torch.repeat_interleave(x, n, dim=axis))(k_cache[:, :, Sk - W:, :], rep, axis=1)
        v = (lambda x, n, axis: torch.repeat_interleave(x, n, dim=axis))(v_cache[:, :, Sk - W:, :], rep, axis=1)
        scores = torch.einsum("bhqd,bhkd->bhqk", q, k) * (Dh ** -0.5)
        p = _softmax(scores, axis=-1)
        o = torch.einsum("bhqk,bhkd->bhqd", p, v)
        return (lambda x, *d: x.permute(*d))(o, 0, 2, 1, 3).reshape(B, Sq, Hq * Dh) @ wo

    a = _A_ref(A_x, A_k_cache, A_v_cache, A_wq, A_wo)
    b = _B_ref(B_x, B_k_cache, B_v_cache, B_wq, B_wo)
    return torch.concatenate([a, b], axis=-1)
```

```python
import re

REG_RE = re.compile(r'\b([vas])(\d+)\b|\b([vas])\[(\d+):(\d+)\]|\b(vcc|exec|m0|scc)\b')

def regs_of(tok):
    out = []
    for m in REG_RE.finditer(tok):
        if m.group(1): out.append((m.group(1), int(m.group(2))))
        elif m.group(3): out += [(m.group(3), i) for i in range(int(m.group(4)), int(m.group(5)) + 1)]
        else: out.append((m.group(6), 0))
    return out

TRANS = ("v_exp_f32", "v_log_f32", "v_rcp_f32", "v_rsq_f32", "v_sqrt_f32", "v_sin_f32", "v_cos_f32")

class Ins:
    def __init__(self, text):
        self.text = text
        t = text.split(";")[0].strip()
        self.label = None
        self.op = None
        self.rd = set(); self.wr = set()
        self.kind = "other"; self.target = None
        self.dpp_src = set(); self.srcc = set(); self.srcab = set(); self.store_data = set()
        self.states = 1
        if t.endswith(":"):
            self.label = t[:-1]; self.states = 0; self.kind = "label"; return
        if t.startswith(".") or not t:
            self.kind = "directive"; self.states = 0; return
        parts = t.split(None, 1)
        op = self.op = parts[0]
        rest = parts[1] if len(parts) > 1 else ""
        ops = []; depth = 0; cur = ""
        for ch in rest:
            if ch in "[(": depth += 1
            if ch in "])": depth -= 1
            if ch == "," and depth == 0: ops.append(cur.strip()); cur = ""
            else: cur += ch
        if cur.strip(): ops.append(cur.strip())
        mods = ""
        if ops:
            sp = ops[-1].split(None, 1)
            ops[-1] = sp[0]
            mods = sp[1] if len(sp) > 1 else ""
        self.ops = ops; self.mods = mods
        R = lambda i: set(regs_of(ops[i])) if i < len(ops) else set()
        allsrc = lambda a: set().union(*[R(i) for i in range(a, len(ops))]) if len(ops) > a else set()
        if op == "s_nop":
            self.kind = "nop"; self.states = int(ops[0], 0) + 1
        elif op in ("s_branch",) or op.startswith("s_cbranch"):
            self.kind = "branch"; self.target = ops[0]
        elif op == "s_endpgm": self.kind = "end"
        elif op.startswith("v_mfma"):
            self.kind = "mfma"; self.wr = R(0); self.srcab = R(1) | R(2); self.srcc = R(3); self.rd = self.srcab | self.srcc
        elif op.startswith("v_cmp"):
            self.kind = "valu"; self.wr = R(0); self.rd = allsrc(1)
        elif op.startswith("v_permlane"):
            self.kind = "valu"; self.wr = R(0) | R(1); self.rd = R(0) | R(1)
        elif op.startswith("v_"):
            self.kind = "valu"; self.wr = R(0); self.rd = allsrc(1)
            if op.startswith("v_fmac") or op.startswith("v_writelane"): self.rd |= R(0)
            if "_dpp" in op:
                self.dpp_src = R(1); self.rd |= R(0)
            if op.startswith("v_add_co") or op.startswith("v_addc_co"): self.wr |= R(1); self.rd = allsrc(2)
        elif op.startswith("buffer_load") or op.startswith("global_load"):
            self.kind = "vmem"
            if re.search(r'\blds\b', mods): self.rd = allsrc(0) | {("m0", 0)}; self.ldsdma = True
            else: self.wr = R(0); self.rd = allsrc(1)
        elif op.startswith("buffer_store"):
            self.kind = "vmem"; self.rd = allsrc(0)
            if op.endswith("x4") or op.endswith("x3"): self.store_data = R(0)
        elif op.startswith("buffer_atomic"):
            self.kind = "vmem"; self.rd = allsrc(0)
            if "sc0" in mods: self.wr = R(0)
        elif op.startswith("ds_read"):
            self.kind = "ds"; self.wr = R(0); self.rd = allsrc(1)
        elif op.startswith("ds_"):
            self.kind = "ds"; self.rd = allsrc(0)
        elif op.startswith("s_load") or op.startswith("s_mem"):
            self.kind = "smem"; self.wr = R(0); self.rd = allsrc(1)
        elif op.startswith(("s_cmp", "s_bitcmp")) or op in ("s_waitcnt", "s_barrier", "s_sleep", "s_setprio"):
            self.kind = "salu"; self.rd = allsrc(0) if op.startswith(("s_cmp", "s_bitcmp")) else set()
        elif op.startswith("s_"):
            self.kind = "salu"; self.wr = R(0); self.rd = allsrc(1)
            if "saveexec" in op: self.wr |= {("exec", 0)}
        else:
            raise ValueError("unknown op " + text)

def isv(r): return r[0] in ("v", "a")
def iss(r): return r[0] in ("s", "vcc")

def need(p, c):
    n = 0
    pw_v = {r for r in p.wr if isv(r)}; pw_s = {r for r in p.wr if iss(r)}
    if p.kind == "valu":
        if c.kind == "mfma" and pw_v & c.rd: n = max(n, 2)
        if c.kind == "valu":
            if pw_v & c.dpp_src: n = max(n, 2)
            if p.op.startswith(TRANS) and not c.op.startswith(TRANS) and pw_v & c.rd: n = max(n, 1)
            if p.op.startswith(TRANS) and pw_v & c.rd: n = max(n, 1)
            if pw_s & c.rd: n = max(n, 4 if c.op.startswith(("v_readlane", "v_writelane")) else 2)
            if c.op.startswith(("v_readlane", "v_readfirstlane")) and pw_v & c.rd: n = max(n, 1)
            if c.op.startswith("v_permlane") and pw_v & c.rd: n = max(n, 2)
        if c.kind in ("vmem", "ds") and p.op.startswith(TRANS) and pw_v & c.rd: n = max(n, 1)
        if c.kind == "vmem" and pw_s & c.rd: n = max(n, 5)
        if c.kind == "salu" and pw_s & c.rd: n = max(n, 1)
    if p.kind == "mfma":
        if c.kind == "mfma":
            if pw_v & c.srcab: n = max(n, 8)
            if pw_v & c.srcc and c.srcc != pw_v: n = max(n, 6)
            if pw_v & c.wr and c.srcc != pw_v: n = max(n, 6)
        elif c.kind in ("valu", "vmem", "ds"):
            if pw_v & (c.rd | c.wr): n = max(n, 8)
        if c.kind == "valu" and p.srcc & c.wr: n = max(n, 3)
    if p.kind == "salu" and ("m0", 0) in p.wr and getattr(c, "ldsdma", False): n = max(n, 1)
    if p.store_data and c.kind in ("valu", "mfma", "ds", "vmem") and p.store_data & c.wr: n = max(n, 2)
    return n

class Asm:
    def __init__(self):
        self.items = []
        self.uid = 0
    def __call__(self, text):
        for line in text.split("\n"):
            if line.strip(): self.items.append(Ins(line.strip()))
    def label(self, name): self.items.append(Ins(name + ":"))
    def newlabel(self, p="L"):
        self.uid += 1; return f"{p}_{self.uid}"
    def fix_hazards(self):
        changed = True; total = 0
        while changed:
            changed = False
            items = self.items
            labels = {it.label: i for i, it in enumerate(items) if it.label}
            br_to = {}
            for i, it in enumerate(items):
                if it.kind == "branch": br_to.setdefault(labels[it.target], []).append(i)
            def preds(i):
                out = []
                if i > 0:
                    q = items[i - 1]
                    if not (q.kind == "end" or q.op == "s_branch"): out.append(i - 1)
                out += br_to.get(i, [])
                return out
            ins_at = {}
            for i, c in enumerate(items):
                if c.kind in ("label", "directive", "nop", "branch", "end"): continue
                worst = 0
                stack = [(p, 0) for p in preds(i)]
                seen = {}
                while stack:
                    p, dist = stack.pop()
                    if dist >= 9: continue
                    if seen.get(p, 99) <= dist: continue
                    seen[p] = dist
                    P = items[p]
                    if P.kind not in ("label", "directive", "nop", "branch", "end"):
                        n = need(P, c)
                        if n > dist: worst = max(worst, n - dist)
                    for pp in preds(p): stack.append((pp, dist + P.states))
                if worst: ins_at[i] = worst
            if ins_at:
                new = []
                last_ins = -100
                for i, it in enumerate(items):
                    if i in ins_at and i - last_ins > 10:
                        new.append(Ins(f"s_nop {ins_at[i]-1}")); total += 1; last_ins = i
                    new.append(it)
                self.items = new; changed = True
        return total
    def text(self):
        out = []
        for it in self.items:
            out.append(it.text if it.kind in ("label", "directive") else "  " + it.text)
        return "\n".join(out) + "\n"
```

```python
import sys, struct, math
sys.path.insert(0, "dev")
from asmlib import Asm
NAME = "concat_heads__mha_block_cached__sliding_block_cached__decode"

HEADER = """; Kernarg layout for this problem (104 bytes, ptrs only, base s[0:1]):
"""

QP_A = 0x000000
QP_B = 0x080000
BP   = 0x100000
SENT = 0x200000
REC  = SENT
P2   = SENT + 0x20000
AST  = SENT + 0x60000
BST  = SENT + 0x61000
FLG1 = 0x300000
FLG2 = 0x301000
TS   = 0x400000
WS_BYTES = 0x800000
L_WO  = 0
L_R2  = 0x10000
L_R3  = 0x18000
L_SC  = 0x20000
L_EX  = 0x24000
L_QL  = 0x26000
L_QBL = 0x26100
L_ST  = 0x26900
L_WGT = 0x26920
L_WOF = 0x26930
LDS_BYTES = 0x26A00
FULL = "row_mask:0xf bank_mask:0xf"
SCALE = (128 ** -0.5) * math.log2(math.e)
def f32bits(x): return struct.unpack("<I", struct.pack("<f", x))[0]

def gen(DP=(4,), DK=(4,), DV=(4,), DE=None, NE=0, X=12, prof=False, spin=1 << 16, hsleep=32, tsleep=1, qsleep=4, skip="", gfl="sc1"):
    tup = lambda x: (x,) if isinstance(x, int) else tuple(x)
    DP, DK, DV = tup(DP), tup(DK), tup(DV)
    DE = DV if DE is None else tup(DE)
    A = Asm()
    def srd(base, ptr, size):
        A(f"s_mov_b32 s{base}, s{ptr}"); A(f"s_mov_b32 s{base+1}, s{ptr+1}")
        A(f"s_mov_b32 s{base+2}, {hex(size)}"); A(f"s_mov_b32 s{base+3}, 0x00020000")
    def smask(r, val):
        A(f"s_mov_b32 s{r}, {hex(val & 0xffffffff)}"); A(f"s_mov_b32 s{r+1}, {hex(val >> 32)}")
    S_K, S_V, S_X, S_W, S_WS, S_O, S_WO = 32, 36, 40, 44, 48, 52, 56
    sr = lambda b: f"s[{b}:{b+3}]"
    vr = lambda b, n=4: f"v[{b}:{b+n-1}]"
    ar = lambda b, n=4: f"a[{b}:{b+n-1}]"
    sT0, sT1, sT2, sT3, sCNT, sOFFK, sOFFV, sC, sSPIN, sLD = 60, 61, 62, 63, 64, 65, 66, 67, 68, 69
    sM = 70
    sE = 86
    sTS = 88
    sTI = 90
    sH1, sKS, sB, sH, sS = 91, 92, 93, 94, 95
    sKB = 30
    vL, vG, vJ = 1, 2, 3
    def stamp(idx):
        if not prof: return
        A(f"s_memrealtime s[{sTS}:{sTS+1}]")
        A("s_waitcnt lgkmcnt(0)")
        A(f"v_mov_b32 v63, s{sTS}")
        A(f"s_mov_b64 exec, 1")
        A(f"buffer_store_dword v63, v62, {sr(S_WS)}, s{sTI} offen offset:{idx*4}")
        A(f"s_mov_b64 exec, -1")
    def spin_tail(lab, sl):
        A(f"s_sleep {sl}")
        A(f"s_sub_u32 s{sSPIN}, s{sSPIN}, 1"); A(f"s_cmp_lg_u32 s{sSPIN}, 0"); A(f"s_cbranch_scc1 {lab}")
    def allreduce(v, tmp, op, rors):
        for r in rors: A(f"{op}_dpp v{v}, v{v}, v{v} row_ror:{r} {FULL}")
        A(f"v_mov_b32 v{tmp}, v{v}"); A(f"v_permlane16_swap_b32 v{tmp}, v{v}"); A(f"{op} v{v}, v{v}, v{tmp}")
        A(f"v_mov_b32 v{tmp}, v{v}"); A(f"v_permlane32_swap_b32 v{tmp}, v{v}"); A(f"{op} v{v}, v{v}, v{tmp}")

    A(f"s_cmp_ge_u32 s2, 256")
    A("s_cbranch_scc1 L_end")
    A("s_load_dwordx16 s[4:19], s[0:1], 0")
    A("s_load_dwordx8 s[20:27], s[0:1], 64")
    A("s_load_dwordx2 s[28:29], s[0:1], 96")
    A(f"v_lshrrev_b32 v4, 6, v0")
    A(f"v_and_b32 v{vL}, 63, v0")
    A(f"v_readfirstlane_b32 s3, v4")
    A(f"v_lshrrev_b32 v{vG}, 4, v{vL}")
    A(f"v_and_b32 v{vJ}, 15, v{vL}")
    A(f"s_lshr_b32 s{sH1}, s2, 3")
    A(f"s_and_b32 s{sKS}, s2, 7")
    A(f"s_lshr_b32 s{sB}, s2, 6")
    A(f"s_bfe_u32 s{sH}, s2, 0x50001")
    A(f"s_and_b32 s{sS}, s2, 1")
    A(f"s_mov_b32 s{sC}, {hex(f32bits(SCALE))}")
    if prof:
        A(f"s_mul_i32 s{sTI}, s2, 5"); A(f"s_add_u32 s{sTI}, s{sTI}, s3"); A(f"s_lshl_b32 s{sTI}, s{sTI}, 6")
        A(f"s_add_u32 s{sTI}, s{sTI}, {TS}"); A("v_mov_b32 v62, 0")
    vSEL, vMSK = 8, 16
    def build_sel():
        for rr in range(4): smask(sM + 2 * rr, 0x0303030303030303 << (2 * rr))
        smask(sE, 0xAAAAAAAAAAAAAAAA)
        A("v_mov_b32 v4, 0x0c0c0100"); A("v_mov_b32 v5, 0x01000c0c")
        A(f"v_cndmask_b32 v6, v4, v5, s[{sE}:{sE+1}]")
        A("v_mov_b32 v4, 0x0c0c0302"); A("v_mov_b32 v5, 0x03020c0c")
        A(f"v_cndmask_b32 v7, v4, v5, s[{sE}:{sE+1}]")
        A("v_mov_b32 v4, 0x0c0c0c0c")
        for rr in range(4):
            A(f"v_cndmask_b32 v{vSEL+2*rr}, v4, v6, s[{sM+2*rr}:{sM+2*rr+1}]")
            A(f"v_cndmask_b32 v{vSEL+2*rr+1}, v4, v7, s[{sM+2*rr}:{sM+2*rr+1}]")
        A("v_mov_b32 v4, 0x0000ffff"); A("v_mov_b32 v5, 0xffff0000")
        A(f"v_cndmask_b32 v6, v4, v5, s[{sE}:{sE+1}]")
        for rr in range(4):
            A(f"v_cndmask_b32 v{vMSK+rr}, 0, v6, s[{sM+2*rr}:{sM+2*rr+1}]")
    A("s_cmp_eq_u32 s3, 4")
    A("s_cbranch_scc1 L_helper")

    vOK, vOV, vAS, vAP, vMAX, vT = 20, 21, 22, 23, 24, 25
    vX = 26
    vBB = 34
    vD = 42
    QB = [8, 12, 26, 30]
    vPP = 58
    vACC = 50
    vDM = 64
    vVB = 89
    A("s_setprio 1")
    A(f"v_lshrrev_b32 v4, 3, v{vJ}")
    A(f"v_lshlrev_b32 v5, 11, v4")
    A(f"v_lshl_add_u32 v5, v{vG}, 4, v5")
    A(f"v_lshlrev_b32 v6, 16, v{vG}")
    A(f"v_lshl_add_u32 v6, v{vJ}, 4, v6")
    A(f"s_lshl_b32 s{sT0}, s{sKS}, 8"); A(f"s_lshl_b32 s{sT1}, s3, 6"); A(f"s_add_u32 s{sT0}, s{sT0}, s{sT1}")
    A(f"s_add_u32 s{sT1}, s{sT0}, 4096")
    A(f"s_lshl_b32 s{sT2}, s{sT0}, 12")
    A(f"s_lshl_b32 s{sT3}, s{sH1}, 8"); A(f"s_add_u32 s{sT2}, s{sT2}, s{sT3}")
    A("s_waitcnt lgkmcnt(0)")
    srd(S_X, 4, 8192); srd(S_W, 10, 1 << 23)
    A(f"buffer_load_dwordx4 {vr(vX)}, v5, {sr(S_X)}, s{sT0} offen")
    A(f"buffer_load_dwordx4 {vr(vX+4)}, v5, {sr(S_X)}, s{sT1} offen")
    for t in range(8):
        A(f"buffer_load_dwordx4 {ar(4*t)}, v6, {sr(S_W)}, s{sT2} offen nt")
        if t < 7: A(f"s_add_u32 s{sT2}, s{sT2}, 8192")
    srd(S_K, 6, 1 << 28); srd(S_V, 8, 1 << 28); srd(S_WS, 28, WS_BYTES); srd(S_O, 24, 16384)
    srd(S_W, 20, 1 << 23)
    srd(S_X, 16, 1 << 25)
    A(f"s_cmp_ge_u32 s2, 128")
    A(f"s_cselect_b32 s{S_WO}, s22, s12"); A(f"s_cselect_b32 s{S_WO+1}, s23, s13")
    A(f"s_mov_b32 s{S_WO+2}, {hex(1 << 23)}"); A(f"s_mov_b32 s{S_WO+3}, 0x00020000")
    stamp(0)
    A(f"v_lshrrev_b32 v7, 2, v{vJ}")
    A(f"v_lshlrev_b32 v{vOK}, 8, v7")
    A(f"v_lshl_add_u32 v{vOK}, v{vG}, 6, v{vOK}")
    A(f"v_and_b32 v5, 3, v{vJ}")
    A(f"v_lshl_add_u32 v{vOK}, v5, 4, v{vOK}")
    A(f"v_lshl_add_u32 v6, v{vG}, 1, v4")
    A(f"v_lshlrev_b32 v{vOV}, 8, v6")
    A(f"v_and_b32 v5, 7, v{vJ}")
    A(f"v_lshl_add_u32 v{vOV}, v5, 4, v{vOV}")
    A(f"v_lshlrev_b32 v{vDM+1}, 11, v6"); A(f"v_lshl_add_u32 v{vDM+1}, v5, 4, v{vDM+1}")
    A(f"v_lshlrev_b32 v{vDM}, 18, v{vG}"); A(f"v_lshl_add_u32 v{vDM}, v{vJ}, 4, v{vDM}")
    A(f"s_lshl_b32 s{sOFFK}, s2, 20"); A(f"s_lshl_b32 s{sT0}, s3, 12"); A(f"s_add_u32 s{sOFFK}, s{sOFFK}, s{sT0}")
    A(f"s_mov_b32 s{sOFFV}, s{sOFFK}")
    A(f"s_add_u32 s{sT0}, s{sT0}, {L_SC}")
    A(f"v_lshl_add_u32 v{vAS}, v7, 2, v{vG}")
    A(f"v_lshl_add_u32 v{vAS}, v{vAS}, 2, s{sT0}")
    A(f"v_lshl_add_u32 v{vAP}, v6, 2, s{sT0}")
    A(f"v_mov_b32 v{vMAX}, 0xff800000")
    A(f"v_lshrrev_b32 v4, 1, v{vJ}"); A(f"v_lshlrev_b32 v{vDM+2}, 8, v4")
    A(f"v_lshl_add_u32 v{vDM+2}, v{vG}, 5, v{vDM+2}")
    A(f"v_and_b32 v4, 1, v{vJ}"); A(f"v_lshl_add_u32 v{vDM+2}, v4, 4, v{vDM+2}")
    A(f"v_lshlrev_b32 v{vVB}, 9, v{vG}"); A(f"v_lshl_add_u32 v{vVB}, v{vJ}, 4, v{vVB}")
    A(f"s_lshr_b32 s{sKB}, s2, 4"); A(f"s_lshl_b32 s{sKB}, s{sKB}, 21")
    A(f"s_and_b32 s{sT0}, s2, 15"); A(f"s_lshl_b32 s{sT0}, s{sT0}, 15"); A(f"s_add_u32 s{sKB}, s{sKB}, s{sT0}")
    A(f"s_lshl_b32 s{sLD}, s3, 13"); A(f"s_add_u32 s{sKB}, s{sKB}, s{sLD}"); A(f"s_add_u32 s{sKB}, s{sKB}, {6144 * 256}")
    A(f"s_lshl_b32 s{sT2}, s{sKS}, 20"); A(f"s_add_u32 s{sT2}, s{sT2}, s{sT3}")
    A(f"s_lshl_b32 s{sT0}, s3, 16"); A(f"s_add_u32 s{sT2}, s{sT2}, s{sT0}")
    A(f"s_lshl_b32 s{sT3}, s{sKS}, 20"); A(f"s_and_b32 s{sT0}, s{sH1}, 15"); A(f"s_lshl_b32 s{sT0}, s{sT0}, 7")
    A(f"s_add_u32 s{sT3}, s{sT3}, s{sT0}"); A(f"s_lshl_b32 s{sT0}, s3, 14"); A(f"s_add_u32 s{sT3}, s{sT3}, s{sT0}")
    A(f"s_lshl_b32 s{sCNT}, s3, 10")
    A(f"s_mov_b32 s{sT1}, s{sKB}")
    build_sel()

    def ring_reg(n): return ar(4 * (n % 16))
    kcnt = [0]; vcnt = [0]
    def loadK(reg):
        m = kcnt[0] % 4; kcnt[0] += 1
        A(f"buffer_load_dwordx4 {reg}, v{vOK}, {sr(S_K)}, s{sOFFK} offen offset:{m*1024} nt")
        if m == 3: A(f"s_add_u32 s{sOFFK}, s{sOFFK}, 16384")
    def loadV(reg):
        m = vcnt[0] % 4; vcnt[0] += 1
        A(f"buffer_load_dwordx4 {reg}, v{vOV}, {sr(S_V)}, s{sOFFV} offen offset:{(m>>1)*2048+(m&1)*128} nt")
        if m == 3: A(f"s_add_u32 s{sOFFV}, s{sOFFV}, 16384")
    def qk(reg, m, d):
        A(f"v_mfma_f32_16x16x32_bf16 {vr(d)}, {reg}, {vr(QB[m])}, {'0' if m == 0 else vr(d)}")
    def post(d, off):
        A(f"v_mov_b32_dpp v{vT}, v{d} quad_perm:[0,0,0,0] {FULL}")
        for r in range(1, 4):
            A(f"v_add_f32_dpp v{vT}, v{d+r}, v{vT} quad_perm:[{r},{r},{r},{r}] {FULL}")
        A(f"v_max_f32 v{vMAX}, v{vMAX}, v{vT}")
        A(f"ds_write_b32 v{vAS}, v{vT} offset:{off}")
    def qpart(t):
        for q in range(2):
            b = vBB + 4 * q
            for rr in range(4):
                A(f"v_perm_b32 v{b+rr}, v{vX+4*q+(t>>1)}, v{vX+4*q+(t>>1)}, v{vSEL+2*rr+(t&1)}")
            A(f"v_mfma_f32_16x16x32_bf16 {vr(vD+4*q)}, {ar(4*t)}, {vr(b)}, {'0' if t == 0 else vr(vD+4*q)}")
    def dma(voff, srdb, soff, m0base, m0imm, step, tag):
        A(f"s_add_u32 m0, s{m0base}, {m0imm}")
        def issue():
            if tag not in skip: A(f"buffer_load_dwordx4 v{voff}, {sr(srdb)}, s{soff} offen nt lds")
            A(f"s_add_u32 s{soff}, s{soff}, {step}")
        return issue
    p1 = [(vDM, S_W, sT2, sLD, L_R2 + t * 1024, 8192, "q") for t in range(8)]
    p1 += [(vDM + 1, S_WO, sT3, sCNT, L_WO + i * 4096, 65536, "o") for i in range(16)]
    p1 += [(vDM + 2, S_X, sT1, sLD, L_R3 + k * 1024, 128 if k % 2 == 0 else 2048 - 128, "k") for k in range(8)]
    if skip: p1 = [x for x in p1 if x[-1] not in skip]
    tdone = 0
    LAG = max(DK) + 1
    n = 0
    def q_progress(landed):
        nonlocal tdone
        while tdone < 8 and 2 + tdone <= landed:
            qpart(tdone); tdone += 1
            if tdone == 8:
                A(f"s_lshl_b32 s{sT0}, s3, 11"); A(f"s_add_u32 s{sT0}, s{sT0}, {L_EX}")
                A(f"v_lshl_add_u32 v4, v{vL}, 4, s{sT0}")
                A(f"ds_write_b128 v4, {vr(vD)}")
                A(f"ds_write_b128 v4, {vr(vD+4)} offset:1024")
                A("s_waitcnt lgkmcnt(0)")
                A("s_barrier")
                stamp(1)
    for p, d in enumerate(p1):
        go = dma(*d)
        dd = DP[p % len(DP)]
        A(f"s_waitcnt vmcnt({dd})"); go()
        q_progress(10 + p - 1 - dd)
    if tdone < 8:
        A("s_waitcnt vmcnt(0)"); q_progress(100)
    def tickK():
        nonlocal n
        A(f"s_waitcnt vmcnt({DK[n % len(DK)]})"); loadK(ring_reg(n)); n += 1
    srd(S_X, 18, 1 << 25)
    assert X >= LAG
    for _ in range(X): tickK()
    stamp(2)
    A("s_barrier")
    stamp(3)
    A(f"v_and_b32 v4, 3, v{vJ}")
    A(f"v_lshl_add_u32 v4, v{vG}, 2, v4")
    A(f"v_lshlrev_b32 v4, 4, v4")
    A(f"v_add_u32 v4, {L_QL}, v4")
    A(f"ds_read_b128 {vr(vBB)}, v4")
    tickK()
    for m in range(4): smask(sM + 2 * m, 0x000F000F000F000F << (4 * m))
    A("s_waitcnt lgkmcnt(0)")
    for m in range(4):
        for rr in range(4):
            A(f"v_cndmask_b32 v{QB[m]+rr}, 0, v{vBB+rr}, s[{sM+2*m}:{sM+2*m+1}]")
    side = []
    vTR = 82
    def side_tr_addr():
        A(f"v_bfe_u32 v4, v{vJ}, 1, 1"); A("v_lshlrev_b32 v4, 7, v4")
        A(f"v_lshrrev_b32 v5, 2, v{vJ}"); A("v_lshl_add_u32 v4, v5, 3, v4")
        A(f"v_lshl_add_u32 v4, v{vG}, 1, v4"); A("v_lshlrev_b32 v4, 7, v4")
        A(f"v_and_b32 v5, 1, v{vJ}"); A("v_lshl_add_u32 v4, v5, 3, v4")
        A(f"s_lshl_b32 s{sT0}, s3, 5"); A(f"v_add_u32 v{vTR}, s{sT0}, v4")
    side.append(side_tr_addr)
    def wofrag(P, t, ch): return 64 + 4 * ((P * 4 + t) * 2 + ch)
    def mk_tr(P, t):
        def f():
            for ch in range(2):
                for a in range(2):
                    A(f"ds_read_b64_tr_b16 {ar(wofrag(P,t,ch)+2*a,2)}, v{vTR} offset:{L_WO + (P*256+32*t+a)*128 + ch*16}")
        return f
    for P in range(2):
        for t in range(4): side.append(mk_tr(P, t))
    rc = 0
    pend = []
    while n < 32:
        assert rc >= n - 15, (rc, n)
        tickK()
        old = list(pend); pend.clear()
        budget = 4
        while budget > 0 and rc <= n - 1 - LAG:
            g = rc // 4
            if rc % 4 == 0 and any(d == vD + 4 * (g & 1) for d, _ in old + pend):
                for po in old + pend: post(*po)
                old = []; pend.clear()
            qk(ring_reg(rc), rc % 4, vD + 4 * (g & 1))
            if rc % 4 == 3: pend.append((vD + 4 * (g & 1), g * 64))
            rc += 1; budget -= 1
        for po in old: post(*po)
        if budget >= 3 and side: side.pop(0)()
    assert rc == n - LAG and not side, (rc, n, len(side))
    assert len(pend) == (1 if (n - 1 - LAG) % 4 == 3 else 0)
    A(f"v_add_u32 v{vAS}, {(n // 4 - 3) * 64}, v{vAS}")
    A(f"s_mov_b32 s{sCNT}, {(256 - n) // 16}")
    A.label("L_kloop")
    for i in range(16):
        A(f"s_waitcnt vmcnt({DK[i % len(DK)]})"); loadK(ring_reg(i))
        c = i - LAG
        qk(ring_reg(c), c % 4, vD + 4 * ((c // 4) & 1))
        if (c - 1) % 4 == 3: post(vD + 4 * (((c - 1) // 4) & 1), ((c - 1) // 4 + 3) * 64)
    A(f"v_add_u32 v{vAS}, 256, v{vAS}")
    A(f"s_sub_u32 s{sCNT}, s{sCNT}, 1"); A(f"s_cmp_lg_u32 s{sCNT}, 0"); A("s_cbranch_scc1 L_kloop")
    stamp(4)
    lab = A.newlabel("L_r2"); ok = A.newlabel("L_r2_ok")
    A(f"v_mov_b32 v4, {L_WOF}")
    A(f"s_mov_b32 s{sSPIN}, {spin}")
    A.label(lab)
    A("ds_read_b32 v5, v4")
    A("s_waitcnt lgkmcnt(0)")
    A(f"v_readfirstlane_b32 s{sT0}, v5")
    A(f"s_cmp_eq_u32 s{sT0}, 1"); A(f"s_cbranch_scc1 {ok}")
    spin_tail(lab, 4)
    A.label(ok)
    LAGV = max(DV) + 1
    n = 0
    extra = [] if "k" in skip else [(vVB, S_X, sKB, sLD, L_R2 + k * 1024, 256 if k % 2 == 0 else 2048 - 256, "k") for k in range(8)]
    nt = 0
    last_dma_tick = [len(extra) - 1]
    def tickT():
        nonlocal n, nt
        dd = min(DV[nt % len(DV)], max(DK))
        if extra:
            go = dma(*extra.pop(0)); A(f"s_waitcnt vmcnt({dd})"); go()
        else:
            A(f"s_waitcnt vmcnt({dd})"); loadV(ring_reg(n)); n += 1
        nt += 1
    for i in range(LAG + 1):
        tickT()
        assert n <= 16 - LAG + i or True
        c = i - LAG
        if c < 0: qk(ring_reg(c), c % 4, vD + 4 * ((c // 4) & 1))
        if (c - 1) % 4 == 3: post(vD + 4 * (((c - 1) // 4) & 1), ((c - 1) // 4 + 3) * 64)
    vS = 64
    vNM, vLS = 80, 81
    A(f"s_lshl_b32 s{sT0}, s3, 12"); A(f"s_add_u32 s{sT0}, s{sT0}, {L_SC}")
    A(f"v_lshl_add_u32 v4, v{vL}, 4, s{sT0}")
    for i in range(4): A(f"ds_read_b128 {vr(vS+4*i)}, v4 offset:{i*1024}")
    allreduce(vMAX, vT, "v_max_f32", [4, 8])
    A(f"v_mul_f32 v{vMAX}, s{sC}, v{vMAX}")
    A(f"v_sub_f32 v{vNM}, 0, v{vMAX}")
    for r in range(8): A(f"v_mov_b32 v{vACC+r}, 0")
    tickT()
    A("s_waitcnt lgkmcnt(0)")
    for i in range(4):
        for r in range(4): A(f"v_fma_f32 v{vS+4*i+r}, v{vS+4*i+r}, s{sC}, v{vNM}")
        for r in range(4): A(f"v_exp_f32 v{vS+4*i+r}, v{vS+4*i+r}")
        A(f"v_add_f32 v5, v{vS+4*i}, v{vS+4*i+1}"); A(f"v_add_f32 v6, v{vS+4*i+2}, v{vS+4*i+3}")
        A(f"v_add_f32 v5, v5, v6")
        A(f"v_mov_b32 v{vLS}, v5" if i == 0 else f"v_add_f32 v{vLS}, v{vLS}, v5")
        for r in range(4): A(f"v_cvt_pk_bf16_f32 v{vS+4*i+r}, v{vS+4*i+r}, v{vS+4*i+r}")
        A(f"ds_write_b128 v4, {vr(vS+4*i)} offset:{i*1024}")
        tickT()
    A(f"ds_read2_b32 {vr(vPP,2)}, v{vAP} offset0:0 offset1:8")
    assert not extra
    def pv(reg, c, poff):
        beta, u = (c % 4) >> 1, c & 1
        pp = vPP + 2 * ((c // 4) & 1)
        if c % 4 == 0:
            A("s_waitcnt lgkmcnt(0)")
            A(f"ds_read2_b32 {vr(vPP + 2 * ((c // 4 + 1) & 1), 2)}, v{vAP} offset0:{poff//4} offset1:{poff//4+8}")
        if u == 0:
            for rr in range(4): A(f"v_and_b32 v{vBB+4*beta+rr}, v{pp+beta}, v{vMSK+rr}")
        A(f"v_mfma_f32_16x16x32_bf16 {vr(vACC+4*u)}, {reg}, {vr(vBB+4*beta)}, {vr(vACC+4*u)}")
    def side_stats():
        allreduce(vLS, vT, "v_add_f32", [1, 2, 4, 8])
        A(f"v_min_u32 v6, -2, v{vMAX}"); A(f"v_min_u32 v7, -2, v{vLS}")
        A(f"s_lshl_b32 s{sT0}, s3, 3"); A(f"s_add_u32 s{sT0}, s{sT0}, {L_ST}")
        A(f"v_mov_b32 v4, s{sT0}")
        A("ds_write_b64 v4, v[6:7]")
    vFW, vFR, vWA, vRO, vGO, vPO = 83, 84, 85, 86, 87, 88
    sREC, sGA, sGB, sP2, sP3, sOUT = 96, 97, 98, 99, 100, 101
    def side_tail1():
        A(f"s_lshl_b32 s{sT0}, s3, 11"); A(f"s_add_u32 s{sT0}, s{sT0}, {L_EX}")
        A(f"v_lshl_add_u32 v{vFW}, v{vL}, 4, s{sT0}")
        A(f"v_and_b32 v4, 1, v{vL}"); A("v_mul_u32_u24 v4, 40, v4")
        A(f"v_lshrrev_b32 v5, 3, v{vL}"); A("v_add_u32 v4, v4, v5"); A("v_lshlrev_b32 v4, 4, v4")
        A(f"v_bfe_u32 v6, v{vL}, 1, 2"); A("v_lshl_add_u32 v4, v6, 11, v4")
        A(f"s_lshr_b32 s{sT0}, s3, 1"); A(f"s_lshl_b32 s{sT0}, s{sT0}, 10")
        A(f"s_and_b32 s{sT1}, s3, 1"); A(f"s_lshl_b32 s{sT1}, s{sT1}, 8")
        A(f"s_add_u32 s{sT0}, s{sT0}, s{sT1}"); A(f"s_add_u32 s{sT0}, s{sT0}, {L_EX}")
        A(f"v_add_u32 v{vFR}, s{sT0}, v4")
        A(f"v_lshlrev_b32 v{vWA}, 2, v6"); A(f"v_add_u32 v{vWA}, {L_WGT}, v{vWA}")
        A(f"v_lshlrev_b32 v{vRO}, 3, v5")
    def side_tail2():
        A(f"s_lshl_b32 s{sREC}, s{sH}, 2"); A(f"s_add_u32 s{sREC}, s{sREC}, s{sB}"); A(f"s_lshl_b32 s{sREC}, s{sREC}, 1")
        A(f"s_add_u32 s{sREC}, s{sREC}, s{sS}"); A(f"s_lshl_b32 s{sREC}, s{sREC}, 8")
        A(f"s_lshl_b32 s{sT0}, s3, 6"); A(f"s_add_u32 s{sREC}, s{sREC}, s{sT0}"); A(f"s_add_u32 s{sREC}, s{sREC}, {REC}")
        A(f"v_bfe_u32 v4, v{vJ}, 1, 1"); A(f"v_lshlrev_b32 v{vGO}, 11, v4")
        A(f"v_lshrrev_b32 v4, 2, v{vJ}"); A(f"v_lshl_add_u32 v{vGO}, v4, 9, v{vGO}")
        A(f"v_and_b32 v4, 1, v{vJ}"); A(f"v_lshl_add_u32 v{vGO}, v4, 8, v{vGO}")
        A(f"v_lshl_add_u32 v{vGO}, v{vG}, 4, v{vGO}")
        A(f"s_lshr_b32 s{sT0}, s2, 7"); A(f"s_lshl_b32 s{sGA}, s{sT0}, 16")
        A(f"s_lshl_b32 s{sT1}, s{sKS}, 13"); A(f"s_add_u32 s{sGA}, s{sGA}, s{sT1}"); A(f"s_add_u32 s{sGA}, s{sGA}, {REC}")
        A(f"s_add_u32 s{sGB}, s{sGA}, 4096")
    def side_tail3():
        A(f"v_lshlrev_b32 v{vPO}, 8, v{vG}"); A(f"v_lshl_add_u32 v{vPO}, v{vJ}, 2, v{vPO}")
        A(f"s_lshl_b32 s{sP3}, s{sH1}, 13"); A(f"s_add_u32 s{sP3}, s{sP3}, {P2}")
        A(f"s_lshl_b32 s{sT0}, s{sKS}, 10"); A(f"s_add_u32 s{sP2}, s{sP3}, s{sT0}")
        A(f"s_lshl_b32 s{sT0}, s3, 6"); A(f"s_add_u32 s{sP2}, s{sP2}, s{sT0}")
        A(f"s_lshl_b32 s{sT0}, s{sKS}, 5"); A(f"s_add_u32 s{sP3}, s{sP3}, s{sT0}")
        A(f"s_lshl_b32 s{sOUT}, s{sH1}, 7"); A(f"s_lshl_b32 s{sT0}, s{sKS}, 4"); A(f"s_add_u32 s{sOUT}, s{sOUT}, s{sT0}")
        for k in range(8): A(f"s_mov_b64 s[{sM+2*k}:{sM+2*k+1}], -1")
        A(f"v_and_b32 v4, 7, v{vL}"); A("v_lshlrev_b32 v8, 10, v4")
        A(f"v_lshl_add_u32 v8, v{vG}, 8, v8")
        A(f"v_bfe_u32 v5, v{vL}, 3, 1"); A("v_lshl_add_u32 v8, v5, 4, v8")
        A(f"v_lshlrev_b32 v9, 12, v{vG}"); A("v_lshl_add_u32 v9, v5, 3, v9")
    side = [side_tail1, side_tail2, side_tail3, side_stats]
    rc = 0
    while n < 16 or (n % 16) or side or rc != n - LAGV:
        assert rc >= n - 15, (rc, n)
        tickT()
        budget = 4
        while budget > 0 and rc <= n - 1 - LAGV:
            pv(ring_reg(rc), rc, (rc // 4 + 1) * 64); rc += 1; budget -= 1
        if budget >= 3 and side and (side[0] is not side_stats or rc > 0): side.pop(0)()
    stamp(5)
    def vloop(name, iters, Dw, lag):
        A(f"s_mov_b32 s{sCNT}, {iters}")
        A.label(name)
        for i in range(16):
            A(f"s_waitcnt vmcnt({Dw[i % len(Dw)]})"); loadV(ring_reg(i))
            c = i - lag
            pv(ring_reg(c), c, (c // 4 + 1 + 4) * 64)
        A(f"v_add_u32 v{vAP}, 256, v{vAP}")
        A(f"s_sub_u32 s{sCNT}, s{sCNT}, 1"); A(f"s_cmp_lg_u32 s{sCNT}, 0"); A(f"s_cbranch_scc1 {name}")
    A(f"v_add_u32 v{vAP}, {(n // 4 - 4) * 64}, v{vAP}")
    tot = (256 - n) // 16
    lag = LAGV
    if NE == 0:
        vloop("L_vloop", tot, DV, LAGV)
    else:
        LAGE = max(DE) + 1
        assert LAGE >= LAGV and LAGE <= 15
        vloop("L_vloop", tot - NE, DV, LAGV)
        rcc = -LAGV
        for i in range(16):
            A(f"s_waitcnt vmcnt({DE[i % len(DE)]})"); loadV(ring_reg(i))
            if rcc <= i - LAGE:
                pv(ring_reg(rcc), rcc, (rcc // 4 + 1 + 4) * 64); rcc += 1
        assert rcc == 16 - LAGE
        A(f"v_add_u32 v{vAP}, 256, v{vAP}")
        if NE > 1: vloop("L_vloop2", NE - 1, DE, LAGE)
        lag = LAGE
    for i in range(lag):
        A(f"s_waitcnt vmcnt({lag - 1 - i})")
        c = i - lag
        pv(ring_reg(c), c, (c // 4 + 1 + 4) * 64)
    stamp(6)
    A(f"ds_write_b128 v{vFW}, {vr(vACC)}")
    A(f"ds_write_b128 v{vFW}, {vr(vACC+4)} offset:1024")
    smask(sE, 0x0101010101010101)
    A("s_waitcnt lgkmcnt(0)")
    A("s_barrier")
    A(f"ds_read_b128 v[4:7], v{vFR}")
    A(f"ds_read_b32 v{vT}, v{vWA}")
    A("s_waitcnt lgkmcnt(0)")
    for r in range(4): A(f"v_mul_f32 v{4+r}, v{4+r}, v{vT}")
    for mode in ("quad_perm:[1,0,3,2]", "quad_perm:[2,3,0,1]", "row_half_mirror"):
        for r in range(4): A(f"v_add_f32_dpp v{4+r}, v{4+r}, v{4+r} {mode} {FULL}")
    A("v_cvt_pk_bf16_f32 v4, v4, v5"); A("v_cvt_pk_bf16_f32 v5, v6, v7")
    A("v_min_u32 v4, -2, v4"); A("v_min_u32 v5, -2, v5")
    A(f"s_mov_b64 exec, s[{sE}:{sE+1}]")
    A(f"buffer_store_dwordx2 v[4:5], v{vRO}, {sr(S_WS)}, s{sREC} offen sc1")
    A("s_mov_b64 exec, -1")
    stamp(7)
    vGA = 96
    A(f"s_mov_b32 s{sSPIN}, {spin}")
    A.label("L_gather")
    for k in range(8):
        P, t = k >> 2, k & 3
        sk = A.newlabel("L_gs")
        A(f"s_mov_b64 exec, s[{sM+2*k}:{sM+2*k+1}]")
        A(f"s_cbranch_execz {sk}")
        A(f"buffer_load_dwordx4 {vr(vGA+4*k)}, v{vGO}, {sr(S_WS)}, s{sGB if P else sGA} offen offset:{t*64} sc1")
        A.label(sk)
    A("s_mov_b64 exec, -1")
    A("s_waitcnt vmcnt(0)")
    for k in range(8):
        b = vGA + 4 * k
        A(f"v_max3_u32 v{4+(k&1)}, v{b}, v{b+1}, v{b+2}"); A(f"v_max_u32 v{4+(k&1)}, v{4+(k&1)}, v{b+3}")
        A(f"v_cmp_eq_u32 s[{sM+2*k}:{sM+2*k+1}], -1, v{4+(k&1)}")
    A(f"s_or_b64 s[{sE}:{sE+1}], s[{sM}:{sM+1}], s[{sM+2}:{sM+3}]")
    for k in range(2, 8): A(f"s_or_b64 s[{sE}:{sE+1}], s[{sE}:{sE+1}], s[{sM+2*k}:{sM+2*k+1}]")
    A("s_cbranch_scc0 L_gdone")
    spin_tail("L_gather", tsleep)
    A.label("L_gdone")
    stamp(8)
    for k in range(8):
        P, t = k >> 2, k & 3
        for ch in range(2):
            A(f"v_mfma_f32_16x16x32_bf16 {vr(vD+4*ch)}, {vr(vGA+4*k)}, {ar(wofrag(P,t,ch))}, {'0' if k == 0 else vr(vD+4*ch)}")
    A(f"v_add_f32 v4, v{vD}, v{vD+1}"); A(f"v_add_f32 v5, v{vD+2}, v{vD+3}")
    A(f"v_add_f32 v6, v{vD+4}, v{vD+5}"); A(f"v_add_f32 v7, v{vD+6}, v{vD+7}")
    A(f"v_add_f32_dpp v4, v5, v4 row_ror:8 row_mask:0xf bank_mask:0x3")
    A(f"v_add_f32_dpp v4, v6, v7 row_ror:8 row_mask:0xf bank_mask:0xc")
    A("v_min_u32 v4, -2, v4")
    A(f"buffer_store_dword v4, v{vPO}, {sr(S_WS)}, s{sP2} offen sc1")
    stamp(9)
    A("s_cmp_lg_u32 s3, 0")
    A("s_cbranch_scc1 L_end")
    A(f"s_mov_b32 s{sSPIN}, {spin}")
    A.label("L_s3")
    A(f"buffer_load_dwordx4 v[12:15], v8, {sr(S_WS)}, s{sP3} offen sc1")
    A("s_waitcnt vmcnt(0)")
    A("v_max3_u32 v10, v12, v13, v14"); A("v_max_u32 v10, v10, v15")
    A(f"v_cmp_eq_u32 s[{sE}:{sE+1}], -1, v10")
    A(f"s_cmp_eq_u64 s[{sE}:{sE+1}], 0"); A("s_cbranch_scc1 L_s3done")
    spin_tail("L_s3", tsleep)
    A.label("L_s3done")
    for mode in ("quad_perm:[1,0,3,2]", "quad_perm:[2,3,0,1]", "row_half_mirror"):
        for r in range(4): A(f"v_add_f32_dpp v{12+r}, v{12+r}, v{12+r} {mode} {FULL}")
    A("v_cvt_pk_bf16_f32 v12, v12, v13"); A("v_cvt_pk_bf16_f32 v13, v14, v15")
    smask(sE, 0x0101010101010101)
    A(f"s_mov_b64 exec, s[{sE}:{sE+1}]")
    A(f"buffer_store_dwordx2 v[12:13], v9, {sr(S_O)}, s{sOUT} offen")
    A("s_mov_b64 exec, -1")
    stamp(10)
    A("s_endpgm")

    A.label("L_helper")
    S_DBG = S_O
    hO1, hO2, hO3 = 21, 22, 23
    A(f"v_lshlrev_b32 v{hO1}, 4, v{vL}")
    A("s_waitcnt lgkmcnt(0)")
    srd(S_WS, 28, WS_BYTES); srd(S_DBG, 26, 256); srd(S_X, 14, 8192)
    stamp(0)
    A("s_cmp_lg_u32 s2, 0"); A("s_cbranch_scc1 L_noinit")
    for r in range(4): A(f"v_mov_b32 v{4+r}, 0")
    A(f"s_mov_b32 s{sT0}, {FLG1}"); A(f"s_mov_b32 s{sT1}, {FLG2}")
    for i in range(8):
        A(f"buffer_store_dwordx4 v[4:7], v{hO1}, {sr(S_WS)}, s{sT1 if i >= 4 else sT0} offen offset:{(i&3)*1024} sc1")
    A("v_mov_b32 v5, 1")
    A("s_waitcnt vmcnt(0)")
    A("s_mov_b64 exec, 1")
    A(f"buffer_store_dword v5, v4, {sr(S_DBG)}, 0 offen sc1")
    A("s_mov_b64 exec, -1")
    A.label("L_noinit")
    for r in range(4): A(f"v_mov_b32 v{4+r}, -1")
    A(f"s_lshl_b32 s{sT0}, s2, 11"); A(f"s_add_u32 s{sT0}, s{sT0}, {SENT}")
    A(f"buffer_store_dwordx4 v[4:7], v{hO1}, {sr(S_WS)}, s{sT0} offen sc1")
    A(f"buffer_store_dwordx4 v[4:7], v{hO1}, {sr(S_WS)}, s{sT0} offen offset:1024 sc1")
    A(f"v_mov_b32 v{hO2}, {L_ST}")
    A(f"ds_write_b128 v{hO2}, v[4:7]"); A(f"ds_write_b128 v{hO2}, v[4:7] offset:16"); A(f"ds_write_b128 v{hO2}, v[4:7] offset:{L_WOF - L_ST}")
    hX = 26
    A(f"v_lshrrev_b32 v20, 3, v{vJ}"); A("v_lshlrev_b32 v20, 11, v20"); A(f"v_lshl_add_u32 v20, v{vG}, 6, v20")
    A(f"s_lshl_b32 s{sT0}, s{sKS}, 8"); A(f"s_add_u32 s{sT1}, s{sT0}, 4096")
    for q in range(2):
        for i in range(4):
            A(f"buffer_load_dwordx4 {vr(hX+16*q+4*i)}, v20, {sr(S_X)}, s{sT1 if q else sT0} offen offset:{i*16}")
    build_sel()
    A(f"v_lshrrev_b32 v4, 3, v{vJ}"); A(f"v_lshlrev_b32 v{hO2}, 9, v4")
    A(f"v_lshl_add_u32 v{hO2}, v{vG}, 7, v{hO2}")
    A(f"v_and_b32 v4, 7, v{vJ}"); A(f"v_lshl_add_u32 v{hO2}, v4, 4, v{hO2}")
    A(f"v_add_u32 v{hO3}, {L_EX}, v{hO1}")
    sFL = 66
    A(f"s_lshl_b32 s{sFL}, s{sH1}, 7"); A(f"s_lshl_b32 s{sT0}, s{sKS}, 2"); A(f"s_add_u32 s{sFL}, s{sFL}, s{sT0}")
    A(f"s_add_u32 s{sFL}, s{sFL}, {FLG1}")
    hQW, hQG, hFP = 24, 25, 20
    A(f"v_lshrrev_b32 v4, 5, v{vL}"); A(f"v_and_b32 v5, 31, v{vL}")
    A(f"v_lshlrev_b32 v{hQG}, 11, v4"); A(f"v_lshl_add_u32 v{hQG}, v5, 4, v{hQG}")
    A("v_lshrrev_b32 v7, 3, v5"); A(f"v_lshlrev_b32 v{hQW}, 6, v7")
    A("v_and_b32 v7, 7, v5"); A(f"v_lshl_add_u32 v{hQW}, v7, 1, v{hQW}")
    A(f"v_lshlrev_b32 v{hFP}, 2, v7")
    A("v_mov_b32 v4, 1"); A("v_mov_b32 v5, 0")
    A(f"v_add_u32 v7, {L_QL}, v{hQW}")
    A(f"s_lshl_b32 s{sT0}, s2, 11")
    A(f"s_lshl_b32 s{sT2}, s{sH}, 7"); A(f"s_add_u32 s{sT2}, s{sT2}, {FLG1}")
    A(f"s_lshl_b32 s{sT3}, s{sH}, 14"); A(f"s_lshl_b32 s{sT1}, s{sB}, 9"); A(f"s_add_u32 s{sT3}, s{sT3}, s{sT1}")
    A(f"s_mov_b32 s{sSPIN}, {spin}")
    A("s_waitcnt lgkmcnt(0)")
    A("s_barrier")
    stamp(1)
    for q in range(2):
        for v in range(4): A(f"ds_read_b128 {vr(64+16*q+4*v)}, v{hO3} offset:{v*2048+q*1024}")
    A("s_waitcnt lgkmcnt(0)")
    for q in range(2):
        b = 64 + 16 * q
        for r in range(4):
            A(f"v_add_f32 v{b+r}, v{b+r}, v{b+4+r}"); A(f"v_add_f32 v{b+8+r}, v{b+8+r}, v{b+12+r}")
        for r in range(4): A(f"v_add_f32 v{b+r}, v{b+r}, v{b+8+r}")
        A(f"buffer_store_dwordx4 {vr(b)}, v{hO2}, {sr(S_WS)}, s{sT0} offen offset:{q*1024} sc1")
    A.label("L_pi")
    A(f"buffer_load_dword v6, v5, {sr(S_DBG)}, 0 offen sc1")
    A("s_waitcnt vmcnt(0)")
    A(f"v_readfirstlane_b32 s{sT1}, v6")
    A(f"s_cmp_eq_u32 s{sT1}, 1"); A("s_cbranch_scc1 L_pi_ok")
    spin_tail("L_pi", qsleep)
    A.label("L_pi_ok")
    A("s_mov_b64 exec, 1")
    A(f"buffer_store_dword v4, v5, {sr(S_WS)}, s{sFL} offen sc1")
    A("s_mov_b64 exec, -1")
    stamp(2)
    A(f"s_mov_b32 s{sSPIN}, {spin}")
    A.label("L_pq")
    A(f"buffer_load_dword v6, v{hFP}, {sr(S_WS)}, s{sT2} offen sc1")
    A("s_waitcnt vmcnt(0)")
    A(f"v_cmp_ne_u32 s[{sE}:{sE+1}], 1, v6")
    A(f"s_cmp_eq_u64 s[{sE}:{sE+1}], 0"); A("s_cbranch_scc1 L_pq_ok")
    spin_tail("L_pq", qsleep)
    A.label("L_pq_ok")
    stamp(3)
    for i in range(4):
        A(f"buffer_load_dwordx4 {vr(64+4*i)}, v{hQG}, {sr(S_WS)}, s{sT3} offen sc1")
        if i < 3: A(f"s_add_u32 s{sT3}, s{sT3}, 4096")
    A("s_waitcnt vmcnt(0)")
    for r in range(4):
        A(f"v_add_f32 v{64+r}, v{64+r}, v{68+r}"); A(f"v_add_f32 v{72+r}, v{72+r}, v{76+r}")
    for r in range(4): A(f"v_add_f32 v{64+r}, v{64+r}, v{72+r}")
    for r in range(4): A(f"v_mov_b32 v{68+r}, v{64+r}")
    for r in range(4): A(f"v_permlane32_swap_b32 v{68+r}, v{64+r}")
    for r in range(4): A(f"v_add_f32 v{64+r}, v{64+r}, v{68+r}")
    def write_b16(addr, b, off):
        A(f"v_cvt_pk_bf16_f32 v{b}, v{b}, v{b+1}"); A(f"v_cvt_pk_bf16_f32 v{b+2}, v{b+2}, v{b+3}")
        A(f"ds_write_b16 v{addr}, v{b} offset:{off}"); A(f"ds_write_b16_d16_hi v{addr}, v{b} offset:{off+16}")
        A(f"ds_write_b16 v{addr}, v{b+2} offset:{off+32}"); A(f"ds_write_b16_d16_hi v{addr}, v{b+2} offset:{off+48}")
    write_b16(7, 64, 0)
    hR = 23
    A(f"v_add_u32 v{hR}, {L_R2}, v{hO1}")
    A("s_waitcnt lgkmcnt(0)")
    stamp(4)
    A("s_barrier")
    def lds_frags(off):
        for k in range(32):
            A(f"ds_read_b128 {ar(4*k)}, v{hR} offset:{off + k*1024}")
            if k % 8 == 7: A("s_waitcnt lgkmcnt(0)")
    lds_frags(0)
    A(f"v_mov_b32 v4, {L_WOF}"); A("v_mov_b32 v5, 1"); A("ds_write_b32 v4, v5")
    hB, hD = 64, 72
    for t in range(32):
        for q in range(2):
            b = hB + 4 * q
            x = hX + 16 * q + (t >> 1)
            for rr in range(4): A(f"v_perm_b32 v{b+rr}, v{x}, v{x}, v{vSEL+2*rr+(t&1)}")
            A(f"v_mfma_f32_16x16x32_bf16 {vr(hD+4*q)}, {ar(4*t)}, {vr(b)}, {'0' if t == 0 else vr(hD+4*q)}")
    A(f"s_lshl_b32 s{sT0}, s2, 11"); A(f"s_add_u32 s{sT0}, s{sT0}, {QP_B}")
    for q in range(2):
        A(f"buffer_store_dwordx4 {vr(hD+4*q)}, v{hO2}, {sr(S_WS)}, s{sT0} offen offset:{q*1024} sc1")
    A("v_mov_b32 v4, 1"); A("v_mov_b32 v5, 0")
    A(f"s_add_u32 s{sFL}, s{sFL}, {FLG2 - FLG1}")
    A("s_waitcnt vmcnt(0)")
    A("s_mov_b64 exec, 1")
    A(f"buffer_store_dword v4, v5, {sr(S_WS)}, s{sFL} offen sc1")
    A("s_mov_b64 exec, -1")
    stamp(5)
    lds_frags(L_R3 - L_R2)
    sPB, sSB = 96, 97
    A(f"s_lshr_b32 s{sPB}, s2, 4"); A(f"s_and_b32 s{sSB}, s2, 15")
    A(f"v_and_b32 v4, 3, v{vL}"); A("v_lshlrev_b32 v5, 3, v4"); A(f"v_add_u32 v5, {L_ST}, v5")
    A(f"s_mov_b32 s{sSPIN}, {spin}")
    hm, hl = 58, 59
    A.label("L_st")
    A(f"ds_read_b64 {vr(hm,2)}, v5")
    A("s_waitcnt lgkmcnt(0)")
    A(f"v_max_u32 v6, v{hm}, v{hl}")
    A(f"v_cmp_eq_u32 s[{sE}:{sE+1}], -1, v6")
    A(f"s_cmp_eq_u64 s[{sE}:{sE+1}], 0"); A("s_cbranch_scc1 L_st_ok")
    spin_tail("L_st", hsleep)
    A.label("L_st_ok")
    stamp(6)
    A(f"v_lshrrev_b32 v4, 1, v{vL}"); A("v_lshlrev_b32 v4, 7, v4")
    A(f"v_and_b32 v5, 1, v{vL}"); A("v_lshl_add_u32 v4, v5, 4, v4")
    A(f"s_mov_b32 s{sSPIN}, {spin}"); A(f"s_mov_b32 s{sT1}, {FLG2}")
    A.label("L_pa")
    A(f"buffer_load_dwordx4 v[64:67], v4, {sr(S_WS)}, s{sT1} offen sc1")
    A("s_waitcnt vmcnt(0)")
    A("v_and_b32 v5, v64, v65"); A("v_and_b32 v6, v66, v67"); A("v_and_b32 v5, v5, v6")
    A(f"v_cmp_ne_u32 s[{sE}:{sE+1}], 1, v5")
    A(f"s_cmp_eq_u64 s[{sE}:{sE+1}], 0"); A("s_cbranch_scc1 L_pa_ok")
    spin_tail("L_pa", hsleep)
    A.label("L_pa_ok")
    hMW, hLW, hZ = 60, 61, 20
    A(f"v_mov_b32 v{hMW}, v{hm}")
    for mode in ("quad_perm:[1,0,3,2]", "quad_perm:[2,3,0,1]"): A(f"v_max_f32_dpp v{hMW}, v{hMW}, v{hMW} {mode} {FULL}")
    A(f"v_sub_f32 v6, v{hm}, v{hMW}"); A("v_exp_f32 v6, v6"); A(f"v_mul_f32 v{hLW}, v6, v{hl}")
    for mode in ("quad_perm:[1,0,3,2]", "quad_perm:[2,3,0,1]"): A(f"v_add_f32_dpp v{hLW}, v{hLW}, v{hLW} {mode} {FULL}")
    A(f"v_min_u32 v6, -2, v{hMW}"); A(f"v_min_u32 v7, -2, v{hLW}")
    A(f"v_mov_b32 v{hZ}, 0")
    A(f"s_lshl_b32 s{sT0}, s2, 3"); A(f"s_add_u32 s{sT0}, s{sT0}, {AST}")
    A("s_mov_b64 exec, 1")
    A(f"buffer_store_dwordx2 v[6:7], v{hZ}, {sr(S_WS)}, s{sT0} offen sc1")
    A("s_mov_b64 exec, -1")
    stamp(7)
    A(f"v_lshrrev_b32 v4, 5, v{vL}"); A(f"v_and_b32 v5, 31, v{vL}")
    A("v_lshlrev_b32 v26, 14, v4"); A("v_lshl_add_u32 v26, v5, 4, v26")
    A(f"v_lshl_add_u32 v27, v4, 8, v{hQW}"); A(f"v_add_u32 v27, {L_QBL}, v27")
    A(f"s_and_b32 s{sT0}, s{sPB}, 3"); A(f"s_lshl_b32 s{sT0}, s{sT0}, 17")
    A(f"s_lshr_b32 s{sT1}, s{sPB}, 2"); A(f"s_lshl_b32 s{sT1}, s{sT1}, 9")
    A(f"s_add_u32 s{sT0}, s{sT0}, s{sT1}"); A(f"s_add_u32 s{sT0}, s{sT0}, {QP_B}")
    for hp2 in range(4):
        for ks in range(8):
            if ks % 2 == 0: A("s_waitcnt vmcnt(0)")
            if "g" not in skip: A(f"buffer_load_dwordx4 {vr(64+4*ks)}, v26, {sr(S_WS)}, s{sT0} offen offset:{(ks&1)*2048} {gfl}")
            if ks & 1: A(f"s_add_u32 s{sT0}, s{sT0}, {4096 if ks < 7 else 4096 + 16384}")
        A("s_waitcnt vmcnt(0)")
        for st in (16, 8, 4):
            for r in range(st): A(f"v_add_f32 v{64+r}, v{64+r}, v{64+st+r}")
        write_b16(27, 64, hp2 * 512)
    hETA = 28
    A(f"v_bfe_u32 v4, v{vJ}, 1, 2"); A(f"v_lshrrev_b32 v5, 3, v{vJ}"); A(f"v_lshl_add_u32 v{hETA}, v4, 1, v5")
    A(f"v_lshlrev_b32 v4, 8, v{hETA}"); A(f"v_lshl_add_u32 v4, v{vG}, 5, v4")
    A(f"v_and_b32 v5, 1, v{vJ}"); A("v_lshl_add_u32 v4, v5, 4, v4"); A(f"v_add_u32 v4, {L_QBL}, v4")
    hQ = 30
    A(f"ds_read_b128 {vr(hQ)}, v4"); A(f"ds_read_b128 {vr(hQ+4)}, v4 offset:128")
    A("s_waitcnt lgkmcnt(0)")
    hS = 64
    hDD = 38
    def postB(g8):
        d = hDD + 4 * (g8 & 1)
        for r2 in range(2):
            A(f"v_mov_b32_dpp v{hS+2*g8+r2}, v{d+2*r2} quad_perm:[0,0,2,2] {FULL}")
            A(f"v_add_f32_dpp v{hS+2*g8+r2}, v{d+2*r2+1}, v{hS+2*g8+r2} quad_perm:[1,1,3,3] {FULL}")
    for g8 in range(16):
        d = hDD + 4 * (g8 & 1)
        A(f"v_mfma_f32_16x16x32_bf16 {vr(d)}, {ar(8*g8)}, {vr(hQ)}, 0")
        A(f"v_mfma_f32_16x16x32_bf16 {vr(d)}, {ar(8*g8+4)}, {vr(hQ+4)}, {vr(d)}")
        if g8 > 0: postB(g8 - 1)
    postB(15)
    lds_frags(0)
    hM, hL, hNM = 46, 47, 48
    A(f"v_max_f32 v{hM}, v{hS}, v{hS+1}")
    for k in range(2, 32, 2): A(f"v_max3_f32 v{hM}, v{hM}, v{hS+k}, v{hS+k+1}")
    allreduce(hM, 4, "v_max_f32", [])
    A(f"v_mul_f32 v{hM}, s{sC}, v{hM}"); A(f"v_sub_f32 v{hNM}, 0, v{hM}")
    for k in range(32): A(f"v_fma_f32 v{hS+k}, v{hS+k}, s{sC}, v{hNM}")
    for k in range(32): A(f"v_exp_f32 v{hS+k}, v{hS+k}")
    A(f"v_add_f32 v{hL}, v{hS}, v{hS+1}")
    for k in range(2, 32): A(f"v_add_f32 v{hL}, v{hL}, v{hS+k}")
    allreduce(hL, 4, "v_add_f32", [])
    for k in range(32): A(f"v_cvt_pk_bf16_f32 v{hS+k}, v{hS+k}, v{hS+k}")
    hOB = 96
    hBB = 50
    cnt = 0
    for k in range(32):
        for q in range(4):
            b = hBB + 4 * (cnt & 1); cnt += 1
            for rr in range(4):
                if q == rr: A(f"v_and_b32 v{b+rr}, v{hS+k}, v{vMSK+rr}")
                elif q > rr: A(f"v_and_b32_dpp v{b+rr}, v{hS+k}, v{vMSK+rr} row_shl:{2*(q-rr)} {FULL} bound_ctrl:0")
                else: A(f"v_and_b32_dpp v{b+rr}, v{hS+k}, v{vMSK+rr} row_shr:{2*(rr-q)} {FULL} bound_ctrl:0")
            A(f"v_mfma_f32_16x16x32_bf16 {vr(hOB+4*q)}, {ar(4*k)}, {vr(b)}, {'0' if k == 0 else vr(hOB+4*q)}")
    A(f"s_lshl_b32 s{sT0}, s2, 12"); A(f"s_add_u32 s{sT0}, s{sT0}, {BP}")
    for q in range(4):
        if "b" not in skip: A(f"buffer_store_dwordx4 {vr(hOB+4*q)}, v{hO2}, {sr(S_WS)}, s{sT0} offen offset:{q*1024} sc1")
    A(f"v_min_u32 v{hM}, -2, v{hM}"); A(f"v_min_u32 v{hL}, -2, v{hL}")
    A(f"v_lshlrev_b32 v4, 7, v{hETA}")
    A(f"s_lshl_b32 s{sT0}, s{sPB}, 10"); A(f"s_lshl_b32 s{sT1}, s{sSB}, 3"); A(f"s_add_u32 s{sT0}, s{sT0}, s{sT1}")
    A(f"s_add_u32 s{sT0}, s{sT0}, {BST}")
    A("s_waitcnt vmcnt(0)")
    A("s_mov_b64 exec, 0x5555")
    if "s" not in skip: A(f"buffer_store_dwordx2 {vr(hM,2)}, v4, {sr(S_WS)}, s{sT0} offen sc1")
    A("s_mov_b64 exec, -1")
    stamp(8)
    A(f"s_xor_b32 s{sT0}, s2, 1"); A(f"s_lshl_b32 s{sT0}, s{sT0}, 3"); A(f"s_add_u32 s{sT0}, s{sT0}, {AST}")
    A(f"s_mov_b32 s{sSPIN}, {spin}")
    A.label("L_ps")
    A(f"buffer_load_dwordx2 v[36:37], v{hZ}, {sr(S_WS)}, s{sT0} offen sc1")
    A("s_waitcnt vmcnt(0)")
    A("v_max_u32 v6, v36, v37")
    A(f"v_cmp_eq_u32 s[{sE}:{sE+1}], -1, v6")
    A(f"s_cmp_eq_u64 s[{sE}:{sE+1}], 0"); A("s_cbranch_scc1 L_ps_ok")
    spin_tail("L_ps", hsleep)
    A.label("L_ps_ok")
    A(f"v_max_f32 v4, v{hMW}, v36")
    A(f"v_sub_f32 v5, v{hMW}, v4"); A("v_sub_f32 v6, v36, v4"); A(f"v_sub_f32 v7, v{hm}, v4")
    A("v_exp_f32 v5, v5"); A("v_exp_f32 v6, v6"); A("v_exp_f32 v7, v7")
    A(f"v_mul_f32 v5, v5, v{hLW}"); A("v_fmac_f32 v5, v6, v37")
    A("v_rcp_f32 v5, v5"); A("v_mul_f32 v7, v7, v5")
    A(f"v_and_b32 v4, 3, v{vL}"); A("v_lshlrev_b32 v4, 2, v4"); A(f"v_add_u32 v4, {L_WGT}, v4")
    A("ds_write_b32 v4, v7")
    stamp(9)
    A(f"s_lshr_b32 s{sT2}, s2, 1")
    A(f"s_lshl_b32 s{sT0}, s{sT2}, 7"); A(f"s_add_u32 s{sT0}, s{sT0}, {BST}")
    A(f"v_lshlrev_b32 v4, 3, v{vJ}")
    A(f"s_mov_b32 s{sSPIN}, {1 if 's' in skip else spin}")
    A.label("L_l2")
    A(f"s_sleep {hsleep}")
    A(f"buffer_load_dwordx2 v[36:37], v4, {sr(S_WS)}, s{sT0} offen sc1")
    A("s_waitcnt vmcnt(0)")
    A("v_max_u32 v6, v36, v37")
    A(f"v_cmp_eq_u32 s[{sE}:{sE+1}], -1, v6")
    A(f"s_cmp_eq_u64 s[{sE}:{sE+1}], 0"); A("s_cbranch_scc1 L_l2_ok")
    spin_tail("L_l2", hsleep)
    A.label("L_l2_ok")
    A(f"v_lshlrev_b32 v5, 12, v{vJ}"); A(f"v_lshl_add_u32 v5, v{vG}, 4, v5")
    A(f"s_lshr_b32 s{sT0}, s{sT2}, 3"); A(f"s_lshl_b32 s{sT0}, s{sT0}, 16")
    A(f"s_and_b32 s{sT1}, s2, 15"); A(f"s_lshl_b32 s{sT1}, s{sT1}, 8")
    A(f"s_add_u32 s{sT0}, s{sT0}, s{sT1}"); A(f"s_add_u32 s{sT0}, s{sT0}, {BP}")
    for i in range(4):
        if "b" not in skip: A(f"buffer_load_dwordx4 {vr(64+4*i)}, v5, {sr(S_WS)}, s{sT0} offen offset:{i*64} sc1")
    A("v_mov_b32 v6, v36")
    for r in (8, 4, 2, 1): A(f"v_max_f32_dpp v6, v6, v6 row_ror:{r} {FULL}")
    A("v_sub_f32 v6, v36, v6"); A("v_exp_f32 v6, v6"); A("v_mul_f32 v7, v6, v37")
    for r in (8, 4, 2, 1): A(f"v_add_f32_dpp v7, v7, v7 row_ror:{r} {FULL}")
    A("v_rcp_f32 v7, v7"); A("v_mul_f32 v6, v6, v7")
    A("s_waitcnt vmcnt(0)")
    for r in range(16): A(f"v_mul_f32 v{64+r}, v{64+r}, v6")
    for rot in (8, 4, 2, 1):
        for r in range(16): A(f"v_add_f32_dpp v{64+r}, v{64+r}, v{64+r} row_ror:{rot} {FULL}")
    smask(sE, 0x0001000100010001)
    for i in range(4):
        A(f"v_cvt_pk_bf16_f32 v{80+2*i}, v{64+4*i}, v{65+4*i}"); A(f"v_cvt_pk_bf16_f32 v{81+2*i}, v{66+4*i}, v{67+4*i}")
    for r in range(8):
        A(f"v_min_u32 v{80+r}, -2, v{80+r}"); A(f"v_cndmask_b32 v{80+r}, 0, v{80+r}, s[{sE}:{sE+1}]")
    A(f"v_and_b32 v4, 1, v{vJ}"); A(f"v_xor_b32 v4, s{sS}, v4"); A("v_lshlrev_b32 v4, 7, v4"); A(f"v_lshl_add_u32 v4, v{vG}, 3, v4")
    A(f"s_lshl_b32 s{sT0}, s{sH}, 2"); A(f"s_add_u32 s{sT0}, s{sT0}, s{sB}"); A(f"s_lshl_b32 s{sT0}, s{sT0}, 1")
    A(f"s_add_u32 s{sT0}, s{sT0}, s{sS}"); A(f"s_lshl_b32 s{sT0}, s{sT0}, 8"); A(f"s_add_u32 s{sT0}, s{sT0}, {REC + 65536}")
    smask(sE, 0x0003000300030003)
    A(f"s_mov_b64 exec, s[{sE}:{sE+1}]")
    for i in range(4): A(f"buffer_store_dwordx2 {vr(80+2*i,2)}, v4, {sr(S_WS)}, s{sT0} offen offset:{i*32} sc1")
    A("s_mov_b64 exec, -1")
    stamp(10); stamp(11)
    A("s_waitcnt vmcnt(0) lgkmcnt(0)")
    A.label("L_end")
    A("s_endpgm")

    nn = A.fix_hazards()
    out = HEADER
    out += f"; @launch grid=(256,1,1) block=(320,1,1) lds={LDS_BYTES}\n"
    out += '.amdgcn_target "amdgcn-amd-amdhsa--gfx950"\n.text\n'
    out += f".globl {NAME}_kernel\n.p2align 8\n.type {NAME}_kernel,@function\n{NAME}_kernel:\n"
    out += A.text()
    out += '.section .rodata,"a"\n.p2align 6\n'
    out += f".amdhsa_kernel {NAME}_kernel\n"
    out += "  .amdhsa_next_free_vgpr 256\n  .amdhsa_next_free_sgpr 102\n  .amdhsa_accum_offset 128\n"
    out += "  .amdhsa_group_segment_fixed_size 0\n  .amdhsa_kernarg_size 104\n  .amdhsa_user_sgpr_count 2\n"
    out += "  .amdhsa_user_sgpr_kernarg_segment_ptr 1\n  .amdhsa_system_sgpr_workgroup_id_x 1\n"
    out += "  .amdhsa_float_denorm_mode_32 3\n"
    out += ".end_amdhsa_kernel\n"
    return out

if __name__ == "__main__":
    import json
    kw = json.loads(sys.argv[2]) if len(sys.argv) > 2 else {}
    open(sys.argv[1], "w").write(gen(**kw))
```

```python
import sys, struct, math
sys.path.insert(0, "dev")
from asmlib import Asm
NAME = "concat_heads__mha_block_cached__sliding_block_cached__decode"

HEADER = """; Kernarg layout for this problem (104 bytes, ptrs only, base s[0:1]):
"""

QP_A = 0x000000
QP_B = 0x080000
BP   = 0x100000
SENT = 0x200000
REC  = SENT
P2   = SENT + 0x20000
AST  = SENT + 0x60000
BST  = SENT + 0x61000
FLG1 = 0x300000
FLG2 = 0x301000
TS   = 0x400000
WS_BYTES = 0x800000
L_WO  = 0
L_R2  = 0x10000
L_R3  = 0x18000
L_SC  = 0x20000
L_EX  = 0x24000
L_QL  = 0x26000
L_QBL = 0x26100
L_ST  = 0x26900
L_WGT = 0x26920
L_WOF = 0x26930
LDS_BYTES = 0x26A00
FULL = "row_mask:0xf bank_mask:0xf"
SCALE = (128 ** -0.5) * math.log2(math.e)
def f32bits(x): return struct.unpack("<I", struct.pack("<f", x))[0]

def gen(DP=(4,), DK=(4,), DV=(4,), DE=None, NE=0, X=12, prof=False, spin=1 << 16, hsleep=32, tsleep=1, qsleep=4, skip="", gfl="sc1", diag=None):
    tup = lambda x: (x,) if isinstance(x, int) else tuple(x)
    DP, DK, DV = tup(DP), tup(DK), tup(DV)
    DE = DV if DE is None else tup(DE)
    A = Asm()
    in_helper = [False]
    def srd(base, ptr, size):
        A(f"s_mov_b32 s{base}, s{ptr}"); A(f"s_mov_b32 s{base+1}, s{ptr+1}")
        A(f"s_mov_b32 s{base+2}, {hex(size)}"); A(f"s_mov_b32 s{base+3}, 0x00020000")
    def smask(r, val):
        A(f"s_mov_b32 s{r}, {hex(val & 0xffffffff)}"); A(f"s_mov_b32 s{r+1}, {hex(val >> 32)}")
    S_K, S_V, S_X, S_W, S_WS, S_O, S_WO = 32, 36, 40, 44, 48, 52, 56
    sr = lambda b: f"s[{b}:{b+3}]"
    vr = lambda b, n=4: f"v[{b}:{b+n-1}]"
    ar = lambda b, n=4: f"a[{b}:{b+n-1}]"
    sT0, sT1, sT2, sT3, sCNT, sOFFK, sOFFV, sC, sSPIN, sLD = 60, 61, 62, 63, 64, 65, 66, 67, 68, 69
    sM = 70
    sE = 86
    sTS = 88
    sTI = 90
    sH1, sKS, sB, sH, sS = 91, 92, 93, 94, 95
    sKB = 30
    vL, vG, vJ = 1, 2, 3
    def stamp(idx):
        if diag and not in_helper[0]:
            wg, sidx, base, mul = diag
            if idx == sidx:
                A("s_memrealtime s[4:5]"); A("s_waitcnt lgkmcnt(0)"); A("s_sub_u32 s90, s4, s88"); A(f"s_mul_i32 s90, s90, {mul}")
            if idx == 10:
                if sidx < 0: A("s_mov_b32 s90, 0")
                if wg >= 0:
                    A(f"s_cmp_lg_u32 s2, {wg}"); A("s_cbranch_scc1 L_end")
                A(f"s_add_u32 s90, s90, {base*100}")
                A.label("L_diag")
                A("s_memrealtime s[4:5]"); A("s_waitcnt lgkmcnt(0)"); A("s_sub_u32 s4, s4, s88")
                A("s_cmp_lt_u32 s4, s90"); A("s_cbranch_scc1 L_diag")
        if not prof: return
        A(f"s_memrealtime s[{sTS}:{sTS+1}]")
        A("s_waitcnt lgkmcnt(0)")
        A(f"v_mov_b32 v63, s{sTS}")
        A(f"s_mov_b64 exec, 1")
        A(f"buffer_store_dword v63, v62, {sr(S_WS)}, s{sTI} offen offset:{idx*4}")
        A(f"s_mov_b64 exec, -1")
    def spin_tail(lab, sl):
        A(f"s_sleep {sl}")
        A(f"s_sub_u32 s{sSPIN}, s{sSPIN}, 1"); A(f"s_cmp_lg_u32 s{sSPIN}, 0"); A(f"s_cbranch_scc1 {lab}")
    def allreduce(v, tmp, op, rors):
        for r in rors: A(f"{op}_dpp v{v}, v{v}, v{v} row_ror:{r} {FULL}")
        A(f"v_mov_b32 v{tmp}, v{v}"); A(f"v_permlane16_swap_b32 v{tmp}, v{v}"); A(f"{op} v{v}, v{v}, v{tmp}")
        A(f"v_mov_b32 v{tmp}, v{v}"); A(f"v_permlane32_swap_b32 v{tmp}, v{v}"); A(f"{op} v{v}, v{v}, v{tmp}")

    A(f"s_cmp_ge_u32 s2, 256")
    A("s_cbranch_scc1 L_end")
    A("s_load_dwordx16 s[4:19], s[0:1], 0")
    A("s_load_dwordx8 s[20:27], s[0:1], 64")
    A("s_load_dwordx2 s[28:29], s[0:1], 96")
    A(f"v_lshrrev_b32 v4, 6, v0")
    A(f"v_and_b32 v{vL}, 63, v0")
    A(f"v_readfirstlane_b32 s3, v4")
    A(f"v_lshrrev_b32 v{vG}, 4, v{vL}")
    A(f"v_and_b32 v{vJ}, 15, v{vL}")
    A(f"s_lshr_b32 s{sH1}, s2, 3")
    A(f"s_and_b32 s{sKS}, s2, 7")
    A(f"s_lshr_b32 s{sB}, s2, 6")
    A(f"s_bfe_u32 s{sH}, s2, 0x50001")
    A(f"s_and_b32 s{sS}, s2, 1")
    A(f"s_mov_b32 s{sC}, {hex(f32bits(SCALE))}")
    if prof:
        A(f"s_mul_i32 s{sTI}, s2, 5"); A(f"s_add_u32 s{sTI}, s{sTI}, s3"); A(f"s_lshl_b32 s{sTI}, s{sTI}, 6")
        A(f"s_add_u32 s{sTI}, s{sTI}, {TS}"); A("v_mov_b32 v62, 0")
    vSEL, vMSK = 8, 16
    def build_sel():
        for rr in range(4): smask(sM + 2 * rr, 0x0303030303030303 << (2 * rr))
        smask(sE, 0xAAAAAAAAAAAAAAAA)
        A("v_mov_b32 v4, 0x0c0c0100"); A("v_mov_b32 v5, 0x01000c0c")
        A(f"v_cndmask_b32 v6, v4, v5, s[{sE}:{sE+1}]")
        A("v_mov_b32 v4, 0x0c0c0302"); A("v_mov_b32 v5, 0x03020c0c")
        A(f"v_cndmask_b32 v7, v4, v5, s[{sE}:{sE+1}]")
        A("v_mov_b32 v4, 0x0c0c0c0c")
        for rr in range(4):
            A(f"v_cndmask_b32 v{vSEL+2*rr}, v4, v6, s[{sM+2*rr}:{sM+2*rr+1}]")
            A(f"v_cndmask_b32 v{vSEL+2*rr+1}, v4, v7, s[{sM+2*rr}:{sM+2*rr+1}]")
        A("v_mov_b32 v4, 0x0000ffff"); A("v_mov_b32 v5, 0xffff0000")
        A(f"v_cndmask_b32 v6, v4, v5, s[{sE}:{sE+1}]")
        for rr in range(4):
            A(f"v_cndmask_b32 v{vMSK+rr}, 0, v6, s[{sM+2*rr}:{sM+2*rr+1}]")
    A("s_cmp_eq_u32 s3, 4")
    A("s_cbranch_scc1 L_helper")

    vOK, vOV, vAS, vAP, vMAX, vT = 20, 21, 22, 23, 24, 25
    vX = 26
    vBB = 34
    vD = 42
    QB = [8, 12, 26, 30]
    vPP = 58
    vACC = 50
    vDM = 64
    vVB = 89
    A("s_setprio 1")
    if diag: A("s_memrealtime s[88:89]")
    A(f"v_lshrrev_b32 v4, 3, v{vJ}")
    A(f"v_lshlrev_b32 v5, 11, v4")
    A(f"v_lshl_add_u32 v5, v{vG}, 4, v5")
    A(f"v_lshlrev_b32 v6, 16, v{vG}")
    A(f"v_lshl_add_u32 v6, v{vJ}, 4, v6")
    A(f"s_lshl_b32 s{sT0}, s{sKS}, 8"); A(f"s_lshl_b32 s{sT1}, s3, 6"); A(f"s_add_u32 s{sT0}, s{sT0}, s{sT1}")
    A(f"s_add_u32 s{sT1}, s{sT0}, 4096")
    A(f"s_lshl_b32 s{sT2}, s{sT0}, 12")
    A(f"s_lshl_b32 s{sT3}, s{sH1}, 8"); A(f"s_add_u32 s{sT2}, s{sT2}, s{sT3}")
    A("s_waitcnt lgkmcnt(0)")
    srd(S_X, 4, 8192); srd(S_W, 10, 1 << 23)
    A(f"buffer_load_dwordx4 {vr(vX)}, v5, {sr(S_X)}, s{sT0} offen")
    A(f"buffer_load_dwordx4 {vr(vX+4)}, v5, {sr(S_X)}, s{sT1} offen")
    for t in range(8):
        A(f"buffer_load_dwordx4 {ar(4*t)}, v6, {sr(S_W)}, s{sT2} offen nt")
        if t < 7: A(f"s_add_u32 s{sT2}, s{sT2}, 8192")
    srd(S_K, 6, 1 << 28); srd(S_V, 8, 1 << 28); srd(S_WS, 28, WS_BYTES); srd(S_O, 24, 16384)
    srd(S_W, 20, 1 << 23)
    srd(S_X, 16, 1 << 25)
    A(f"s_cmp_ge_u32 s2, 128")
    A(f"s_cselect_b32 s{S_WO}, s22, s12"); A(f"s_cselect_b32 s{S_WO+1}, s23, s13")
    A(f"s_mov_b32 s{S_WO+2}, {hex(1 << 23)}"); A(f"s_mov_b32 s{S_WO+3}, 0x00020000")
    stamp(0)
    A(f"v_lshrrev_b32 v7, 2, v{vJ}")
    A(f"v_lshlrev_b32 v{vOK}, 8, v7")
    A(f"v_lshl_add_u32 v{vOK}, v{vG}, 6, v{vOK}")
    A(f"v_and_b32 v5, 3, v{vJ}")
    A(f"v_lshl_add_u32 v{vOK}, v5, 4, v{vOK}")
    A(f"v_lshl_add_u32 v6, v{vG}, 1, v4")
    A(f"v_lshlrev_b32 v{vOV}, 8, v6")
    A(f"v_and_b32 v5, 7, v{vJ}")
    A(f"v_lshl_add_u32 v{vOV}, v5, 4, v{vOV}")
    A(f"v_lshlrev_b32 v{vDM+1}, 11, v6"); A(f"v_lshl_add_u32 v{vDM+1}, v5, 4, v{vDM+1}")
    A(f"v_lshlrev_b32 v{vDM}, 18, v{vG}"); A(f"v_lshl_add_u32 v{vDM}, v{vJ}, 4, v{vDM}")
    A(f"s_lshl_b32 s{sOFFK}, s2, 20"); A(f"s_lshl_b32 s{sT0}, s3, 12"); A(f"s_add_u32 s{sOFFK}, s{sOFFK}, s{sT0}")
    A(f"s_mov_b32 s{sOFFV}, s{sOFFK}")
    A(f"s_add_u32 s{sT0}, s{sT0}, {L_SC}")
    A(f"v_lshl_add_u32 v{vAS}, v7, 2, v{vG}")
    A(f"v_lshl_add_u32 v{vAS}, v{vAS}, 2, s{sT0}")
    A(f"v_lshl_add_u32 v{vAP}, v6, 2, s{sT0}")
    A(f"v_mov_b32 v{vMAX}, 0xff800000")
    A(f"v_lshrrev_b32 v4, 1, v{vJ}"); A(f"v_lshlrev_b32 v{vDM+2}, 8, v4")
    A(f"v_lshl_add_u32 v{vDM+2}, v{vG}, 5, v{vDM+2}")
    A(f"v_and_b32 v4, 1, v{vJ}"); A(f"v_lshl_add_u32 v{vDM+2}, v4, 4, v{vDM+2}")
    A(f"v_lshlrev_b32 v{vVB}, 9, v{vG}"); A(f"v_lshl_add_u32 v{vVB}, v{vJ}, 4, v{vVB}")
    A(f"s_lshr_b32 s{sKB}, s2, 4"); A(f"s_lshl_b32 s{sKB}, s{sKB}, 21")
    A(f"s_and_b32 s{sT0}, s2, 15"); A(f"s_lshl_b32 s{sT0}, s{sT0}, 15"); A(f"s_add_u32 s{sKB}, s{sKB}, s{sT0}")
    A(f"s_lshl_b32 s{sLD}, s3, 13"); A(f"s_add_u32 s{sKB}, s{sKB}, s{sLD}"); A(f"s_add_u32 s{sKB}, s{sKB}, {6144 * 256}")
    A(f"s_lshl_b32 s{sT2}, s{sKS}, 20"); A(f"s_add_u32 s{sT2}, s{sT2}, s{sT3}")
    A(f"s_lshl_b32 s{sT0}, s3, 16"); A(f"s_add_u32 s{sT2}, s{sT2}, s{sT0}")
    A(f"s_lshl_b32 s{sT3}, s{sKS}, 20"); A(f"s_and_b32 s{sT0}, s{sH1}, 15"); A(f"s_lshl_b32 s{sT0}, s{sT0}, 7")
    A(f"s_add_u32 s{sT3}, s{sT3}, s{sT0}"); A(f"s_lshl_b32 s{sT0}, s3, 14"); A(f"s_add_u32 s{sT3}, s{sT3}, s{sT0}")
    A(f"s_lshl_b32 s{sCNT}, s3, 10")
    A(f"s_mov_b32 s{sT1}, s{sKB}")
    build_sel()

    def ring_reg(n): return ar(4 * (n % 16))
    kcnt = [0]; vcnt = [0]
    def loadK(reg):
        m = kcnt[0] % 4; kcnt[0] += 1
        A(f"buffer_load_dwordx4 {reg}, v{vOK}, {sr(S_K)}, s{sOFFK} offen offset:{m*1024} nt")
        if m == 3: A(f"s_add_u32 s{sOFFK}, s{sOFFK}, 16384")
    def loadV(reg):
        m = vcnt[0] % 4; vcnt[0] += 1
        A(f"buffer_load_dwordx4 {reg}, v{vOV}, {sr(S_V)}, s{sOFFV} offen offset:{(m>>1)*2048+(m&1)*128} nt")
        if m == 3: A(f"s_add_u32 s{sOFFV}, s{sOFFV}, 16384")
    def qk(reg, m, d):
        A(f"v_mfma_f32_16x16x32_bf16 {vr(d)}, {reg}, {vr(QB[m])}, {'0' if m == 0 else vr(d)}")
    def post(d, off):
        A(f"v_mov_b32_dpp v{vT}, v{d} quad_perm:[0,0,0,0] {FULL}")
        for r in range(1, 4):
            A(f"v_add_f32_dpp v{vT}, v{d+r}, v{vT} quad_perm:[{r},{r},{r},{r}] {FULL}")
        A(f"v_max_f32 v{vMAX}, v{vMAX}, v{vT}")
        A(f"ds_write_b32 v{vAS}, v{vT} offset:{off}")
    def qpart(t):
        for q in range(2):
            b = vBB + 4 * q
            for rr in range(4):
                A(f"v_perm_b32 v{b+rr}, v{vX+4*q+(t>>1)}, v{vX+4*q+(t>>1)}, v{vSEL+2*rr+(t&1)}")
            A(f"v_mfma_f32_16x16x32_bf16 {vr(vD+4*q)}, {ar(4*t)}, {vr(b)}, {'0' if t == 0 else vr(vD+4*q)}")
    def dma(voff, srdb, soff, m0base, m0imm, step, tag):
        A(f"s_add_u32 m0, s{m0base}, {m0imm}")
        def issue():
            if tag not in skip: A(f"buffer_load_dwordx4 v{voff}, {sr(srdb)}, s{soff} offen nt lds")
            A(f"s_add_u32 s{soff}, s{soff}, {step}")
        return issue
    p1 = [(vDM, S_W, sT2, sLD, L_R2 + t * 1024, 8192, "q") for t in range(8)]
    p1 += [(vDM + 1, S_WO, sT3, sCNT, L_WO + i * 4096, 65536, "o") for i in range(16)]
    p1 += [(vDM + 2, S_X, sT1, sLD, L_R3 + k * 1024, 128 if k % 2 == 0 else 2048 - 128, "k") for k in range(8)]
    if skip: p1 = [x for x in p1 if x[-1] not in skip]
    tdone = 0
    LAG = max(DK) + 1
    n = 0
    def q_progress(landed):
        nonlocal tdone
        while tdone < 8 and 2 + tdone <= landed:
            qpart(tdone); tdone += 1
            if tdone == 8:
                A(f"s_lshl_b32 s{sT0}, s3, 11"); A(f"s_add_u32 s{sT0}, s{sT0}, {L_EX}")
                A(f"v_lshl_add_u32 v4, v{vL}, 4, s{sT0}")
                A(f"ds_write_b128 v4, {vr(vD)}")
                A(f"ds_write_b128 v4, {vr(vD+4)} offset:1024")
                A("s_waitcnt lgkmcnt(0)")
                A("s_barrier")
                stamp(1)
    for p, d in enumerate(p1):
        go = dma(*d)
        dd = DP[p % len(DP)]
        A(f"s_waitcnt vmcnt({dd})"); go()
        q_progress(10 + p - 1 - dd)
    if tdone < 8:
        A("s_waitcnt vmcnt(0)"); q_progress(100)
    def tickK():
        nonlocal n
        A(f"s_waitcnt vmcnt({DK[n % len(DK)]})"); loadK(ring_reg(n)); n += 1
    srd(S_X, 18, 1 << 25)
    assert X >= LAG
    for _ in range(X): tickK()
    stamp(2)
    A("s_barrier")
    stamp(3)
    A(f"v_and_b32 v4, 3, v{vJ}")
    A(f"v_lshl_add_u32 v4, v{vG}, 2, v4")
    A(f"v_lshlrev_b32 v4, 4, v4")
    A(f"v_add_u32 v4, {L_QL}, v4")
    A(f"ds_read_b128 {vr(vBB)}, v4")
    tickK()
    for m in range(4): smask(sM + 2 * m, 0x000F000F000F000F << (4 * m))
    A("s_waitcnt lgkmcnt(0)")
    for m in range(4):
        for rr in range(4):
            A(f"v_cndmask_b32 v{QB[m]+rr}, 0, v{vBB+rr}, s[{sM+2*m}:{sM+2*m+1}]")
    side = []
    vTR = 82
    def side_tr_addr():
        A(f"v_bfe_u32 v4, v{vJ}, 1, 1"); A("v_lshlrev_b32 v4, 7, v4")
        A(f"v_lshrrev_b32 v5, 2, v{vJ}"); A("v_lshl_add_u32 v4, v5, 3, v4")
        A(f"v_lshl_add_u32 v4, v{vG}, 1, v4"); A("v_lshlrev_b32 v4, 7, v4")
        A(f"v_and_b32 v5, 1, v{vJ}"); A("v_lshl_add_u32 v4, v5, 3, v4")
        A(f"s_lshl_b32 s{sT0}, s3, 5"); A(f"v_add_u32 v{vTR}, s{sT0}, v4")
    side.append(side_tr_addr)
    def wofrag(P, t, ch): return 64 + 4 * ((P * 4 + t) * 2 + ch)
    def mk_tr(P, t):
        def f():
            for ch in range(2):
                for a in range(2):
                    A(f"ds_read_b64_tr_b16 {ar(wofrag(P,t,ch)+2*a,2)}, v{vTR} offset:{L_WO + (P*256+32*t+a)*128 + ch*16}")
        return f
    for P in range(2):
        for t in range(4): side.append(mk_tr(P, t))
    rc = 0
    pend = []
    while n < 32:
        assert rc >= n - 15, (rc, n)
        tickK()
        old = list(pend); pend.clear()
        budget = 4
        while budget > 0 and rc <= n - 1 - LAG:
            g = rc // 4
            if rc % 4 == 0 and any(d == vD + 4 * (g & 1) for d, _ in old + pend):
                for po in old + pend: post(*po)
                old = []; pend.clear()
            qk(ring_reg(rc), rc % 4, vD + 4 * (g & 1))
            if rc % 4 == 3: pend.append((vD + 4 * (g & 1), g * 64))
            rc += 1; budget -= 1
        for po in old: post(*po)
        if budget >= 3 and side: side.pop(0)()
    assert rc == n - LAG and not side, (rc, n, len(side))
    assert len(pend) == (1 if (n - 1 - LAG) % 4 == 3 else 0)
    A(f"v_add_u32 v{vAS}, {(n // 4 - 3) * 64}, v{vAS}")
    A(f"s_mov_b32 s{sCNT}, {(256 - n) // 16}")
    A.label("L_kloop")
    for i in range(16):
        A(f"s_waitcnt vmcnt({DK[i % len(DK)]})"); loadK(ring_reg(i))
        c = i - LAG
        qk(ring_reg(c), c % 4, vD + 4 * ((c // 4) & 1))
        if (c - 1) % 4 == 3: post(vD + 4 * (((c - 1) // 4) & 1), ((c - 1) // 4 + 3) * 64)
    A(f"v_add_u32 v{vAS}, 256, v{vAS}")
    A(f"s_sub_u32 s{sCNT}, s{sCNT}, 1"); A(f"s_cmp_lg_u32 s{sCNT}, 0"); A("s_cbranch_scc1 L_kloop")
    stamp(4)
    lab = A.newlabel("L_r2"); ok = A.newlabel("L_r2_ok")
    A(f"v_mov_b32 v4, {L_WOF}")
    A(f"s_mov_b32 s{sSPIN}, {spin}")
    A.label(lab)
    A("ds_read_b32 v5, v4")
    A("s_waitcnt lgkmcnt(0)")
    A(f"v_readfirstlane_b32 s{sT0}, v5")
    A(f"s_cmp_eq_u32 s{sT0}, 1"); A(f"s_cbranch_scc1 {ok}")
    spin_tail(lab, 4)
    A.label(ok)
    LAGV = max(DV) + 1
    n = 0
    extra = [] if "k" in skip else [(vVB, S_X, sKB, sLD, L_R2 + k * 1024, 256 if k % 2 == 0 else 2048 - 256, "k") for k in range(8)]
    nt = 0
    last_dma_tick = [len(extra) - 1]
    def tickT():
        nonlocal n, nt
        dd = min(DV[nt % len(DV)], max(DK))
        if extra:
            go = dma(*extra.pop(0)); A(f"s_waitcnt vmcnt({dd})"); go()
        else:
            A(f"s_waitcnt vmcnt({dd})"); loadV(ring_reg(n)); n += 1
        nt += 1
    for i in range(LAG + 1):
        tickT()
        assert n <= 16 - LAG + i or True
        c = i - LAG
        if c < 0: qk(ring_reg(c), c % 4, vD + 4 * ((c // 4) & 1))
        if (c - 1) % 4 == 3: post(vD + 4 * (((c - 1) // 4) & 1), ((c - 1) // 4 + 3) * 64)
    vS = 64
    vNM, vLS = 80, 81
    A(f"s_lshl_b32 s{sT0}, s3, 12"); A(f"s_add_u32 s{sT0}, s{sT0}, {L_SC}")
    A(f"v_lshl_add_u32 v4, v{vL}, 4, s{sT0}")
    for i in range(4): A(f"ds_read_b128 {vr(vS+4*i)}, v4 offset:{i*1024}")
    allreduce(vMAX, vT, "v_max_f32", [4, 8])
    A(f"v_mul_f32 v{vMAX}, s{sC}, v{vMAX}")
    A(f"v_sub_f32 v{vNM}, 0, v{vMAX}")
    for r in range(8): A(f"v_mov_b32 v{vACC+r}, 0")
    tickT()
    A("s_waitcnt lgkmcnt(0)")
    for i in range(4):
        for r in range(4): A(f"v_fma_f32 v{vS+4*i+r}, v{vS+4*i+r}, s{sC}, v{vNM}")
        for r in range(4): A(f"v_exp_f32 v{vS+4*i+r}, v{vS+4*i+r}")
        A(f"v_add_f32 v5, v{vS+4*i}, v{vS+4*i+1}"); A(f"v_add_f32 v6, v{vS+4*i+2}, v{vS+4*i+3}")
        A(f"v_add_f32 v5, v5, v6")
        A(f"v_mov_b32 v{vLS}, v5" if i == 0 else f"v_add_f32 v{vLS}, v{vLS}, v5")
        for r in range(4): A(f"v_cvt_pk_bf16_f32 v{vS+4*i+r}, v{vS+4*i+r}, v{vS+4*i+r}")
        A(f"ds_write_b128 v4, {vr(vS+4*i)} offset:{i*1024}")
        tickT()
    A(f"ds_read2_b32 {vr(vPP,2)}, v{vAP} offset0:0 offset1:8")
    assert not extra
    def pv(reg, c, poff):
        beta, u = (c % 4) >> 1, c & 1
        pp = vPP + 2 * ((c // 4) & 1)
        if c % 4 == 0:
            A("s_waitcnt lgkmcnt(0)")
            A(f"ds_read2_b32 {vr(vPP + 2 * ((c // 4 + 1) & 1), 2)}, v{vAP} offset0:{poff//4} offset1:{poff//4+8}")
        if u == 0:
            for rr in range(4): A(f"v_and_b32 v{vBB+4*beta+rr}, v{pp+beta}, v{vMSK+rr}")
        A(f"v_mfma_f32_16x16x32_bf16 {vr(vACC+4*u)}, {reg}, {vr(vBB+4*beta)}, {vr(vACC+4*u)}")
    def side_stats():
        allreduce(vLS, vT, "v_add_f32", [1, 2, 4, 8])
        A(f"v_min_u32 v6, -2, v{vMAX}"); A(f"v_min_u32 v7, -2, v{vLS}")
        A(f"s_lshl_b32 s{sT0}, s3, 3"); A(f"s_add_u32 s{sT0}, s{sT0}, {L_ST}")
        A(f"v_mov_b32 v4, s{sT0}")
        A("ds_write_b64 v4, v[6:7]")
    vFW, vFR, vWA, vRO, vGO, vPO = 83, 84, 85, 86, 87, 88
    sREC, sGA, sGB, sP2, sP3, sOUT = 96, 97, 98, 99, 100, 101
    def side_tail1():
        A(f"s_lshl_b32 s{sT0}, s3, 11"); A(f"s_add_u32 s{sT0}, s{sT0}, {L_EX}")
        A(f"v_lshl_add_u32 v{vFW}, v{vL}, 4, s{sT0}")
        A(f"v_and_b32 v4, 1, v{vL}"); A("v_mul_u32_u24 v4, 40, v4")
        A(f"v_lshrrev_b32 v5, 3, v{vL}"); A("v_add_u32 v4, v4, v5"); A("v_lshlrev_b32 v4, 4, v4")
        A(f"v_bfe_u32 v6, v{vL}, 1, 2"); A("v_lshl_add_u32 v4, v6, 11, v4")
        A(f"s_lshr_b32 s{sT0}, s3, 1"); A(f"s_lshl_b32 s{sT0}, s{sT0}, 10")
        A(f"s_and_b32 s{sT1}, s3, 1"); A(f"s_lshl_b32 s{sT1}, s{sT1}, 8")
        A(f"s_add_u32 s{sT0}, s{sT0}, s{sT1}"); A(f"s_add_u32 s{sT0}, s{sT0}, {L_EX}")
        A(f"v_add_u32 v{vFR}, s{sT0}, v4")
        A(f"v_lshlrev_b32 v{vWA}, 2, v6"); A(f"v_add_u32 v{vWA}, {L_WGT}, v{vWA}")
        A(f"v_lshlrev_b32 v{vRO}, 3, v5")
    def side_tail2():
        A(f"s_lshl_b32 s{sREC}, s{sH}, 2"); A(f"s_add_u32 s{sREC}, s{sREC}, s{sB}"); A(f"s_lshl_b32 s{sREC}, s{sREC}, 1")
        A(f"s_add_u32 s{sREC}, s{sREC}, s{sS}"); A(f"s_lshl_b32 s{sREC}, s{sREC}, 8")
        A(f"s_lshl_b32 s{sT0}, s3, 6"); A(f"s_add_u32 s{sREC}, s{sREC}, s{sT0}"); A(f"s_add_u32 s{sREC}, s{sREC}, {REC}")
        A(f"v_bfe_u32 v4, v{vJ}, 1, 1"); A(f"v_lshlrev_b32 v{vGO}, 11, v4")
        A(f"v_lshrrev_b32 v4, 2, v{vJ}"); A(f"v_lshl_add_u32 v{vGO}, v4, 9, v{vGO}")
        A(f"v_and_b32 v4, 1, v{vJ}"); A(f"v_lshl_add_u32 v{vGO}, v4, 8, v{vGO}")
        A(f"v_lshl_add_u32 v{vGO}, v{vG}, 4, v{vGO}")
        A(f"s_lshr_b32 s{sT0}, s2, 7"); A(f"s_lshl_b32 s{sGA}, s{sT0}, 16")
        A(f"s_lshl_b32 s{sT1}, s{sKS}, 13"); A(f"s_add_u32 s{sGA}, s{sGA}, s{sT1}"); A(f"s_add_u32 s{sGA}, s{sGA}, {REC}")
        A(f"s_add_u32 s{sGB}, s{sGA}, 4096")
    def side_tail3():
        A(f"v_lshlrev_b32 v{vPO}, 8, v{vG}"); A(f"v_lshl_add_u32 v{vPO}, v{vJ}, 2, v{vPO}")
        A(f"s_lshl_b32 s{sP3}, s{sH1}, 13"); A(f"s_add_u32 s{sP3}, s{sP3}, {P2}")
        A(f"s_lshl_b32 s{sT0}, s{sKS}, 10"); A(f"s_add_u32 s{sP2}, s{sP3}, s{sT0}")
        A(f"s_lshl_b32 s{sT0}, s3, 6"); A(f"s_add_u32 s{sP2}, s{sP2}, s{sT0}")
        A(f"s_lshl_b32 s{sT0}, s{sKS}, 5"); A(f"s_add_u32 s{sP3}, s{sP3}, s{sT0}")
        A(f"s_lshl_b32 s{sOUT}, s{sH1}, 7"); A(f"s_lshl_b32 s{sT0}, s{sKS}, 4"); A(f"s_add_u32 s{sOUT}, s{sOUT}, s{sT0}")
        for k in range(8): A(f"s_mov_b64 s[{sM+2*k}:{sM+2*k+1}], -1")
        A(f"v_and_b32 v4, 7, v{vL}"); A("v_lshlrev_b32 v8, 10, v4")
        A(f"v_lshl_add_u32 v8, v{vG}, 8, v8")
        A(f"v_bfe_u32 v5, v{vL}, 3, 1"); A("v_lshl_add_u32 v8, v5, 4, v8")
        A(f"v_lshlrev_b32 v9, 12, v{vG}"); A("v_lshl_add_u32 v9, v5, 3, v9")
    side = [side_tail1, side_tail2, side_tail3, side_stats]
    rc = 0
    while n < 16 or (n % 16) or side or rc != n - LAGV:
        assert rc >= n - 15, (rc, n)
        tickT()
        budget = 4
        while budget > 0 and rc <= n - 1 - LAGV:
            pv(ring_reg(rc), rc, (rc // 4 + 1) * 64); rc += 1; budget -= 1
        if budget >= 3 and side and (side[0] is not side_stats or rc > 0): side.pop(0)()
    stamp(5)
    def vloop(name, iters, Dw, lag):
        A(f"s_mov_b32 s{sCNT}, {iters}")
        A.label(name)
        for i in range(16):
            A(f"s_waitcnt vmcnt({Dw[i % len(Dw)]})"); loadV(ring_reg(i))
            c = i - lag
            pv(ring_reg(c), c, (c // 4 + 1 + 4) * 64)
        A(f"v_add_u32 v{vAP}, 256, v{vAP}")
        A(f"s_sub_u32 s{sCNT}, s{sCNT}, 1"); A(f"s_cmp_lg_u32 s{sCNT}, 0"); A(f"s_cbranch_scc1 {name}")
    A(f"v_add_u32 v{vAP}, {(n // 4 - 4) * 64}, v{vAP}")
    tot = (256 - n) // 16
    lag = LAGV
    if NE == 0:
        vloop("L_vloop", tot, DV, LAGV)
    else:
        LAGE = max(DE) + 1
        assert LAGE >= LAGV and LAGE <= 15
        vloop("L_vloop", tot - NE, DV, LAGV)
        rcc = -LAGV
        for i in range(16):
            A(f"s_waitcnt vmcnt({DE[i % len(DE)]})"); loadV(ring_reg(i))
            if rcc <= i - LAGE:
                pv(ring_reg(rcc), rcc, (rcc // 4 + 1 + 4) * 64); rcc += 1
        assert rcc == 16 - LAGE
        A(f"v_add_u32 v{vAP}, 256, v{vAP}")
        if NE > 1: vloop("L_vloop2", NE - 1, DE, LAGE)
        lag = LAGE
    for i in range(lag):
        A(f"s_waitcnt vmcnt({lag - 1 - i})")
        c = i - lag
        pv(ring_reg(c), c, (c // 4 + 1 + 4) * 64)
    stamp(6)
    A(f"ds_write_b128 v{vFW}, {vr(vACC)}")
    A(f"ds_write_b128 v{vFW}, {vr(vACC+4)} offset:1024")
    smask(sE, 0x0101010101010101)
    A("s_waitcnt lgkmcnt(0)")
    A("s_barrier")
    A(f"ds_read_b128 v[4:7], v{vFR}")
    A(f"ds_read_b32 v{vT}, v{vWA}")
    A("s_waitcnt lgkmcnt(0)")
    for r in range(4): A(f"v_mul_f32 v{4+r}, v{4+r}, v{vT}")
    for mode in ("quad_perm:[1,0,3,2]", "quad_perm:[2,3,0,1]", "row_half_mirror"):
        for r in range(4): A(f"v_add_f32_dpp v{4+r}, v{4+r}, v{4+r} {mode} {FULL}")
    A("v_cvt_pk_bf16_f32 v4, v4, v5"); A("v_cvt_pk_bf16_f32 v5, v6, v7")
    A("v_min_u32 v4, -2, v4"); A("v_min_u32 v5, -2, v5")
    A(f"s_mov_b64 exec, s[{sE}:{sE+1}]")
    A(f"buffer_store_dwordx2 v[4:5], v{vRO}, {sr(S_WS)}, s{sREC} offen sc1")
    A("s_mov_b64 exec, -1")
    stamp(7)
    vGA = 96
    A(f"s_mov_b32 s{sSPIN}, {spin}")
    A.label("L_gather")
    for k in range(8):
        P, t = k >> 2, k & 3
        sk = A.newlabel("L_gs")
        A(f"s_mov_b64 exec, s[{sM+2*k}:{sM+2*k+1}]")
        A(f"s_cbranch_execz {sk}")
        A(f"buffer_load_dwordx4 {vr(vGA+4*k)}, v{vGO}, {sr(S_WS)}, s{sGB if P else sGA} offen offset:{t*64} sc1")
        A.label(sk)
    A("s_mov_b64 exec, -1")
    A("s_waitcnt vmcnt(0)")
    for k in range(8):
        b = vGA + 4 * k
        A(f"v_max3_u32 v{4+(k&1)}, v{b}, v{b+1}, v{b+2}"); A(f"v_max_u32 v{4+(k&1)}, v{4+(k&1)}, v{b+3}")
        A(f"v_cmp_eq_u32 s[{sM+2*k}:{sM+2*k+1}], -1, v{4+(k&1)}")
    A(f"s_or_b64 s[{sE}:{sE+1}], s[{sM}:{sM+1}], s[{sM+2}:{sM+3}]")
    for k in range(2, 8): A(f"s_or_b64 s[{sE}:{sE+1}], s[{sE}:{sE+1}], s[{sM+2*k}:{sM+2*k+1}]")
    A("s_cbranch_scc0 L_gdone")
    spin_tail("L_gather", tsleep)
    A.label("L_gdone")
    stamp(8)
    for k in range(8):
        P, t = k >> 2, k & 3
        for ch in range(2):
            A(f"v_mfma_f32_16x16x32_bf16 {vr(vD+4*ch)}, {vr(vGA+4*k)}, {ar(wofrag(P,t,ch))}, {'0' if k == 0 else vr(vD+4*ch)}")
    A(f"v_add_f32 v4, v{vD}, v{vD+1}"); A(f"v_add_f32 v5, v{vD+2}, v{vD+3}")
    A(f"v_add_f32 v6, v{vD+4}, v{vD+5}"); A(f"v_add_f32 v7, v{vD+6}, v{vD+7}")
    A(f"v_add_f32_dpp v4, v5, v4 row_ror:8 row_mask:0xf bank_mask:0x3")
    A(f"v_add_f32_dpp v4, v6, v7 row_ror:8 row_mask:0xf bank_mask:0xc")
    A("v_min_u32 v4, -2, v4")
    A(f"buffer_store_dword v4, v{vPO}, {sr(S_WS)}, s{sP2} offen sc1")
    stamp(9)
    A("s_cmp_lg_u32 s3, 0")
    A("s_cbranch_scc1 L_end")
    A(f"s_mov_b32 s{sSPIN}, {spin}")
    A.label("L_s3")
    A(f"buffer_load_dwordx4 v[12:15], v8, {sr(S_WS)}, s{sP3} offen sc1")
    A("s_waitcnt vmcnt(0)")
    A("v_max3_u32 v10, v12, v13, v14"); A("v_max_u32 v10, v10, v15")
    A(f"v_cmp_eq_u32 s[{sE}:{sE+1}], -1, v10")
    A(f"s_cmp_eq_u64 s[{sE}:{sE+1}], 0"); A("s_cbranch_scc1 L_s3done")
    spin_tail("L_s3", tsleep)
    A.label("L_s3done")
    for mode in ("quad_perm:[1,0,3,2]", "quad_perm:[2,3,0,1]", "row_half_mirror"):
        for r in range(4): A(f"v_add_f32_dpp v{12+r}, v{12+r}, v{12+r} {mode} {FULL}")
    A("v_cvt_pk_bf16_f32 v12, v12, v13"); A("v_cvt_pk_bf16_f32 v13, v14, v15")
    smask(sE, 0x0101010101010101)
    A(f"s_mov_b64 exec, s[{sE}:{sE+1}]")
    A(f"buffer_store_dwordx2 v[12:13], v9, {sr(S_O)}, s{sOUT} offen")
    A("s_mov_b64 exec, -1")
    stamp(10)
    A("s_endpgm")

    A.label("L_helper")
    in_helper[0] = True
    S_DBG = S_O
    hO1, hO2, hO3 = 21, 22, 23
    A(f"v_lshlrev_b32 v{hO1}, 4, v{vL}")
    A("s_waitcnt lgkmcnt(0)")
    srd(S_WS, 28, WS_BYTES); srd(S_DBG, 26, 256); srd(S_X, 14, 8192)
    stamp(0)
    A("s_cmp_lg_u32 s2, 0"); A("s_cbranch_scc1 L_noinit")
    for r in range(4): A(f"v_mov_b32 v{4+r}, 0")
    A(f"s_mov_b32 s{sT0}, {FLG1}"); A(f"s_mov_b32 s{sT1}, {FLG2}")
    for i in range(8):
        A(f"buffer_store_dwordx4 v[4:7], v{hO1}, {sr(S_WS)}, s{sT1 if i >= 4 else sT0} offen offset:{(i&3)*1024} sc1")
    A("v_mov_b32 v5, 1")
    A("s_waitcnt vmcnt(0)")
    A("s_mov_b64 exec, 1")
    A(f"buffer_store_dword v5, v4, {sr(S_DBG)}, 0 offen sc1")
    A("s_mov_b64 exec, -1")
    A.label("L_noinit")
    for r in range(4): A(f"v_mov_b32 v{4+r}, -1")
    A(f"s_lshl_b32 s{sT0}, s2, 11"); A(f"s_add_u32 s{sT0}, s{sT0}, {SENT}")
    A(f"buffer_store_dwordx4 v[4:7], v{hO1}, {sr(S_WS)}, s{sT0} offen sc1")
    A(f"buffer_store_dwordx4 v[4:7], v{hO1}, {sr(S_WS)}, s{sT0} offen offset:1024 sc1")
    A(f"v_mov_b32 v{hO2}, {L_ST}")
    A(f"ds_write_b128 v{hO2}, v[4:7]"); A(f"ds_write_b128 v{hO2}, v[4:7] offset:16"); A(f"ds_write_b128 v{hO2}, v[4:7] offset:{L_WOF - L_ST}")
    hX = 26
    A(f"v_lshrrev_b32 v20, 3, v{vJ}"); A("v_lshlrev_b32 v20, 11, v20"); A(f"v_lshl_add_u32 v20, v{vG}, 6, v20")
    A(f"s_lshl_b32 s{sT0}, s{sKS}, 8"); A(f"s_add_u32 s{sT1}, s{sT0}, 4096")
    for q in range(2):
        for i in range(4):
            A(f"buffer_load_dwordx4 {vr(hX+16*q+4*i)}, v20, {sr(S_X)}, s{sT1 if q else sT0} offen offset:{i*16}")
    build_sel()
    A(f"v_lshrrev_b32 v4, 3, v{vJ}"); A(f"v_lshlrev_b32 v{hO2}, 9, v4")
    A(f"v_lshl_add_u32 v{hO2}, v{vG}, 7, v{hO2}")
    A(f"v_and_b32 v4, 7, v{vJ}"); A(f"v_lshl_add_u32 v{hO2}, v4, 4, v{hO2}")
    A(f"v_add_u32 v{hO3}, {L_EX}, v{hO1}")
    sFL = 66
    A(f"s_lshl_b32 s{sFL}, s{sH1}, 7"); A(f"s_lshl_b32 s{sT0}, s{sKS}, 2"); A(f"s_add_u32 s{sFL}, s{sFL}, s{sT0}")
    A(f"s_add_u32 s{sFL}, s{sFL}, {FLG1}")
    hQW, hQG, hFP = 24, 25, 20
    A(f"v_lshrrev_b32 v4, 5, v{vL}"); A(f"v_and_b32 v5, 31, v{vL}")
    A(f"v_lshlrev_b32 v{hQG}, 11, v4"); A(f"v_lshl_add_u32 v{hQG}, v5, 4, v{hQG}")
    A("v_lshrrev_b32 v7, 3, v5"); A(f"v_lshlrev_b32 v{hQW}, 6, v7")
    A("v_and_b32 v7, 7, v5"); A(f"v_lshl_add_u32 v{hQW}, v7, 1, v{hQW}")
    A(f"v_lshlrev_b32 v{hFP}, 2, v7")
    A("v_mov_b32 v4, 1"); A("v_mov_b32 v5, 0")
    A(f"v_add_u32 v7, {L_QL}, v{hQW}")
    A(f"s_lshl_b32 s{sT0}, s2, 11")
    A(f"s_lshl_b32 s{sT2}, s{sH}, 7"); A(f"s_add_u32 s{sT2}, s{sT2}, {FLG1}")
    A(f"s_lshl_b32 s{sT3}, s{sH}, 14"); A(f"s_lshl_b32 s{sT1}, s{sB}, 9"); A(f"s_add_u32 s{sT3}, s{sT3}, s{sT1}")
    A(f"s_mov_b32 s{sSPIN}, {spin}")
    A("s_waitcnt lgkmcnt(0)")
    A("s_barrier")
    stamp(1)
    for q in range(2):
        for v in range(4): A(f"ds_read_b128 {vr(64+16*q+4*v)}, v{hO3} offset:{v*2048+q*1024}")
    A("s_waitcnt lgkmcnt(0)")
    for q in range(2):
        b = 64 + 16 * q
        for r in range(4):
            A(f"v_add_f32 v{b+r}, v{b+r}, v{b+4+r}"); A(f"v_add_f32 v{b+8+r}, v{b+8+r}, v{b+12+r}")
        for r in range(4): A(f"v_add_f32 v{b+r}, v{b+r}, v{b+8+r}")
        A(f"buffer_store_dwordx4 {vr(b)}, v{hO2}, {sr(S_WS)}, s{sT0} offen offset:{q*1024} sc1")
    A.label("L_pi")
    A(f"buffer_load_dword v6, v5, {sr(S_DBG)}, 0 offen sc1")
    A("s_waitcnt vmcnt(0)")
    A(f"v_readfirstlane_b32 s{sT1}, v6")
    A(f"s_cmp_eq_u32 s{sT1}, 1"); A("s_cbranch_scc1 L_pi_ok")
    spin_tail("L_pi", qsleep)
    A.label("L_pi_ok")
    A("s_mov_b64 exec, 1")
    A(f"buffer_store_dword v4, v5, {sr(S_WS)}, s{sFL} offen sc1")
    A("s_mov_b64 exec, -1")
    stamp(2)
    A(f"s_mov_b32 s{sSPIN}, {spin}")
    A.label("L_pq")
    A(f"buffer_load_dword v6, v{hFP}, {sr(S_WS)}, s{sT2} offen sc1")
    A("s_waitcnt vmcnt(0)")
    A(f"v_cmp_ne_u32 s[{sE}:{sE+1}], 1, v6")
    A(f"s_cmp_eq_u64 s[{sE}:{sE+1}], 0"); A("s_cbranch_scc1 L_pq_ok")
    spin_tail("L_pq", qsleep)
    A.label("L_pq_ok")
    stamp(3)
    for i in range(4):
        A(f"buffer_load_dwordx4 {vr(64+4*i)}, v{hQG}, {sr(S_WS)}, s{sT3} offen sc1")
        if i < 3: A(f"s_add_u32 s{sT3}, s{sT3}, 4096")
    A("s_waitcnt vmcnt(0)")
    for r in range(4):
        A(f"v_add_f32 v{64+r}, v{64+r}, v{68+r}"); A(f"v_add_f32 v{72+r}, v{72+r}, v{76+r}")
    for r in range(4): A(f"v_add_f32 v{64+r}, v{64+r}, v{72+r}")
    for r in range(4): A(f"v_mov_b32 v{68+r}, v{64+r}")
    for r in range(4): A(f"v_permlane32_swap_b32 v{68+r}, v{64+r}")
    for r in range(4): A(f"v_add_f32 v{64+r}, v{64+r}, v{68+r}")
    def write_b16(addr, b, off):
        A(f"v_cvt_pk_bf16_f32 v{b}, v{b}, v{b+1}"); A(f"v_cvt_pk_bf16_f32 v{b+2}, v{b+2}, v{b+3}")
        A(f"ds_write_b16 v{addr}, v{b} offset:{off}"); A(f"ds_write_b16_d16_hi v{addr}, v{b} offset:{off+16}")
        A(f"ds_write_b16 v{addr}, v{b+2} offset:{off+32}"); A(f"ds_write_b16_d16_hi v{addr}, v{b+2} offset:{off+48}")
    write_b16(7, 64, 0)
    hR = 23
    A(f"v_add_u32 v{hR}, {L_R2}, v{hO1}")
    A("s_waitcnt lgkmcnt(0)")
    stamp(4)
    A("s_barrier")
    def lds_frags(off):
        for k in range(32):
            A(f"ds_read_b128 {ar(4*k)}, v{hR} offset:{off + k*1024}")
            if k % 8 == 7: A("s_waitcnt lgkmcnt(0)")
    lds_frags(0)
    A(f"v_mov_b32 v4, {L_WOF}"); A("v_mov_b32 v5, 1"); A("ds_write_b32 v4, v5")
    hB, hD = 64, 72
    for t in range(32):
        for q in range(2):
            b = hB + 4 * q
            x = hX + 16 * q + (t >> 1)
            for rr in range(4): A(f"v_perm_b32 v{b+rr}, v{x}, v{x}, v{vSEL+2*rr+(t&1)}")
            A(f"v_mfma_f32_16x16x32_bf16 {vr(hD+4*q)}, {ar(4*t)}, {vr(b)}, {'0' if t == 0 else vr(hD+4*q)}")
    A(f"s_lshl_b32 s{sT0}, s2, 11"); A(f"s_add_u32 s{sT0}, s{sT0}, {QP_B}")
    for q in range(2):
        A(f"buffer_store_dwordx4 {vr(hD+4*q)}, v{hO2}, {sr(S_WS)}, s{sT0} offen offset:{q*1024} sc1")
    A("v_mov_b32 v4, 1"); A("v_mov_b32 v5, 0")
    A(f"s_add_u32 s{sFL}, s{sFL}, {FLG2 - FLG1}")
    A("s_waitcnt vmcnt(0)")
    A("s_mov_b64 exec, 1")
    A(f"buffer_store_dword v4, v5, {sr(S_WS)}, s{sFL} offen sc1")
    A("s_mov_b64 exec, -1")
    stamp(5)
    lds_frags(L_R3 - L_R2)
    sPB, sSB = 96, 97
    A(f"s_lshr_b32 s{sPB}, s2, 4"); A(f"s_and_b32 s{sSB}, s2, 15")
    A(f"v_and_b32 v4, 3, v{vL}"); A("v_lshlrev_b32 v5, 3, v4"); A(f"v_add_u32 v5, {L_ST}, v5")
    A(f"s_mov_b32 s{sSPIN}, {spin}")
    hm, hl = 58, 59
    A.label("L_st")
    A(f"ds_read_b64 {vr(hm,2)}, v5")
    A("s_waitcnt lgkmcnt(0)")
    A(f"v_max_u32 v6, v{hm}, v{hl}")
    A(f"v_cmp_eq_u32 s[{sE}:{sE+1}], -1, v6")
    A(f"s_cmp_eq_u64 s[{sE}:{sE+1}], 0"); A("s_cbranch_scc1 L_st_ok")
    spin_tail("L_st", hsleep)
    A.label("L_st_ok")
    stamp(6)
    A(f"v_lshrrev_b32 v4, 1, v{vL}"); A("v_lshlrev_b32 v4, 7, v4")
    A(f"v_and_b32 v5, 1, v{vL}"); A("v_lshl_add_u32 v4, v5, 4, v4")
    A(f"s_mov_b32 s{sSPIN}, {spin}"); A(f"s_mov_b32 s{sT1}, {FLG2}")
    A.label("L_pa")
    A(f"buffer_load_dwordx4 v[64:67], v4, {sr(S_WS)}, s{sT1} offen sc1")
    A("s_waitcnt vmcnt(0)")
    A("v_and_b32 v5, v64, v65"); A("v_and_b32 v6, v66, v67"); A("v_and_b32 v5, v5, v6")
    A(f"v_cmp_ne_u32 s[{sE}:{sE+1}], 1, v5")
    A(f"s_cmp_eq_u64 s[{sE}:{sE+1}], 0"); A("s_cbranch_scc1 L_pa_ok")
    spin_tail("L_pa", hsleep)
    A.label("L_pa_ok")
    hMW, hLW, hZ = 60, 61, 20
    A(f"v_mov_b32 v{hMW}, v{hm}")
    for mode in ("quad_perm:[1,0,3,2]", "quad_perm:[2,3,0,1]"): A(f"v_max_f32_dpp v{hMW}, v{hMW}, v{hMW} {mode} {FULL}")
    A(f"v_sub_f32 v6, v{hm}, v{hMW}"); A("v_exp_f32 v6, v6"); A(f"v_mul_f32 v{hLW}, v6, v{hl}")
    for mode in ("quad_perm:[1,0,3,2]", "quad_perm:[2,3,0,1]"): A(f"v_add_f32_dpp v{hLW}, v{hLW}, v{hLW} {mode} {FULL}")
    A(f"v_min_u32 v6, -2, v{hMW}"); A(f"v_min_u32 v7, -2, v{hLW}")
    A(f"v_mov_b32 v{hZ}, 0")
    A(f"s_lshl_b32 s{sT0}, s2, 3"); A(f"s_add_u32 s{sT0}, s{sT0}, {AST}")
    A("s_mov_b64 exec, 1")
    A(f"buffer_store_dwordx2 v[6:7], v{hZ}, {sr(S_WS)}, s{sT0} offen sc1")
    A("s_mov_b64 exec, -1")
    stamp(7)
    A(f"v_lshrrev_b32 v4, 5, v{vL}"); A(f"v_and_b32 v5, 31, v{vL}")
    A("v_lshlrev_b32 v26, 14, v4"); A("v_lshl_add_u32 v26, v5, 4, v26")
    A(f"v_lshl_add_u32 v27, v4, 8, v{hQW}"); A(f"v_add_u32 v27, {L_QBL}, v27")
    A(f"s_and_b32 s{sT0}, s{sPB}, 3"); A(f"s_lshl_b32 s{sT0}, s{sT0}, 17")
    A(f"s_lshr_b32 s{sT1}, s{sPB}, 2"); A(f"s_lshl_b32 s{sT1}, s{sT1}, 9")
    A(f"s_add_u32 s{sT0}, s{sT0}, s{sT1}"); A(f"s_add_u32 s{sT0}, s{sT0}, {QP_B}")
    for hp2 in range(4):
        for ks in range(8):
            if ks % 2 == 0: A("s_waitcnt vmcnt(0)")
            if "g" not in skip: A(f"buffer_load_dwordx4 {vr(64+4*ks)}, v26, {sr(S_WS)}, s{sT0} offen offset:{(ks&1)*2048} {gfl}")
            if ks & 1: A(f"s_add_u32 s{sT0}, s{sT0}, {4096 if ks < 7 else 4096 + 16384}")
        A("s_waitcnt vmcnt(0)")
        for st in (16, 8, 4):
            for r in range(st): A(f"v_add_f32 v{64+r}, v{64+r}, v{64+st+r}")
        write_b16(27, 64, hp2 * 512)
    hETA = 28
    A(f"v_bfe_u32 v4, v{vJ}, 1, 2"); A(f"v_lshrrev_b32 v5, 3, v{vJ}"); A(f"v_lshl_add_u32 v{hETA}, v4, 1, v5")
    A(f"v_lshlrev_b32 v4, 8, v{hETA}"); A(f"v_lshl_add_u32 v4, v{vG}, 5, v4")
    A(f"v_and_b32 v5, 1, v{vJ}"); A("v_lshl_add_u32 v4, v5, 4, v4"); A(f"v_add_u32 v4, {L_QBL}, v4")
    hQ = 30
    A(f"ds_read_b128 {vr(hQ)}, v4"); A(f"ds_read_b128 {vr(hQ+4)}, v4 offset:128")
    A("s_waitcnt lgkmcnt(0)")
    hS = 64
    hDD = 38
    def postB(g8):
        d = hDD + 4 * (g8 & 1)
        for r2 in range(2):
            A(f"v_mov_b32_dpp v{hS+2*g8+r2}, v{d+2*r2} quad_perm:[0,0,2,2] {FULL}")
            A(f"v_add_f32_dpp v{hS+2*g8+r2}, v{d+2*r2+1}, v{hS+2*g8+r2} quad_perm:[1,1,3,3] {FULL}")
    for g8 in range(16):
        d = hDD + 4 * (g8 & 1)
        A(f"v_mfma_f32_16x16x32_bf16 {vr(d)}, {ar(8*g8)}, {vr(hQ)}, 0")
        A(f"v_mfma_f32_16x16x32_bf16 {vr(d)}, {ar(8*g8+4)}, {vr(hQ+4)}, {vr(d)}")
        if g8 > 0: postB(g8 - 1)
    postB(15)
    lds_frags(0)
    hM, hL, hNM = 46, 47, 48
    A(f"v_max_f32 v{hM}, v{hS}, v{hS+1}")
    for k in range(2, 32, 2): A(f"v_max3_f32 v{hM}, v{hM}, v{hS+k}, v{hS+k+1}")
    allreduce(hM, 4, "v_max_f32", [])
    A(f"v_mul_f32 v{hM}, s{sC}, v{hM}"); A(f"v_sub_f32 v{hNM}, 0, v{hM}")
    for k in range(32): A(f"v_fma_f32 v{hS+k}, v{hS+k}, s{sC}, v{hNM}")
    for k in range(32): A(f"v_exp_f32 v{hS+k}, v{hS+k}")
    A(f"v_add_f32 v{hL}, v{hS}, v{hS+1}")
    for k in range(2, 32): A(f"v_add_f32 v{hL}, v{hL}, v{hS+k}")
    allreduce(hL, 4, "v_add_f32", [])
    for k in range(32): A(f"v_cvt_pk_bf16_f32 v{hS+k}, v{hS+k}, v{hS+k}")
    hOB = 96
    hBB = 50
    cnt = 0
    for k in range(32):
        for q in range(4):
            b = hBB + 4 * (cnt & 1); cnt += 1
            for rr in range(4):
                if q == rr: A(f"v_and_b32 v{b+rr}, v{hS+k}, v{vMSK+rr}")
                elif q > rr: A(f"v_and_b32_dpp v{b+rr}, v{hS+k}, v{vMSK+rr} row_shl:{2*(q-rr)} {FULL} bound_ctrl:0")
                else: A(f"v_and_b32_dpp v{b+rr}, v{hS+k}, v{vMSK+rr} row_shr:{2*(rr-q)} {FULL} bound_ctrl:0")
            A(f"v_mfma_f32_16x16x32_bf16 {vr(hOB+4*q)}, {ar(4*k)}, {vr(b)}, {'0' if k == 0 else vr(hOB+4*q)}")
    A(f"s_lshl_b32 s{sT0}, s2, 12"); A(f"s_add_u32 s{sT0}, s{sT0}, {BP}")
    for q in range(4):
        if "b" not in skip: A(f"buffer_store_dwordx4 {vr(hOB+4*q)}, v{hO2}, {sr(S_WS)}, s{sT0} offen offset:{q*1024} sc1")
    A(f"v_min_u32 v{hM}, -2, v{hM}"); A(f"v_min_u32 v{hL}, -2, v{hL}")
    A(f"v_lshlrev_b32 v4, 7, v{hETA}")
    A(f"s_lshl_b32 s{sT0}, s{sPB}, 10"); A(f"s_lshl_b32 s{sT1}, s{sSB}, 3"); A(f"s_add_u32 s{sT0}, s{sT0}, s{sT1}")
    A(f"s_add_u32 s{sT0}, s{sT0}, {BST}")
    A("s_waitcnt vmcnt(0)")
    A("s_mov_b64 exec, 0x5555")
    if "s" not in skip: A(f"buffer_store_dwordx2 {vr(hM,2)}, v4, {sr(S_WS)}, s{sT0} offen sc1")
    A("s_mov_b64 exec, -1")
    stamp(8)
    A(f"s_xor_b32 s{sT0}, s2, 1"); A(f"s_lshl_b32 s{sT0}, s{sT0}, 3"); A(f"s_add_u32 s{sT0}, s{sT0}, {AST}")
    A(f"s_mov_b32 s{sSPIN}, {spin}")
    A.label("L_ps")
    A(f"buffer_load_dwordx2 v[36:37], v{hZ}, {sr(S_WS)}, s{sT0} offen sc1")
    A("s_waitcnt vmcnt(0)")
    A("v_max_u32 v6, v36, v37")
    A(f"v_cmp_eq_u32 s[{sE}:{sE+1}], -1, v6")
    A(f"s_cmp_eq_u64 s[{sE}:{sE+1}], 0"); A("s_cbranch_scc1 L_ps_ok")
    spin_tail("L_ps", hsleep)
    A.label("L_ps_ok")
    A(f"v_max_f32 v4, v{hMW}, v36")
    A(f"v_sub_f32 v5, v{hMW}, v4"); A("v_sub_f32 v6, v36, v4"); A(f"v_sub_f32 v7, v{hm}, v4")
    A("v_exp_f32 v5, v5"); A("v_exp_f32 v6, v6"); A("v_exp_f32 v7, v7")
    A(f"v_mul_f32 v5, v5, v{hLW}"); A("v_fmac_f32 v5, v6, v37")
    A("v_rcp_f32 v5, v5"); A("v_mul_f32 v7, v7, v5")
    A(f"v_and_b32 v4, 3, v{vL}"); A("v_lshlrev_b32 v4, 2, v4"); A(f"v_add_u32 v4, {L_WGT}, v4")
    A("ds_write_b32 v4, v7")
    stamp(9)
    A(f"s_lshr_b32 s{sT2}, s2, 1")
    A(f"s_lshl_b32 s{sT0}, s{sT2}, 7"); A(f"s_add_u32 s{sT0}, s{sT0}, {BST}")
    A(f"v_lshlrev_b32 v4, 3, v{vJ}")
    A(f"s_mov_b32 s{sSPIN}, {1 if 's' in skip else spin}")
    A.label("L_l2")
    A(f"s_sleep {hsleep}")
    A(f"buffer_load_dwordx2 v[36:37], v4, {sr(S_WS)}, s{sT0} offen sc1")
    A("s_waitcnt vmcnt(0)")
    A("v_max_u32 v6, v36, v37")
    A(f"v_cmp_eq_u32 s[{sE}:{sE+1}], -1, v6")
    A(f"s_cmp_eq_u64 s[{sE}:{sE+1}], 0"); A("s_cbranch_scc1 L_l2_ok")
    spin_tail("L_l2", hsleep)
    A.label("L_l2_ok")
    A(f"v_lshlrev_b32 v5, 12, v{vJ}"); A(f"v_lshl_add_u32 v5, v{vG}, 4, v5")
    A(f"s_lshr_b32 s{sT0}, s{sT2}, 3"); A(f"s_lshl_b32 s{sT0}, s{sT0}, 16")
    A(f"s_and_b32 s{sT1}, s2, 15"); A(f"s_lshl_b32 s{sT1}, s{sT1}, 8")
    A(f"s_add_u32 s{sT0}, s{sT0}, s{sT1}"); A(f"s_add_u32 s{sT0}, s{sT0}, {BP}")
    for i in range(4):
        if "b" not in skip: A(f"buffer_load_dwordx4 {vr(64+4*i)}, v5, {sr(S_WS)}, s{sT0} offen offset:{i*64} sc1")
    A("v_mov_b32 v6, v36")
    for r in (8, 4, 2, 1): A(f"v_max_f32_dpp v6, v6, v6 row_ror:{r} {FULL}")
    A("v_sub_f32 v6, v36, v6"); A("v_exp_f32 v6, v6"); A("v_mul_f32 v7, v6, v37")
    for r in (8, 4, 2, 1): A(f"v_add_f32_dpp v7, v7, v7 row_ror:{r} {FULL}")
    A("v_rcp_f32 v7, v7"); A("v_mul_f32 v6, v6, v7")
    A("s_waitcnt vmcnt(0)")
    for r in range(16): A(f"v_mul_f32 v{64+r}, v{64+r}, v6")
    for rot in (8, 4, 2, 1):
        for r in range(16): A(f"v_add_f32_dpp v{64+r}, v{64+r}, v{64+r} row_ror:{rot} {FULL}")
    smask(sE, 0x0001000100010001)
    for i in range(4):
        A(f"v_cvt_pk_bf16_f32 v{80+2*i}, v{64+4*i}, v{65+4*i}"); A(f"v_cvt_pk_bf16_f32 v{81+2*i}, v{66+4*i}, v{67+4*i}")
    for r in range(8):
        A(f"v_min_u32 v{80+r}, -2, v{80+r}"); A(f"v_cndmask_b32 v{80+r}, 0, v{80+r}, s[{sE}:{sE+1}]")
    A(f"v_and_b32 v4, 1, v{vJ}"); A(f"v_xor_b32 v4, s{sS}, v4"); A("v_lshlrev_b32 v4, 7, v4"); A(f"v_lshl_add_u32 v4, v{vG}, 3, v4")
    A(f"s_lshl_b32 s{sT0}, s{sH}, 2"); A(f"s_add_u32 s{sT0}, s{sT0}, s{sB}"); A(f"s_lshl_b32 s{sT0}, s{sT0}, 1")
    A(f"s_add_u32 s{sT0}, s{sT0}, s{sS}"); A(f"s_lshl_b32 s{sT0}, s{sT0}, 8"); A(f"s_add_u32 s{sT0}, s{sT0}, {REC + 65536}")
    smask(sE, 0x0003000300030003)
    A(f"s_mov_b64 exec, s[{sE}:{sE+1}]")
    for i in range(4): A(f"buffer_store_dwordx2 {vr(80+2*i,2)}, v4, {sr(S_WS)}, s{sT0} offen offset:{i*32} sc1")
    A("s_mov_b64 exec, -1")
    stamp(10); stamp(11)
    A("s_waitcnt vmcnt(0) lgkmcnt(0)")
    A.label("L_end")
    A("s_endpgm")

    nn = A.fix_hazards()
    out = HEADER
    out += f"; @launch grid=(256,1,1) block=(320,1,1) lds={LDS_BYTES}\n"
    out += '.amdgcn_target "amdgcn-amd-amdhsa--gfx950"\n.text\n'
    out += f".globl {NAME}_kernel\n.p2align 8\n.type {NAME}_kernel,@function\n{NAME}_kernel:\n"
    out += A.text()
    out += '.section .rodata,"a"\n.p2align 6\n'
    out += f".amdhsa_kernel {NAME}_kernel\n"
    out += "  .amdhsa_next_free_vgpr 256\n  .amdhsa_next_free_sgpr 102\n  .amdhsa_accum_offset 128\n"
    out += "  .amdhsa_group_segment_fixed_size 0\n  .amdhsa_kernarg_size 104\n  .amdhsa_user_sgpr_count 2\n"
    out += "  .amdhsa_user_sgpr_kernarg_segment_ptr 1\n  .amdhsa_system_sgpr_workgroup_id_x 1\n"
    out += "  .amdhsa_float_denorm_mode_32 3\n"
    out += ".end_amdhsa_kernel\n"
    return out

if __name__ == "__main__":
    import json
    kw = json.loads(sys.argv[2]) if len(sys.argv) > 2 else {}
    open(sys.argv[1], "w").write(gen(**kw))
```

```python
import sys, struct, math
sys.path.insert(0, "dev")
from asmlib import Asm
NAME = "concat_heads__mha_block_cached__sliding_block_cached__decode"

HEADER = """; Kernarg layout for this problem (104 bytes, ptrs only, base s[0:1]):
"""

QP_A = 0x000000
QP_B = 0x080000
BP   = 0x100000
FLG  = 0x180000
CNT  = 0x188000
BLK  = 0x200000
BS   = 2944
O_QB2, O_BST, O_AST, O_REC, O_P2 = 0, 128, 256, 384, 896
TS   = 0x400000
WS_BYTES = 0x800000
L_WO  = 0
L_R2  = 0x10000
L_R3  = 0x18000
L_SC  = 0x20000
L_EX  = 0x24000
L_QL  = 0x26000
L_QBL = 0x26100
L_ST  = 0x26200
L_WGT = 0x26220
L_PRG = 0x26240
LDS_BYTES = 0x26300
FULL = "row_mask:0xf bank_mask:0xf"
SCALE = (128 ** -0.5) * math.log2(math.e)
def f32bits(x): return struct.unpack("<I", struct.pack("<f", x))[0]

def gen(TRN=2, preBP=False, pfl="sc1", sfl="sc1", gsleep=2, s3sleep=6, PIPE=1, ORD="seq", TLB=0, prof3=False, CS=384, MS=(4, 8, 11, 13), TAU=None, SMPMASK=15, SMPVAL=5, LV=(4, 5, 6), THR=(0.6, 0.85), NG=32, PER=2, csleep=4, LASTM=13, bfl="sc1", qfl="sc1", l2sleep=16, prof2=False, G=1, osc1="", DP0=8, DP=(6,), DK=(4,), DV=(4,), DE=None, NE=0, X=12, prof=False, spin=1 << 16, hsleep=16, psleep=100, tsleep=1, qsleep=4, skip="", gfl="sc1", diag=None):
    tup = lambda x: (x,) if isinstance(x, int) else tuple(x)
    DP, DK, DV = tup(DP), tup(DK), tup(DV)
    DE = DV if DE is None else tup(DE)
    A = Asm()
    in_helper = [False]
    def srd(base, ptr, size):
        A(f"s_mov_b32 s{base}, s{ptr}"); A(f"s_mov_b32 s{base+1}, s{ptr+1}")
        A(f"s_mov_b32 s{base+2}, {hex(size)}"); A(f"s_mov_b32 s{base+3}, 0x00020000")
    def smask(r, val):
        A(f"s_mov_b32 s{r}, {hex(val & 0xffffffff)}"); A(f"s_mov_b32 s{r+1}, {hex(val >> 32)}")
    S_K, S_V, S_X, S_W, S_WS, S_O, S_WO = 32, 36, 40, 44, 48, 52, 56
    sr = lambda b: f"s[{b}:{b+3}]"
    vr = lambda b, n=4: f"v[{b}:{b+n-1}]"
    ar = lambda b, n=4: f"a[{b}:{b+n-1}]"
    sT0, sT1, sT2, sT3, sCNT, sOFFK, sOFFV, sC, sSPIN, sLD = 60, 61, 62, 63, 64, 65, 66, 67, 68, 69
    sM = 70
    sE = 86
    sTS = 88
    sTI = 90
    sH1, sKS, sB, sH, sS = 91, 92, 93, 94, 95
    sKB = 30
    vL, vG, vJ = 1, 2, 3
    def stamp(idx):
        if diag and not in_helper[0]:
            wg, sidx, base, mul = diag
            if idx == sidx:
                A("s_memrealtime s[4:5]"); A("s_waitcnt lgkmcnt(0)"); A("s_sub_u32 s90, s4, s88"); A(f"s_mul_i32 s90, s90, {mul}")
            if idx == 10:
                if sidx < 0: A("s_mov_b32 s90, 0")
                if wg >= 0:
                    A(f"s_cmp_lg_u32 s2, {wg}"); A("s_cbranch_scc1 L_end")
                A(f"s_add_u32 s90, s90, {base*100}")
                A.label("L_diag")
                A("s_memrealtime s[4:5]"); A("s_waitcnt lgkmcnt(0)"); A("s_sub_u32 s4, s4, s88")
                A("s_cmp_lt_u32 s4, s90"); A("s_cbranch_scc1 L_diag")
        if not prof: return
        A(f"s_memrealtime s[{sTS}:{sTS+1}]")
        A("s_waitcnt lgkmcnt(0)")
        A(f"v_mov_b32 v63, s{sTS}")
        A(f"s_mov_b64 exec, 1")
        A(f"buffer_store_dword v63, v62, {sr(S_WS)}, s{sTI} offen offset:{idx*4}")
        A(f"s_mov_b64 exec, -1")
    def lstamp():
        if not prof2: return
        A(f"s_memrealtime s[{sTS}:{sTS+1}]")
        A("s_waitcnt lgkmcnt(0)")
        A(f"s_mov_b32 m0, s31")
        A(f"v_writelane_b32 v63, s{sTS}, m0")
        A("s_add_u32 s31, s31, 1")
    def spin_tail(lab, sl):
        A(f"s_sleep {sl}")
        A(f"s_sub_u32 s{sSPIN}, s{sSPIN}, 1"); A(f"s_cmp_lg_u32 s{sSPIN}, 0"); A(f"s_cbranch_scc1 {lab}")
    def allreduce(v, tmp, op, rors):
        for r in rors: A(f"{op}_dpp v{v}, v{v}, v{v} row_ror:{r} {FULL}")
        A(f"v_mov_b32 v{tmp}, v{v}"); A(f"v_permlane16_swap_b32 v{tmp}, v{v}"); A(f"{op} v{v}, v{v}, v{tmp}")
        A(f"v_mov_b32 v{tmp}, v{v}"); A(f"v_permlane32_swap_b32 v{tmp}, v{v}"); A(f"{op} v{v}, v{v}, v{tmp}")

    A(f"s_cmp_ge_u32 s2, 256")
    A("s_cbranch_scc1 L_end")
    A("s_load_dwordx16 s[4:19], s[0:1], 0")
    A("s_load_dwordx8 s[20:27], s[0:1], 64")
    A("s_load_dwordx2 s[28:29], s[0:1], 96")
    A(f"v_lshrrev_b32 v4, 6, v0")
    A(f"v_and_b32 v{vL}, 63, v0")
    A(f"v_readfirstlane_b32 s3, v4")
    A(f"v_lshrrev_b32 v{vG}, 4, v{vL}")
    A(f"v_and_b32 v{vJ}, 15, v{vL}")
    A(f"s_lshr_b32 s{sH1}, s2, 3")
    A(f"s_and_b32 s{sKS}, s2, 7")
    A(f"s_lshr_b32 s{sB}, s2, 6")
    A(f"s_bfe_u32 s{sH}, s2, 0x50001")
    A(f"s_and_b32 s{sS}, s2, 1")
    A(f"s_mov_b32 s{sC}, {hex(f32bits(SCALE))}")
    if prof:
        A(f"s_mul_i32 s{sTI}, s2, 5"); A(f"s_add_u32 s{sTI}, s{sTI}, s3"); A(f"s_lshl_b32 s{sTI}, s{sTI}, 6")
        A(f"s_add_u32 s{sTI}, s{sTI}, {TS}"); A("v_mov_b32 v62, 0")
    vSEL, vMSK = 8, 16
    def build_sel():
        for rr in range(4): smask(sM + 2 * rr, 0x0303030303030303 << (2 * rr))
        smask(sE, 0xAAAAAAAAAAAAAAAA)
        A("v_mov_b32 v4, 0x0c0c0100"); A("v_mov_b32 v5, 0x01000c0c")
        A(f"v_cndmask_b32 v6, v4, v5, s[{sE}:{sE+1}]")
        A("v_mov_b32 v4, 0x0c0c0302"); A("v_mov_b32 v5, 0x03020c0c")
        A(f"v_cndmask_b32 v7, v4, v5, s[{sE}:{sE+1}]")
        A("v_mov_b32 v4, 0x0c0c0c0c")
        for rr in range(4):
            A(f"v_cndmask_b32 v{vSEL+2*rr}, v4, v6, s[{sM+2*rr}:{sM+2*rr+1}]")
            A(f"v_cndmask_b32 v{vSEL+2*rr+1}, v4, v7, s[{sM+2*rr}:{sM+2*rr+1}]")
        A("v_mov_b32 v4, 0x0000ffff"); A("v_mov_b32 v5, 0xffff0000")
        A(f"v_cndmask_b32 v6, v4, v5, s[{sE}:{sE+1}]")
        for rr in range(4):
            A(f"v_cndmask_b32 v{vMSK+rr}, 0, v6, s[{sM+2*rr}:{sM+2*rr+1}]")
    A("s_cmp_eq_u32 s3, 4")
    A("s_cbranch_scc1 L_helper")

    vOK, vOV, vAS, vAP, vMAX, vT = 20, 21, 22, 23, 24, 25
    vX = 26
    vBB = 34
    vD = 42
    QB = [8, 12, 26, 30]
    vPP = 58
    vACC = 50
    vSL = 89
    vDM = 64
    vXB = 90
    A("s_setprio 1")
    if prof2:
        A("s_mov_b32 s31, 0"); A("v_mov_b32 v63, 0"); lstamp()
    if diag: A("s_memrealtime s[88:89]")
    A(f"v_lshrrev_b32 v4, 3, v{vJ}")
    A(f"v_lshlrev_b32 v5, 11, v4")
    A(f"v_lshl_add_u32 v5, v{vG}, 4, v5")
    A(f"v_lshlrev_b32 v{vDM+3}, 16, v{vG}")
    A(f"v_lshl_add_u32 v{vDM+3}, v{vJ}, 4, v{vDM+3}")
    A(f"s_lshl_b32 s{sT0}, s{sKS}, 8"); A(f"s_lshl_b32 s{sT1}, s3, 6"); A(f"s_add_u32 s{sT0}, s{sT0}, s{sT1}")
    A(f"s_add_u32 s{sT1}, s{sT0}, 4096")
    A(f"s_lshl_b32 s{sT2}, s{sT0}, 12")
    A(f"s_lshl_b32 s{sT3}, s{sH1}, 8"); A(f"s_add_u32 s{sT2}, s{sT2}, s{sT3}")
    A("s_waitcnt lgkmcnt(0)")
    srd(S_X, 4, 8192); srd(S_W, 10, 1 << 23); srd(S_K, 14, 8192)
    A(f"buffer_load_dwordx4 {vr(vX)}, v5, {sr(S_X)}, s{sT0} offen")
    A(f"buffer_load_dwordx4 {vr(vX+4)}, v5, {sr(S_X)}, s{sT1} offen")
    A(f"buffer_load_dwordx4 {vr(vXB)}, v5, {sr(S_K)}, s{sT0} offen")
    A(f"buffer_load_dwordx4 {vr(vXB+4)}, v5, {sr(S_K)}, s{sT1} offen")
    for t in range(8):
        A(f"buffer_load_dwordx4 {ar(4*t)}, v{vDM+3}, {sr(S_W)}, s{sT2} offen nt")
        A(f"s_add_u32 s{sT2}, s{sT2}, {8192 if t < 7 else -7 * 8192}")
    srd(S_K, 6, 1 << 28); srd(S_V, 8, 1 << 28); srd(S_WS, 28, WS_BYTES)
    srd(S_W, 20, 1 << 23)
    srd(S_X, 16, 1 << 25)
    srd(S_O, 18, 1 << 25)
    A(f"s_cmp_ge_u32 s2, 128")
    A(f"s_cselect_b32 s{S_WO}, s22, s12"); A(f"s_cselect_b32 s{S_WO+1}, s23, s13")
    A(f"s_mov_b32 s{S_WO+2}, {hex(1 << 23)}"); A(f"s_mov_b32 s{S_WO+3}, 0x00020000")
    stamp(0)
    A(f"v_lshrrev_b32 v7, 2, v{vJ}")
    A(f"v_lshlrev_b32 v{vOK}, 8, v7")
    A(f"v_lshl_add_u32 v{vOK}, v{vG}, 6, v{vOK}")
    A(f"v_and_b32 v5, 3, v{vJ}")
    A(f"v_lshl_add_u32 v{vOK}, v5, 4, v{vOK}")
    A(f"v_lshl_add_u32 v6, v{vG}, 1, v4")
    A(f"v_lshlrev_b32 v{vOV}, 8, v6")
    A(f"v_and_b32 v5, 7, v{vJ}")
    A(f"v_lshl_add_u32 v{vOV}, v5, 4, v{vOV}")
    A(f"v_lshlrev_b32 v{vDM+1}, 11, v{vG}"); A(f"v_lshl_add_u32 v{vDM+1}, v{vJ}, 4, v{vDM+1}")
    A(f"s_lshl_b32 s{sOFFK}, s2, 20"); A(f"s_lshl_b32 s{sT0}, s3, 12"); A(f"s_add_u32 s{sOFFK}, s{sOFFK}, s{sT0}")
    A(f"s_mov_b32 s{sOFFV}, s{sOFFK}")
    A(f"s_add_u32 s{sT0}, s{sT0}, {L_SC}")
    A(f"v_lshl_add_u32 v{vAS}, v7, 2, v{vG}")
    A(f"v_lshl_add_u32 v{vAS}, v{vAS}, 2, s{sT0}")
    A(f"v_lshl_add_u32 v{vAP}, v6, 2, s{sT0}")
    A(f"v_lshl_add_u32 v{vSL}, v{vL}, 4, s{sT0}")
    A(f"v_mov_b32 v{vMAX}, 0xff800000")
    A(f"v_lshrrev_b32 v4, 1, v{vJ}"); A(f"v_lshlrev_b32 v{vDM+2}, 8, v4")
    A(f"v_lshl_add_u32 v{vDM+2}, v{vG}, 5, v{vDM+2}")
    A(f"v_and_b32 v4, 1, v{vJ}"); A(f"v_lshl_add_u32 v{vDM+2}, v4, 4, v{vDM+2}")
    A(f"v_lshlrev_b32 v{vDM}, 9, v{vG}"); A(f"v_lshl_add_u32 v{vDM}, v{vJ}, 4, v{vDM}")
    A(f"s_lshr_b32 s{sKB}, s2, 4"); A(f"s_lshl_b32 s{sKB}, s{sKB}, 21")
    A(f"s_and_b32 s{sT0}, s2, 15"); A(f"s_lshl_b32 s{sT0}, s{sT0}, 15"); A(f"s_add_u32 s{sKB}, s{sKB}, s{sT0}")
    A(f"s_lshl_b32 s{sLD}, s3, 13"); A(f"s_add_u32 s{sKB}, s{sKB}, s{sLD}"); A(f"s_add_u32 s{sKB}, s{sKB}, {6144 * 256}")
    A(f"s_and_b32 s{sT3}, s2, 15"); A(f"s_lshl_b32 s{sT3}, s{sT3}, 19"); A(f"s_bfe_u32 s{sT0}, s2, 0x30004"); A(f"s_lshl_b32 s{sT0}, s{sT0}, 8")
    A(f"s_add_u32 s{sT3}, s{sT3}, s{sT0}"); A(f"s_add_u32 s{sT3}, s{sT3}, s{sLD}")
    A(f"s_lshl_b32 s{sCNT}, s3, 10")
    A(f"s_mov_b32 s{sT1}, s{sKB}")
    build_sel()

    def ring_reg(n): return ar(4 * (n % 16))
    kcnt = [0]; vcnt = [0]
    def loadK(reg):
        m = kcnt[0] % 4; kcnt[0] += 1
        A(f"buffer_load_dwordx4 {reg}, v{vOK}, {sr(S_K)}, s{sOFFK} offen offset:{m*1024} nt")
        if m == 3: A(f"s_add_u32 s{sOFFK}, s{sOFFK}, 16384")
    def loadV(reg):
        m = vcnt[0] % 4; vcnt[0] += 1
        A(f"buffer_load_dwordx4 {reg}, v{vOV}, {sr(S_V)}, s{sOFFV} offen offset:{(m>>1)*2048+(m&1)*128} nt")
        if m == 3: A(f"s_add_u32 s{sOFFV}, s{sOFFV}, 16384")
    def qk(reg, m, d):
        A(f"v_mfma_f32_16x16x32_bf16 {vr(d)}, {reg}, {vr(QB[m])}, {'0' if m == 0 else vr(d)}")
    def post(d, off):
        A(f"v_mov_b32_dpp v{vT}, v{d} quad_perm:[0,0,0,0] {FULL}")
        for r in range(1, 4):
            A(f"v_add_f32_dpp v{vT}, v{d+r}, v{vT} quad_perm:[{r},{r},{r},{r}] {FULL}")
        A(f"v_max_f32 v{vMAX}, v{vMAX}, v{vT}")
        A(f"ds_write_b32 v{vAS}, v{vT} offset:{off}")
    def qpart(t):
        x0, d0, tt = (vX, vD, t) if t < 8 else (vXB, vACC, t - 8)
        for q in range(2):
            b = vBB + 4 * q
            for rr in range(4):
                A(f"v_perm_b32 v{b+rr}, v{x0+4*q+(tt>>1)}, v{x0+4*q+(tt>>1)}, v{vSEL+2*rr+(tt&1)}")
            A(f"v_mfma_f32_16x16x32_bf16 {vr(d0+4*q)}, {ar(4*t)}, {vr(b)}, {'0' if tt == 0 else vr(d0+4*q)}")
    def dma(voff, srdb, soff, m0base, m0imm, step, tag):
        if m0base is None:
            def issue():
                A(f"buffer_load_dwordx4 {ar(m0imm)}, v{voff}, {sr(srdb)}, s{soff} offen nt")
                A(f"s_add_u32 s{soff}, s{soff}, {step}")
            return issue
        A(f"s_add_u32 m0, s{m0base}, {m0imm}")
        def issue():
            A(f"buffer_load_dwordx4 v{voff}, {sr(srdb)}, s{soff} offen nt lds")
            A(f"s_add_u32 s{soff}, s{soff}, {step}")
        return issue
    p1 = [(vDM + 3, S_W, sT2, None, 32 + 4 * t, 8192, "q") for t in range(8)]
    p1 += [(vDM + 2, S_X, sT1, sLD, L_R3 + k * 1024, 128 if k % 2 == 0 else 2048 - 128, "k") for k in range(8)]
    p1 += [(vDM, S_O, sKB, sLD, L_R2 + k * 1024, 256 if k % 2 == 0 else 2048 - 256, "k") for k in range(8)]
    p1 += [(vDM + 1, S_WO, sT3, sCNT, L_WO + i * 4096, 32768, "o") for i in range(16)]
    if ORD == "mix":
        kb, vb, wo = p1[8:16], p1[16:24], p1[24:40]
        p1 = p1[:8]
        for i in range(8): p1 += [kb[i], wo[2 * i], vb[i], wo[2 * i + 1]]
    elif ORD == "mix2":
        kb, vb, wo = p1[8:16], p1[16:24], p1[24:40]
        p1 = p1[:8]
        for i in range(4): p1 += [kb[2*i], kb[2*i+1], wo[4*i], wo[4*i+1], vb[2*i], vb[2*i+1], wo[4*i+2], wo[4*i+3]]
    elif ORD == "wofirst":
        p1 = p1[:8] + p1[24:40] + p1[8:24]
    tdone = 0
    LAG = max(DK) + 1
    n = 0
    def q_progress(landed):
        nonlocal tdone
        while tdone < 16 and 4 + tdone <= landed:
            qpart(tdone); tdone += 1
            if tdone == 16:
                for i, r in enumerate((vD, vD + 4, vACC, vACC + 4)): A(f"ds_write_b128 v{vSL}, {vr(r)} offset:{i*1024}")
                A("s_waitcnt lgkmcnt(0)")
                A("s_barrier")
                stamp(1)
    for p, d in enumerate(p1):
        go = dma(*d)
        dd = DP0 if p < 8 else DP[p % len(DP)]
        A(f"s_waitcnt vmcnt({dd})"); go()
        if prof3 and p % 4 == 3: lstamp()
        q_progress(12 + p - 1 - dd)
    assert tdone == 16
    def tickK():
        nonlocal n
        A(f"s_waitcnt vmcnt({DK[n % len(DK)]})"); loadK(ring_reg(n)); n += 1
        if prof3 and n % 4 == 0: lstamp()
    srd(S_O, 24, 16384)
    assert X >= LAG
    for _ in range(X): tickK()
    stamp(2)
    lstamp()
    A("s_barrier")
    lstamp()
    stamp(3)
    A(f"v_and_b32 v4, 3, v{vJ}")
    A(f"v_lshl_add_u32 v4, v{vG}, 2, v4")
    A(f"v_lshlrev_b32 v4, 4, v4")
    A(f"v_add_u32 v4, {L_QL}, v4")
    A(f"ds_read_b128 {vr(vBB)}, v4")
    tickK()
    for m in range(4): smask(sM + 2 * m, 0x000F000F000F000F << (4 * m))
    A("s_waitcnt lgkmcnt(0)")
    for m in range(4):
        for rr in range(4):
            A(f"v_cndmask_b32 v{QB[m]+rr}, 0, v{vBB+rr}, s[{sM+2*m}:{sM+2*m+1}]")
    side = []
    vTR = 82
    def side_tr_addr():
        A(f"v_bfe_u32 v4, v{vJ}, 1, 1"); A("v_lshlrev_b32 v4, 7, v4")
        A(f"v_lshrrev_b32 v5, 2, v{vJ}"); A("v_lshl_add_u32 v4, v5, 3, v4")
        A(f"v_lshl_add_u32 v4, v{vG}, 1, v4"); A("v_lshlrev_b32 v4, 8, v4")
        A(f"v_and_b32 v5, 1, v{vJ}"); A("v_lshl_add_u32 v4, v5, 3, v4")
        A(f"s_lshl_b32 s{sT0}, s3, 6"); A(f"v_add_u32 v{vTR}, s{sT0}, v4")
    side.append(side_tr_addr)
    def wofrag(t, ch): return 64 + 4 * (t * 4 + ch)
    def mk_tr(lst):
        def f():
            for t, ch, a in lst:
                A(f"ds_read_b64_tr_b16 {ar(wofrag(t,ch)+2*a,2)}, v{vTR} offset:{L_WO + (32*t+a)*256 + ch*16}")
        return f
    trs = [(t, ch, a) for t in range(4) for ch in range(4) for a in range(2)]
    for i in range(0, 32, TRN): side.append(mk_tr(trs[i:i + TRN]))
    rc = 0
    pend = []
    while n < 32 or n % 16 or side:
        assert rc >= n - 15, (rc, n)
        tickK()
        old = list(pend); pend.clear()
        budget = 4
        while budget > 0 and rc <= n - 1 - LAG:
            g = rc // 4
            if rc % 4 == 0 and any(d == vD + 4 * (g & 1) for d, _ in old + pend):
                for po in old + pend: post(*po)
                old = []; pend.clear()
            qk(ring_reg(rc), rc % 4, vD + 4 * (g & 1))
            if rc % 4 == 3: pend.append((vD + 4 * (g & 1), g * 64))
            rc += 1; budget -= 1
        for po in old: post(*po)
        if budget >= 3 and side: side.pop(0)()
    assert rc == n - LAG and not side, (rc, n, len(side))
    assert len(pend) == (1 if (n - 1 - LAG) % 4 == 3 else 0)
    A(f"v_add_u32 v{vAS}, {(n // 4 - 3) * 64}, v{vAS}")
    A(f"s_mov_b32 s{sCNT}, {(256 - n) // 16}")
    A.label("L_kloop")
    lstamp()
    for i0 in range(0, 16, G):
        for i in range(i0, i0 + G):
            A(f"s_waitcnt vmcnt({DK[i % len(DK)]})"); loadK(ring_reg(i))
        for i in range(i0, i0 + G):
            c = i - LAG
            qk(ring_reg(c), c % 4, vD + 4 * ((c // 4) & 1))
            if (c - 1) % 4 == 3: post(vD + 4 * (((c - 1) // 4) & 1), ((c - 1) // 4 + 3) * 64)
    A(f"v_add_u32 v{vAS}, 256, v{vAS}")
    A(f"s_sub_u32 s{sCNT}, s{sCNT}, 1"); A(f"s_cmp_lg_u32 s{sCNT}, 0"); A("s_cbranch_scc1 L_kloop")
    stamp(4)
    LAGV = max(DV) + 1
    if LV: LAGV = max(LV) + 1
    n = 0
    def tickT():
        nonlocal n
        dd = min(DV[n % len(DV)], max(DK))
        A(f"s_waitcnt vmcnt({dd})"); loadV(ring_reg(n)); n += 1
    for i in range(LAG + 1):
        tickT()
        c = i - LAG
        if c < 0: qk(ring_reg(c), c % 4, vD + 4 * ((c // 4) & 1))
        if (c - 1) % 4 == 3: post(vD + 4 * (((c - 1) // 4) & 1), ((c - 1) // 4 + 3) * 64)
    vS = 64
    vNM, vLS = 80, 81
    for i in range(4): A(f"ds_read_b128 {vr(vS+4*i)}, v{vSL} offset:{i*1024}")
    allreduce(vMAX, vT, "v_max_f32", [4, 8])
    A(f"v_mul_f32 v{vMAX}, s{sC}, v{vMAX}")
    A(f"v_sub_f32 v{vNM}, 0, v{vMAX}")
    for r in range(8): A(f"v_mov_b32 v{vACC+r}, 0")
    tickT()
    A("s_waitcnt lgkmcnt(0)")
    for i in range(4):
        for r in range(4): A(f"v_fma_f32 v{vS+4*i+r}, v{vS+4*i+r}, s{sC}, v{vNM}")
        for r in range(4): A(f"v_exp_f32 v{vS+4*i+r}, v{vS+4*i+r}")
        A(f"v_add_f32 v5, v{vS+4*i}, v{vS+4*i+1}"); A(f"v_add_f32 v6, v{vS+4*i+2}, v{vS+4*i+3}")
        A(f"v_add_f32 v5, v5, v6")
        A(f"v_mov_b32 v{vLS}, v5" if i == 0 else f"v_add_f32 v{vLS}, v{vLS}, v5")
        for r in range(4): A(f"v_cvt_pk_bf16_f32 v{vS+4*i+r}, v{vS+4*i+r}, v{vS+4*i+r}")
        A(f"ds_write_b128 v{vSL}, {vr(vS+4*i)} offset:{i*1024}")
        if i % 2 == 1: tickT()
    A(f"ds_read2_b32 {vr(vPP,2)}, v{vAP} offset0:0 offset1:8")
    def pv(reg, c, poff):
        beta, u = (c % 4) >> 1, c & 1
        pp = vPP + 2 * ((c // 4) & 1)
        if c % 4 == 0:
            A("s_waitcnt lgkmcnt(0)")
            A(f"ds_read2_b32 {vr(vPP + 2 * ((c // 4 + 1) & 1), 2)}, v{vAP} offset0:{poff//4} offset1:{poff//4+8}")
        if u == 0:
            for rr in range(4): A(f"v_and_b32 v{vBB+4*beta+rr}, v{pp+beta}, v{vMSK+rr}")
        A(f"v_mfma_f32_16x16x32_bf16 {vr(vACC+4*u)}, {reg}, {vr(vBB+4*beta)}, {vr(vACC+4*u)}")
    def side_stats():
        allreduce(vLS, vT, "v_add_f32", [1, 2, 4, 8])
        A(f"v_min_u32 v6, -2, v{vMAX}"); A(f"v_min_u32 v7, -2, v{vLS}")
        A(f"s_lshl_b32 s{sT0}, s3, 3"); A(f"s_add_u32 s{sT0}, s{sT0}, {L_ST}")
        A(f"v_mov_b32 v4, s{sT0}")
        A("ds_write_b64 v4, v[6:7]")
    vFW, vFR, vWA, vRO, vGO, vPO = 83, 84, 85, 86, 87, 88
    sREC, sGA, sGB, sP2, sP3, sOUT = 96, 97, 98, 99, 100, 101
    def side_tail1():
        A(f"s_lshl_b32 s{sT0}, s3, 11"); A(f"s_add_u32 s{sT0}, s{sT0}, {L_EX}")
        A(f"v_lshl_add_u32 v{vFW}, v{vL}, 4, s{sT0}")
        A(f"v_and_b32 v4, 1, v{vL}"); A("v_mul_u32_u24 v4, 40, v4")
        A(f"v_lshrrev_b32 v5, 3, v{vL}"); A("v_add_u32 v4, v4, v5"); A("v_lshlrev_b32 v4, 4, v4")
        A(f"v_bfe_u32 v6, v{vL}, 1, 2"); A("v_lshl_add_u32 v4, v6, 11, v4")
        A(f"s_lshr_b32 s{sT0}, s3, 1"); A(f"s_lshl_b32 s{sT0}, s{sT0}, 10")
        A(f"s_and_b32 s{sT1}, s3, 1"); A(f"s_lshl_b32 s{sT1}, s{sT1}, 8")
        A(f"s_add_u32 s{sT0}, s{sT0}, s{sT1}"); A(f"s_add_u32 s{sT0}, s{sT0}, {L_EX}")
        A(f"v_add_u32 v{vFR}, s{sT0}, v4")
        A(f"v_lshlrev_b32 v{vWA}, 2, v6"); A(f"v_add_u32 v{vWA}, {L_WGT}, v{vWA}")
        A(f"v_lshlrev_b32 v{vRO}, 3, v5")
    def side_tail2():
        A(f"s_mul_i32 s{sP2}, s2, {BS}"); A(f"s_add_u32 s{sP2}, s{sP2}, {BLK}")
        A(f"s_lshl_b32 s{sT0}, s3, 6"); A(f"s_add_u32 s{sREC}, s{sP2}, s{sT0}")
        A(f"s_lshl_b32 s{sT0}, s3, 9"); A(f"s_add_u32 s{sP2}, s{sP2}, s{sT0}")
        A(f"v_lshrrev_b32 v4, 2, v{vJ}"); A(f"v_lshlrev_b32 v4, 6, v4")
        A(f"v_and_b32 v5, 3, v{vJ}"); A("v_add_u32 v4, v4, v5")
        A(f"v_mul_u32_u24 v{vGO}, {BS}, v4"); A(f"v_lshl_add_u32 v{vGO}, v{vG}, 4, v{vGO}")
        A(f"s_lshr_b32 s{sT0}, s2, 7"); A(f"s_lshl_b32 s{sT0}, s{sT0}, 8")
        A(f"s_and_b32 s{sT1}, s2, 15")
        A(f"s_mul_i32 s{sGA}, s{sT1}, {4 * BS}"); A(f"s_add_u32 s{sGA}, s{sGA}, s{sT0}"); A(f"s_add_u32 s{sGA}, s{sGA}, {BLK + O_REC}")
    def side_tail3():
        A(f"v_lshrrev_b32 v4, 2, v{vJ}"); A(f"v_lshlrev_b32 v{vPO}, 7, v4"); A(f"v_lshl_add_u32 v{vPO}, v{vG}, 5, v{vPO}")
        A(f"v_and_b32 v4, 3, v{vJ}"); A(f"v_lshl_add_u32 v{vPO}, v4, 3, v{vPO}")
        A(f"s_and_b32 s{sT1}, s2, 0xf0"); A(f"s_mul_i32 s{sP3}, s{sT1}, {BS}"); A(f"s_add_u32 s{sP3}, s{sP3}, {BLK + O_P2}")
        A(f"s_and_b32 s{sT1}, s2, 15"); A(f"s_lshl_b32 s{sT0}, s{sT1}, 7"); A(f"s_add_u32 s{sP3}, s{sP3}, s{sT0}")
        A(f"s_lshl_b32 s{sT0}, s3, 4"); A(f"s_add_u32 s{sP3}, s{sP3}, s{sT0}")
        A(f"v_mul_u32_u24 v8, {BS}, v{vJ}"); A(f"v_lshl_add_u32 v8, v{vG}, 5, v8")
        A(f"s_lshr_b32 s{sOUT}, s2, 4"); A(f"s_lshl_b32 s{sOUT}, s{sOUT}, 8")
        A(f"s_lshr_b32 s{sT0}, s{sT1}, 2"); A(f"s_lshl_b32 s{sT0}, s{sT0}, 6"); A(f"s_add_u32 s{sOUT}, s{sOUT}, s{sT0}")
        A(f"s_and_b32 s{sT0}, s{sT1}, 3"); A(f"s_lshl_b32 s{sT0}, s{sT0}, 3"); A(f"s_add_u32 s{sOUT}, s{sOUT}, s{sT0}")
        A(f"s_lshl_b32 s{sT0}, s3, 2"); A(f"s_add_u32 s{sOUT}, s{sOUT}, s{sT0}")
        A(f"v_lshlrev_b32 v9, 12, v{vG}"); A(f"v_lshl_add_u32 v9, v{vJ}, 5, v9")
        smask(sM, 0x0101010101010101); smask(sM + 2, 0x0002000200020002); smask(sM + 4, 0x0003000300030003)
    side = [side_stats, side_tail1, side_tail2, side_tail3]
    rc = 0
    while n < 16 or (n % 16) or side or rc != n - LAGV:
        assert rc >= n - 15, (rc, n)
        tickT()
        budget = 4
        while budget > 0 and rc <= n - 1 - LAGV:
            pv(ring_reg(rc), rc, (rc // 4 + 1) * 64); rc += 1; budget -= 1
        if budget >= 3 and side: side.pop(0)()
    stamp(5)
    def vloop(name, iters, Dw, lag):
        A(f"s_mov_b32 s{sCNT}, {iters}")
        A.label(name)
        lstamp()
        for i0 in range(0, 16, G):
            for i in range(i0, i0 + G):
                A(f"s_waitcnt vmcnt({Dw[i % len(Dw)]})"); loadV(ring_reg(i))
            for i in range(i0, i0 + G):
                c = i - lag
                pv(ring_reg(c), c, (c // 4 + 1 + 4) * 64)
        A(f"v_add_u32 v{vAP}, 256, v{vAP}")
        A(f"s_sub_u32 s{sCNT}, s{sCNT}, 1"); A(f"s_cmp_lg_u32 s{sCNT}, 0"); A(f"s_cbranch_scc1 {name}")
    A(f"v_add_u32 v{vAP}, {(n // 4 - 4) * 64}, v{vAP}")
    tot = (256 - n) // 16
    lag = LAGV
    if LV:
        vPG, vDEC = 90, 91
        A(f"s_lshl_b32 s{sT0}, s3, 2"); A(f"s_add_u32 s{sT0}, s{sT0}, {L_PRG}"); A(f"v_mov_b32 v{vPG}, s{sT0}")
        A(f"v_mov_b32 v92, {L_PRG}")
        A(f"ds_read_b32 v{vDEC}, v92 offset:16")
        A(f"s_mov_b32 s{sCNT}, 0")
        A.label("L_vtop")
        lstamp()
        A("s_waitcnt lgkmcnt(0)")
        A(f"v_readfirstlane_b32 s{sT0}, v{vDEC}")
        A(f"v_mov_b32 v93, s{sCNT}")
        A(f"ds_write_b32 v{vPG}, v93")
        A(f"s_add_u32 s{sCNT}, s{sCNT}, 1")
        for li in range(1, len(LV)):
            A(f"s_cmp_eq_u32 s{sT0}, {li}"); A(f"s_cbranch_scc1 L_vlv{li}")
        for li, dd in enumerate(LV):
            A.label(f"L_vlv{li}")
            for i in range(16):
                A(f"s_waitcnt vmcnt({dd})"); loadV(ring_reg(i))
                c = i - LAGV
                pv(ring_reg(c), c, (c // 4 + 1 + 4) * 64)
                if i == 14: A(f"ds_read_b32 v{vDEC}, v92 offset:16")
            A(f"v_add_u32 v{vAP}, 256, v{vAP}")
            A(f"s_cmp_lt_u32 s{sCNT}, {tot}"); A("s_cbranch_scc1 L_vtop")
            if li < len(LV) - 1: A("s_branch L_vdone")
        A.label("L_vdone")
    elif NE == 0:
        vloop("L_vloop", tot, DV, LAGV)
    else:
        LAGE = max(DE) + 1
        assert LAGE >= LAGV and LAGE <= 15
        vloop("L_vloop", tot - NE, DV, LAGV)
        rcc = -LAGV
        for i in range(16):
            A(f"s_waitcnt vmcnt({DE[i % len(DE)]})"); loadV(ring_reg(i))
            if rcc <= i - LAGE:
                pv(ring_reg(rcc), rcc, (rcc // 4 + 1 + 4) * 64); rcc += 1
        assert rcc == 16 - LAGE
        A(f"v_add_u32 v{vAP}, 256, v{vAP}")
        if NE > 1: vloop("L_vloop2", NE - 1, DE, LAGE)
        lag = LAGE
    for i in range(lag):
        A(f"s_waitcnt vmcnt({lag - 1 - i})")
        c = i - lag
        pv(ring_reg(c), c, (c // 4 + 1 + 4) * 64)
    stamp(6)
    lstamp()
    A(f"ds_write_b128 v{vFW}, {vr(vACC)}")
    A(f"ds_write_b128 v{vFW}, {vr(vACC+4)} offset:1024")
    A(f"s_mov_b32 s{sSPIN}, {spin}")
    A("s_waitcnt lgkmcnt(0)")
    A("s_barrier")
    A(f"ds_read_b128 v[4:7], v{vFR}")
    A(f"ds_read_b32 v{vT}, v{vWA}")
    vGA = 96
    def gpoll():
        for t in range(4):
            A(f"buffer_load_dwordx4 {vr(vGA+4*t)}, v{vGO}, {sr(S_WS)}, s{sGA} offen offset:{t*64} {pfl}")
    A("s_waitcnt lgkmcnt(0)")
    for r in range(4): A(f"v_mul_f32 v{4+r}, v{4+r}, v{vT}")
    for mode in ("quad_perm:[1,0,3,2]", "quad_perm:[2,3,0,1]", "row_half_mirror"):
        for r in range(4): A(f"v_add_f32_dpp v{4+r}, v{4+r}, v{4+r} {mode} {FULL}")
    A("v_cvt_pk_bf16_f32 v4, v4, v5"); A("v_cvt_pk_bf16_f32 v5, v6, v7")
    A("v_min_u32 v4, -2, v4"); A("v_min_u32 v5, -2, v5")
    A(f"s_mov_b64 exec, s[{sM}:{sM+1}]")
    A(f"buffer_store_dwordx2 v[4:5], v{vRO}, {sr(S_WS)}, s{sREC} offen offset:{O_REC} {sfl}")
    A("s_mov_b64 exec, -1")
    stamp(7)
    for _ in range(PIPE - 1):
        gpoll()
        if PIPE > 1: A(f"s_sleep {tsleep}")
    A.label("L_gather")
    if gsleep: A(f"s_sleep {gsleep}")
    gpoll()
    A(f"s_waitcnt vmcnt({4 * (PIPE - 1)})")
    A(f"v_max3_u32 v4, v{vGA}, v{vGA+1}, v{vGA+2}"); A(f"v_max3_u32 v5, v{vGA+3}, v{vGA+4}, v{vGA+5}")
    for k in range(6, 14, 4):
        A(f"v_max3_u32 v4, v4, v{vGA+k}, v{vGA+k+1}"); A(f"v_max3_u32 v5, v5, v{vGA+k+2}, v{vGA+k+3}")
    A(f"v_max3_u32 v4, v4, v{vGA+14}, v{vGA+15}"); A("v_max_u32 v4, v4, v5")
    A(f"v_cmp_eq_u32 s[{sE}:{sE+1}], -1, v4")
    A(f"s_sub_u32 s{sSPIN}, s{sSPIN}, 1"); A("s_cbranch_scc1 L_gdone")
    A(f"s_and_b64 exec, exec, s[{sE}:{sE+1}]")
    A("s_cbranch_scc1 L_gather")
    A.label("L_gdone")
    A("s_mov_b64 exec, -1")
    stamp(8)
    lstamp()
    vO = 112
    for t in range(4):
        for ch in range(4):
            A(f"v_mfma_f32_16x16x32_bf16 {vr(vO+4*ch)}, {vr(vGA+4*t)}, {ar(wofrag(t,ch))}, {'0' if t == 0 else vr(vO+4*ch)}")
    A(f"s_mov_b32 s{sSPIN}, {spin}")
    for c2 in range(2):
        o = vO + 8 * c2
        A(f"v_add_f32 v{4+c2}, v{o}, v{o+1}"); A(f"v_add_f32 v{o+2}, v{o+2}, v{o+3}")
        A(f"v_add_f32 v{o+4}, v{o+4}, v{o+5}"); A(f"v_add_f32 v{o+6}, v{o+6}, v{o+7}")
    for c2 in range(2):
        o = vO + 8 * c2
        A(f"v_add_f32_dpp v{4+c2}, v{o+2}, v{4+c2} row_ror:8 row_mask:0xf bank_mask:0x3")
        A(f"v_add_f32_dpp v{4+c2}, v{o+4}, v{o+6} row_ror:8 row_mask:0xf bank_mask:0xc")
    A("v_min_u32 v4, -2, v4"); A("v_min_u32 v5, -2, v5")
    A(f"buffer_store_dwordx2 v[4:5], v{vPO}, {sr(S_WS)}, s{sP2} offen offset:{O_P2} {sfl}")
    stamp(9)
    def dump():
        A(f"s_lshl_b32 s{sT0}, s2, 2"); A(f"s_add_u32 s{sT0}, s{sT0}, s3"); A(f"s_lshl_b32 s{sT0}, s{sT0}, 8"); A(f"s_add_u32 s{sT0}, s{sT0}, {TS}")
        A(f"v_lshlrev_b32 v62, 2, v{vL}")
        A(f"buffer_store_dword v63, v62, {sr(S_WS)}, s{sT0} offen")
    A("s_cmp_ge_u32 s3, 2")
    A("s_cbranch_scc1 L_dump" if prof2 else "s_cbranch_scc1 L_end")
    for _ in range(PIPE - 1):
        A(f"buffer_load_dwordx4 v[12:15], v8, {sr(S_WS)}, s{sP3} offen {pfl}")
        A(f"s_sleep {tsleep}")
    A.label("L_s3")
    if s3sleep: A(f"s_sleep {s3sleep}")
    A(f"buffer_load_dwordx4 v[12:15], v8, {sr(S_WS)}, s{sP3} offen {pfl}")
    A(f"s_waitcnt vmcnt({PIPE - 1})")
    A("v_max3_u32 v10, v12, v13, v14"); A("v_max_u32 v10, v10, v15")
    A(f"v_cmp_eq_u32 s[{sE}:{sE+1}], -1, v10")
    A(f"s_sub_u32 s{sSPIN}, s{sSPIN}, 1"); A("s_cbranch_scc1 L_s3done")
    A(f"s_and_b64 exec, exec, s[{sE}:{sE+1}]")
    A("s_cbranch_scc1 L_s3")
    A.label("L_s3done")
    A("s_mov_b64 exec, -1")
    for r in range(4): A(f"v_add_f32_dpp v{16+r}, v{12+r}, v{12+r} row_ror:8 {FULL}")
    for rot in (4, 2, 1):
        for r in range(4): A(f"v_add_f32_dpp v{16+r}, v{16+r}, v{16+r} row_ror:{rot} {FULL}")
    A("v_cvt_pk_bf16_f32 v4, v16, v18"); A("v_cvt_pk_bf16_f32 v5, v17, v19")
    A(f"v_cndmask_b32 v4, v4, v5, s[{sM+2}:{sM+3}]")
    A(f"s_mov_b64 exec, s[{sM+4}:{sM+5}]")
    A(f"buffer_store_dword v4, v9, {sr(S_O)}, s{sOUT} offen {osc1}")
    A("s_mov_b64 exec, -1")
    stamp(10)
    if prof2:
        A.label("L_dump"); lstamp(); dump()
    A("s_endpgm")

    A.label("L_helper")
    in_helper[0] = True
    S_DBG = S_O
    hO1, hO2, hO3 = 21, 22, 23
    sBLK, sGRP, sFL = 96, 97, 66
    def poll(name, load, reduce_to_v6, cmpop, cmpval, sl, pre_sleep=False):
        A(f"s_mov_b32 s{sSPIN}, {spin}")
        A.label(name)
        if pre_sleep: A(f"s_sleep {sl}")
        load()
        reduce_to_v6()
        A(f"{cmpop} s[{sE}:{sE+1}], {cmpval}, v6")
        A(f"s_cmp_eq_u64 s[{sE}:{sE+1}], 0"); A(f"s_cbranch_scc1 {name}_ok")
        spin_tail(name, sl)
        A.label(name + "_ok")
    A(f"v_lshlrev_b32 v{hO1}, 4, v{vL}")
    A(f"s_mul_i32 s{sBLK}, s2, {BS}"); A(f"s_add_u32 s{sBLK}, s{sBLK}, {BLK}")
    A(f"s_and_b32 s{sGRP}, s2, 0xf0")
    A("s_waitcnt lgkmcnt(0)")
    srd(S_WS, 28, WS_BYTES); srd(S_DBG, 26, 256)
    stamp(0)
    A("s_cmp_ge_u32 s2, 8"); A("s_cbranch_scc1 L_noinit")
    for r in range(4): A(f"v_mov_b32 v{4+r}, 0")
    A(f"s_lshl_b32 s{sT0}, s2, 12"); A(f"s_add_u32 s{sT0}, s{sT0}, {FLG}"); A(f"s_lshl_b32 s{sT1}, s2, 2")
    for i in range(4):
        A(f"buffer_store_dwordx4 v[4:7], v{hO1}, {sr(S_WS)}, s{sT0} offen offset:{i*1024} sc1")
    if LV:
        A(f"s_add_u32 s{sT0}, s{sT0}, {CNT - FLG}")
        for i in range(4):
            A(f"buffer_store_dwordx4 v[4:7], v{hO1}, {sr(S_WS)}, s{sT0} offen offset:{i*1024} sc1")
    A("v_mov_b32 v5, 1")
    A("s_waitcnt vmcnt(0)")
    A("s_mov_b64 exec, 1")
    A(f"buffer_store_dword v5, v4, {sr(S_DBG)}, s{sT1} offen sc1")
    A("s_mov_b64 exec, -1")
    A.label("L_noinit")
    for r in range(4): A(f"v_mov_b32 v{4+r}, -1")
    if "i" not in skip: A(f"buffer_store_dwordx4 v[4:7], v{hO1}, {sr(S_WS)}, s{sBLK} offen sc1")
    if "i" not in skip: A(f"buffer_store_dwordx4 v[4:7], v{hO1}, {sr(S_WS)}, s{sBLK} offen offset:1024 sc1")
    if preBP:
        A(f"s_lshl_b32 s{sT0}, s2, 11"); A(f"s_add_u32 s{sT0}, s{sT0}, {BP}")
        for i in range(2): A(f"buffer_store_dwordx4 v[4:7], v{hO1}, {sr(S_WS)}, s{sT0} offen offset:{i*1024} sc1")
    smask(sE, (1 << 56) - 1)
    A(f"s_mov_b64 exec, s[{sE}:{sE+1}]")
    if "i" not in skip: A(f"buffer_store_dwordx4 v[4:7], v{hO1}, {sr(S_WS)}, s{sBLK} offen offset:2048 sc1")
    A("s_mov_b64 exec, -1")
    A(f"v_mov_b32 v{hO2}, {L_ST}")
    A(f"ds_write_b128 v{hO2}, v[4:7]"); A(f"ds_write_b128 v{hO2}, v[4:7] offset:16")
    if LV:
        for r in range(4): A(f"v_mov_b32 v{30+r}, 0")
        A(f"ds_write_b128 v{hO2}, v[30:33] offset:{L_PRG - L_ST}"); A(f"ds_write_b32 v{hO2}, v30 offset:{L_PRG - L_ST + 16}")
    build_sel()
    A(f"v_lshrrev_b32 v4, 3, v{vJ}"); A(f"v_lshlrev_b32 v{hO2}, 9, v4")
    A(f"v_lshl_add_u32 v{hO2}, v{vG}, 7, v{hO2}")
    A(f"v_and_b32 v7, 7, v{vJ}"); A(f"v_lshl_add_u32 v{hO2}, v7, 4, v{hO2}")
    A(f"v_add_u32 v{hO3}, {L_SC}, v{hO1}")
    A(f"s_lshl_b32 s{sFL}, s2, 7"); A(f"s_add_u32 s{sFL}, s{sFL}, {FLG}")
    hQW, hQG, hFP, hD8, hQG2, hQW2 = 24, 25, 20, 26, 27, 28
    A(f"v_lshlrev_b32 v{hFP}, 7, v7")
    A(f"v_lshlrev_b32 v{hD8}, 2, v7")
    A(f"v_lshlrev_b32 v{hQW2}, 6, v4"); A(f"v_lshl_add_u32 v{hQW2}, v7, 1, v{hQW2}"); A(f"v_add_u32 v{hQW2}, {L_QBL}, v{hQW2}")
    A(f"v_lshlrev_b32 v{hQG2}, 11, v{vG}"); A(f"v_lshl_add_u32 v{hQG2}, v{vJ}, 4, v{hQG2}")
    A(f"v_lshrrev_b32 v4, 5, v{vL}"); A(f"v_and_b32 v5, 31, v{vL}")
    A(f"v_lshlrev_b32 v{hQG}, 11, v4"); A(f"v_lshl_add_u32 v{hQG}, v5, 4, v{hQG}")
    A("v_lshrrev_b32 v5, 3, v5"); A(f"v_lshlrev_b32 v{hQW}, 6, v5")
    A(f"v_lshl_add_u32 v{hQW}, v7, 1, v{hQW}"); A(f"v_add_u32 v{hQW}, {L_QL}, v{hQW}")
    A("v_mov_b32 v4, 1"); A("v_mov_b32 v5, 0")
    A(f"s_lshl_b32 s{sT0}, s2, 11"); A(f"s_add_u32 s{sT1}, s{sT0}, {QP_B}")
    A(f"s_lshl_b32 s{sT2}, s{sH}, 10"); A(f"s_add_u32 s{sT2}, s{sT2}, {FLG}")
    A(f"s_lshl_b32 s{sT3}, s{sH}, 14"); A(f"s_lshl_b32 s{sCNT}, s{sB}, 9"); A(f"s_add_u32 s{sT3}, s{sT3}, s{sCNT}")
    A(f"s_lshl_b32 s{sCNT}, s{sS}, 8"); A(f"s_add_u32 s{sCNT}, s{sCNT}, s{sT3}"); A(f"s_add_u32 s{sCNT}, s{sCNT}, {QP_B}")
    A("s_waitcnt lgkmcnt(0)")
    A("s_barrier")
    stamp(1)
    for i in range(4):
        for v in range(4): A(f"ds_read_b128 {vr(64+16*i+4*v)}, v{hO3} offset:{v*4096+i*1024}")
        if i == 1: A("s_waitcnt lgkmcnt(4)")
    for i in range(4):
        b = 64 + 16 * i
        A(f"s_waitcnt lgkmcnt({12 - 4 * i})")
        for r in range(4):
            A(f"v_add_f32 v{b+r}, v{b+r}, v{b+4+r}"); A(f"v_add_f32 v{b+8+r}, v{b+8+r}, v{b+12+r}")
        for r in range(4): A(f"v_add_f32 v{b+r}, v{b+r}, v{b+8+r}")
        if "q" not in skip: A(f"buffer_store_dwordx4 {vr(b)}, v{hO2}, {sr(S_WS)}, s{sT1 if i >= 2 else sT0} offen offset:{(i&1)*1024} {qfl}")
    poll("L_pi", lambda: (A(f"buffer_load_dword v6, v{hD8}, {sr(S_DBG)}, 0 offen sc1"), A("s_waitcnt vmcnt(0)")), lambda: None, "v_cmp_ne_u32", 1, qsleep)
    A("s_mov_b64 exec, 1")
    A(f"buffer_store_dword v4, v5, {sr(S_WS)}, s{sFL} offen sc1")
    A("s_mov_b64 exec, -1")
    stamp(2)
    poll("L_pq", lambda: (A(f"buffer_load_dword v6, v{hFP}, {sr(S_WS)}, s{sT2} offen sc1"), A("s_waitcnt vmcnt(0)")), lambda: None, "v_cmp_ne_u32", 1, qsleep)
    stamp(3)
    for i in range(4):
        if "g" not in skip: A(f"buffer_load_dwordx4 {vr(64+4*i)}, v{hQG}, {sr(S_WS)}, s{sT3} offen sc1")
        if i < 3: A(f"s_add_u32 s{sT3}, s{sT3}, 4096")
    if "g" not in skip: A(f"buffer_load_dwordx4 {vr(80)}, v{hQG2}, {sr(S_WS)}, s{sCNT} offen sc1")
    A(f"s_add_u32 s{sCNT}, s{sCNT}, 8192")
    if "g" not in skip: A(f"buffer_load_dwordx4 {vr(84)}, v{hQG2}, {sr(S_WS)}, s{sCNT} offen sc1")
    A("s_waitcnt vmcnt(2)")
    for r in range(4):
        A(f"v_add_f32 v{64+r}, v{64+r}, v{68+r}"); A(f"v_add_f32 v{72+r}, v{72+r}, v{76+r}")
    for r in range(4): A(f"v_add_f32 v{64+r}, v{64+r}, v{72+r}")
    for r in range(4): A(f"v_mov_b32 v{68+r}, v{64+r}")
    for r in range(4): A(f"v_permlane32_swap_b32 v{68+r}, v{64+r}")
    for r in range(4): A(f"v_add_f32 v{64+r}, v{64+r}, v{68+r}")
    def write_b16(addr, b, off):
        A(f"v_cvt_pk_bf16_f32 v{b}, v{b}, v{b+1}"); A(f"v_cvt_pk_bf16_f32 v{b+2}, v{b+2}, v{b+3}")
        A(f"ds_write_b16 v{addr}, v{b} offset:{off}"); A(f"ds_write_b16_d16_hi v{addr}, v{b} offset:{off+16}")
        A(f"ds_write_b16 v{addr}, v{b+2} offset:{off+32}"); A(f"ds_write_b16_d16_hi v{addr}, v{b+2} offset:{off+48}")
    write_b16(hQW, 64, 0)
    A("s_waitcnt vmcnt(0)")
    for r in range(4): A(f"v_add_f32 v{80+r}, v{80+r}, v{84+r}")
    for r in range(4): allreduce(80 + r, 84 + r, "v_add_f32", [])
    write_b16(hQW2, 80, 0)
    A(f"v_and_b32 v4, 0x70, v{hO1}"); A(f"v_add_u32 v5, {L_QBL}, v4")
    A("ds_read_b128 v[80:83], v5")
    A("s_waitcnt lgkmcnt(0)")
    for r in range(4): A(f"v_min_u32 v{80+r}, -2, v{80+r}")
    A("s_mov_b64 exec, 0xff")
    A(f"buffer_store_dwordx4 v[80:83], v4, {sr(S_WS)}, s{sBLK} offen offset:{O_QB2} sc1")
    A("s_mov_b64 exec, -1")
    hR = 23
    A(f"v_add_u32 v{hR}, {L_R2}, v{hO1}")
    stamp(4)
    A("s_barrier")
    def lds_frags(off):
        for k in range(32):
            A(f"ds_read_b128 {ar(4*k)}, v{hR} offset:{off + k*1024}")
            if k % 8 == 7: A("s_waitcnt lgkmcnt(0)")
    lds_frags(L_R3 - L_R2)
    A(f"v_add_u32 v4, s{sGRP}, v{vJ}")
    A(f"v_lshrrev_b32 v5, 2, v{vJ}"); A("v_lshlrev_b32 v5, 6, v5")
    A(f"v_and_b32 v7, 3, v{vJ}"); A("v_add_u32 v5, v5, v7")
    A(f"s_and_b32 s{sT0}, s2, 15"); A(f"s_lshl_b32 s{sT0}, s{sT0}, 2"); A(f"v_add_u32 v5, s{sT0}, v5")
    smask(sE, 0xFFFF0000FFFF0000)
    A(f"v_cndmask_b32 v4, v4, v5, s[{sE}:{sE+1}]"); A("v_lshlrev_b32 v4, 7, v4")
    A(f"s_mov_b32 s{sT1}, {FLG}")
    poll("L_pa", lambda: (A(f"buffer_load_dword v6, v4, {sr(S_WS)}, s{sT1} offen sc1"), A("s_waitcnt vmcnt(0)")), lambda: None, "v_cmp_ne_u32", 1, hsleep)
    stamp(5)
    hETA = 28
    sGB_ = 98
    A(f"s_mul_i32 s{sGB_}, s{sGRP}, {BS}"); A(f"s_add_u32 s{sGB_}, s{sGB_}, {BLK}")
    A(f"v_bfe_u32 v4, v{vJ}, 1, 2"); A(f"v_lshrrev_b32 v5, 3, v{vJ}"); A(f"v_lshl_add_u32 v{hETA}, v4, 1, v5")
    A(f"v_mul_u32_u24 v4, {2 * BS}, v{hETA}"); A(f"v_lshl_add_u32 v4, v{vG}, 5, v4")
    A(f"v_and_b32 v5, 1, v{vJ}"); A("v_lshl_add_u32 v4, v5, 4, v4")
    hQ = 30
    def ldq():
        A(f"buffer_load_dwordx4 {vr(hQ)}, v4, {sr(S_WS)}, s{sGB_} offen offset:{O_QB2} sc1")
        A(f"buffer_load_dwordx4 {vr(hQ+4)}, v4, {sr(S_WS)}, s{sGB_} offen offset:{O_QB2 + BS} sc1")
        A("s_waitcnt vmcnt(0)")
    def redq():
        A(f"v_max3_u32 v6, v{hQ}, v{hQ+1}, v{hQ+2}"); A(f"v_max3_u32 v6, v6, v{hQ+3}, v{hQ+4}")
        A(f"v_max3_u32 v6, v6, v{hQ+5}, v{hQ+6}"); A(f"v_max_u32 v6, v6, v{hQ+7}")
    poll("L_q2", ldq, redq, "v_cmp_eq_u32", -1, hsleep)
    stamp(6)
    hS = 64
    hDD = 38
    def postB(g8):
        d = hDD + 4 * (g8 & 1)
        for r2 in range(2):
            A(f"v_mov_b32_dpp v{hS+2*g8+r2}, v{d+2*r2} quad_perm:[0,0,2,2] {FULL}")
            A(f"v_add_f32_dpp v{hS+2*g8+r2}, v{d+2*r2+1}, v{hS+2*g8+r2} quad_perm:[1,1,3,3] {FULL}")
    for g8 in range(16):
        d = hDD + 4 * (g8 & 1)
        A(f"v_mfma_f32_16x16x32_bf16 {vr(d)}, {ar(8*g8)}, {vr(hQ)}, 0")
        A(f"v_mfma_f32_16x16x32_bf16 {vr(d)}, {ar(8*g8+4)}, {vr(hQ+4)}, {vr(d)}")
        if g8 > 0: postB(g8 - 1)
    postB(15)
    lds_frags(0)
    hM, hL, hNM = 46, 47, 48
    A(f"v_max_f32 v{hM}, v{hS}, v{hS+1}")
    for k in range(2, 32, 2): A(f"v_max3_f32 v{hM}, v{hM}, v{hS+k}, v{hS+k+1}")
    allreduce(hM, 4, "v_max_f32", [])
    A(f"v_mul_f32 v{hM}, s{sC}, v{hM}"); A(f"v_sub_f32 v{hNM}, 0, v{hM}")
    for k in range(32): A(f"v_fma_f32 v{hS+k}, v{hS+k}, s{sC}, v{hNM}")
    for k in range(32): A(f"v_exp_f32 v{hS+k}, v{hS+k}")
    A(f"v_add_f32 v{hL}, v{hS}, v{hS+1}")
    for k in range(2, 32): A(f"v_add_f32 v{hL}, v{hL}, v{hS+k}")
    allreduce(hL, 4, "v_add_f32", [])
    for k in range(32): A(f"v_cvt_pk_bf16_f32 v{hS+k}, v{hS+k}, v{hS+k}")
    hOB = 96
    hBB = 50
    cnt = 0
    for k in range(32):
        for q in range(4):
            b = hBB + 4 * (cnt & 1); cnt += 1
            for rr in range(4):
                if q == rr: A(f"v_and_b32 v{b+rr}, v{hS+k}, v{vMSK+rr}")
                elif q > rr: A(f"v_and_b32_dpp v{b+rr}, v{hS+k}, v{vMSK+rr} row_shl:{2*(q-rr)} {FULL} bound_ctrl:0")
                else: A(f"v_and_b32_dpp v{b+rr}, v{hS+k}, v{vMSK+rr} row_shr:{2*(rr-q)} {FULL} bound_ctrl:0")
            A(f"v_mfma_f32_16x16x32_bf16 {vr(hOB+4*q)}, {ar(4*k)}, {vr(b)}, {'0' if k == 0 else vr(hOB+4*q)}")
    A(f"v_rcp_f32 v7, v{hL}"); A(f"v_log_f32 v{hL}, v{hL}"); A(f"v_add_f32 v{hM}, v{hM}, v{hL}"); A(f"v_min_u32 v{hM}, -2, v{hM}")
    A(f"v_lshrrev_b32 v4, 1, v{hO2}")
    A(f"s_lshl_b32 s{sT0}, s2, 11"); A(f"s_add_u32 s{sT0}, s{sT0}, {BP}")
    for q in range(4):
        o = hOB + 4 * q
        A(f"v_mov_b32_dpp v5, v7 row_newbcast:{2*q} row_mask:0xf bank_mask:0x3")
        A(f"v_mov_b32_dpp v5, v7 row_newbcast:{8+2*q} row_mask:0xf bank_mask:0xc")
        for r in range(4): A(f"v_mul_f32 v{o+r}, v{o+r}, v5")
        A(f"v_cvt_pk_bf16_f32 v{o}, v{o}, v{o+1}"); A(f"v_cvt_pk_bf16_f32 v{o+1}, v{o+2}, v{o+3}")
        if "b" not in skip: A(f"buffer_store_dwordx2 {vr(o,2)}, v4, {sr(S_WS)}, s{sT0} offen offset:{q*512} {bfl}")
    A(f"v_lshlrev_b32 v4, 2, v{hETA}")
    A("s_waitcnt vmcnt(0)")
    A("s_mov_b64 exec, 0x5555")
    if "s" not in skip: A(f"buffer_store_dword v{hM}, v4, {sr(S_WS)}, s{sBLK} offen offset:{O_BST} sc1")
    A("s_mov_b64 exec, -1")
    stamp(7)
    A(f"v_mul_u32_u24 v4, {BS}, v{vJ}")
    A(f"s_and_b32 s{sT1}, s{sH}, 7"); A(f"s_lshl_b32 s{sT0}, s{sT1}, 2"); A(f"s_add_u32 s{sT0}, s{sT0}, s{sGB_}")
    if "s" not in skip: poll("L_l2", lambda: (A(f"buffer_load_dword v6, v4, {sr(S_WS)}, s{sT0} offen offset:{O_BST} sc1"), A("s_waitcnt vmcnt(0)")), lambda: None, "v_cmp_eq_u32", -1, l2sleep, pre_sleep=True)
    A(f"v_lshlrev_b32 v5, 11, v{vJ}"); A(f"v_lshl_add_u32 v5, v{vG}, 4, v5")
    A(f"s_lshl_b32 s{sT0}, s{sGRP}, 11"); A(f"s_and_b32 s{sT1}, s2, 15"); A(f"s_lshl_b32 s{sT1}, s{sT1}, 7")
    A(f"s_add_u32 s{sT0}, s{sT0}, s{sT1}"); A(f"s_add_u32 s{sT0}, s{sT0}, {BP}")
    for i in range(2):
        if "l" not in skip: A(f"buffer_load_dwordx4 {vr(80+4*i)}, v5, {sr(S_WS)}, s{sT0} offen offset:{i*64} sc1")
    A("v_mov_b32 v7, v6")
    for r in (8, 4, 2, 1): A(f"v_max_f32_dpp v7, v7, v7 row_ror:{r} {FULL}")
    A("v_sub_f32 v6, v6, v7"); A("v_exp_f32 v6, v6"); A("v_mov_b32 v7, v6")
    for r in (8, 4, 2, 1): A(f"v_add_f32_dpp v7, v7, v7 row_ror:{r} {FULL}")
    A("v_rcp_f32 v7, v7"); A("v_mul_f32 v6, v6, v7")
    A("s_waitcnt vmcnt(0)")
    for r in range(8):
        A(f"v_lshlrev_b32 v{64+2*r}, 16, v{80+r}"); A(f"v_and_b32 v{65+2*r}, 0xffff0000, v{80+r}")
    for r in range(16): A(f"v_mul_f32 v{64+r}, v{64+r}, v6")
    for rot in (8, 4, 2, 1):
        for r in range(16): A(f"v_add_f32_dpp v{64+r}, v{64+r}, v{64+r} row_ror:{rot} {FULL}")
    smask(sE, 0x0001000100010001)
    for r in range(8):
        A(f"v_cvt_pk_bf16_f32 v{80+r}, v{64+2*r}, v{65+2*r}")
        A(f"v_min_u32 v{80+r}, -2, v{80+r}"); A(f"v_cndmask_b32 v{80+r}, 0, v{80+r}, s[{sE}:{sE+1}]")
    A(f"v_and_b32 v4, 1, v{vJ}"); A(f"v_xor_b32 v4, s{sS}, v4"); A("v_lshlrev_b32 v4, 7, v4"); A(f"v_lshl_add_u32 v4, v{vG}, 4, v4")
    smask(sE, 0x0003000300030003)
    A(f"s_mov_b64 exec, s[{sE}:{sE+1}]")
    for i in range(2):
        if "r" not in skip: A(f"buffer_store_dwordx4 {vr(80+4*i)}, v4, {sr(S_WS)}, s{sBLK} offen offset:{O_REC + 256 + i*64} sc1")
    A("s_mov_b64 exec, -1")
    stamp(8)
    A(f"v_and_b32 v4, 3, v{vL}"); A("v_lshlrev_b32 v5, 3, v4"); A(f"v_add_u32 v5, {L_ST}, v5")
    hm, hl = 58, 59
    poll("L_st", lambda: (A(f"ds_read_b64 {vr(hm,2)}, v5"), A("s_waitcnt lgkmcnt(0)")), lambda: A(f"v_max_u32 v6, v{hm}, v{hl}"), "v_cmp_eq_u32", -1, hsleep)
    hMW, hLW, hZ = 60, 61, 20
    A(f"v_mov_b32 v{hMW}, v{hm}")
    for mode in ("quad_perm:[1,0,3,2]", "quad_perm:[2,3,0,1]"): A(f"v_max_f32_dpp v{hMW}, v{hMW}, v{hMW} {mode} {FULL}")
    A(f"v_sub_f32 v6, v{hm}, v{hMW}"); A("v_exp_f32 v6, v6"); A(f"v_mul_f32 v{hLW}, v6, v{hl}")
    for mode in ("quad_perm:[1,0,3,2]", "quad_perm:[2,3,0,1]"): A(f"v_add_f32_dpp v{hLW}, v{hLW}, v{hLW} {mode} {FULL}")
    A(f"v_min_u32 v6, -2, v{hMW}"); A(f"v_min_u32 v7, -2, v{hLW}")
    A(f"v_mov_b32 v{hZ}, 0")
    A("s_mov_b64 exec, 1")
    A(f"buffer_store_dwordx2 v[6:7], v{hZ}, {sr(S_WS)}, s{sBLK} offen offset:{O_AST} sc1")
    A("s_mov_b64 exec, -1")
    stamp(9)
    def weights():
        A(f"s_xor_b32 s{sT0}, s2, 1"); A(f"s_mul_i32 s{sT0}, s{sT0}, {BS}"); A(f"s_add_u32 s{sT0}, s{sT0}, {BLK}")
        poll("L_ps", lambda: (A(f"buffer_load_dwordx2 v[36:37], v{hZ}, {sr(S_WS)}, s{sT0} offen offset:{O_AST} sc1"), A("s_waitcnt vmcnt(0)")), lambda: A("v_max_u32 v6, v36, v37"), "v_cmp_eq_u32", -1, psleep if not LV else 16, pre_sleep=not LV)
        A(f"v_max_f32 v4, v{hMW}, v36")
        A(f"v_sub_f32 v5, v{hMW}, v4"); A("v_sub_f32 v6, v36, v4"); A(f"v_sub_f32 v7, v{hm}, v4")
        A("v_exp_f32 v5, v5"); A("v_exp_f32 v6, v6"); A("v_exp_f32 v7, v7")
        A(f"v_mul_f32 v5, v5, v{hLW}"); A("v_fmac_f32 v5, v6, v37")
        A("v_rcp_f32 v5, v5"); A("v_mul_f32 v7, v7, v5")
        A(f"v_and_b32 v4, 3, v{vL}"); A("v_lshlrev_b32 v4, 2, v4"); A(f"v_add_u32 v4, {L_WGT}, v4")
        A("ds_write_b32 v4, v7")

    if not LV: weights()
    elif TAU is None:
        ngrp = 256 // NG
        sCA = 99
        A(f"s_lshr_b32 s{sCA}, s2, {int(math.log2(NG))}"); A(f"s_mul_i32 s{sCA}, s{sCA}, {CS}"); A(f"s_add_u32 s{sCA}, s{sCA}, {CNT}")
        A(f"v_mov_b32 v30, {L_PRG}")
        ms = MS or list(range(0, LASTM + 1, PER))
        assert len(ms) * ngrp * CS <= 32768
        for mi, it in enumerate(ms):
            if it > 0:
                A(f"s_mov_b32 s{sSPIN}, {spin}")
                A.label(f"L_cm{mi}")
                A("ds_read_b128 v[32:35], v30")
                A("s_waitcnt lgkmcnt(0)")
                A("v_add3_u32 v32, v32, v33, v34"); A("v_add_u32 v32, v32, v35")
                A(f"v_readfirstlane_b32 s{sT0}, v32")
                A(f"s_cmp_ge_u32 s{sT0}, {4 * it - 1}"); A(f"s_cbranch_scc1 L_cm{mi}_ok")
                spin_tail(f"L_cm{mi}", csleep)
                A.label(f"L_cm{mi}_ok")
            A("v_mov_b32 v32, 1")
            A("s_mov_b64 exec, 1")
            A(f"buffer_atomic_add v32, v{hZ}, {sr(S_WS)}, s{sCA} offen sc0 sc1")
            A("s_mov_b64 exec, -1")
            A(f"s_add_u32 s{sCA}, s{sCA}, {ngrp * CS}")
            A(f"s_mov_b32 s{sT1}, 0")
            A("s_waitcnt vmcnt(0)")
            A(f"v_readfirstlane_b32 s{sT0}, v32")
            for li, t in enumerate(THR):
                A(f"s_cmp_ge_u32 s{sT0}, {int(t * NG)}"); A(f"s_cselect_b32 s{sT1}, {li+1}, s{sT1}")
            A(f"v_mov_b32 v33, s{sT1}"); A("ds_write_b32 v30, v33 offset:16")
            if mi == min(2, len(ms) - 1): weights()
    else:
        sCA, sMI, sSMP = 99, 100, 101
        A(f"s_mov_b32 s{sCA}, {CNT + CS}"); A(f"s_mov_b32 s{sT3}, {CNT}")
        A(f"s_and_b32 s{sSMP}, s{sH1}, {SMPMASK}")
        A(f"v_mov_b32 v30, {L_PRG}")
        A(f"s_mov_b32 s{sMI}, 0")
        A.label("L_cloop")
        A(f"s_lshl_b32 s{sT2}, s{sMI}, 2")
        A(f"s_mov_b32 s{sSPIN}, {spin}")
        A.label("L_cw")
        A("ds_read_b128 v[32:35], v30")
        A("s_waitcnt lgkmcnt(0)")
        A("v_add3_u32 v32, v32, v33, v34"); A("v_add3_u32 v32, v32, v35, 1")
        A(f"v_readfirstlane_b32 s{sT0}, v32")
        A(f"s_cmp_ge_u32 s{sT0}, s{sT2}"); A("s_cbranch_scc1 L_cw_ok")
        spin_tail("L_cw", csleep)
        A.label("L_cw_ok")
        A("v_mov_b32 v32, 1")
        A("s_mov_b64 exec, 1")
        A(f"buffer_load_dword v34, v{hZ}, {sr(S_WS)}, s{sT3} offen sc1")
        A(f"s_cmp_lg_u32 s{sSMP}, {SMPVAL}"); A("s_cbranch_scc1 L_nsmp")
        A(f"buffer_atomic_add v32, v{hZ}, {sr(S_WS)}, s{sCA} offen sc0 sc1")
        A("s_waitcnt vmcnt(0)")
        A(f"v_readfirstlane_b32 s{sT0}, v32")
        A(f"s_cmp_lg_u32 s{sT0}, {TAU}"); A("s_cbranch_scc1 L_nsmp")
        A(f"s_add_u32 s{sT0}, s{sMI}, 1"); A(f"v_mov_b32 v32, s{sT0}")
        A(f"buffer_atomic_umax v32, v{hZ}, {sr(S_WS)}, s{sT3} offen sc1")
        A.label("L_nsmp")
        A("s_mov_b64 exec, -1")
        A("s_waitcnt vmcnt(0)")
        A(f"v_readfirstlane_b32 s{sT0}, v34")
        A(f"s_sub_i32 s{sT0}, s{sT0}, s{sMI}"); A(f"s_max_i32 s{sT0}, s{sT0}, 0"); A(f"s_min_i32 s{sT0}, s{sT0}, {len(LV) - 1}")
        A(f"v_mov_b32 v33, s{sT0}"); A("ds_write_b32 v30, v33 offset:16")
        A(f"s_add_u32 s{sCA}, s{sCA}, {CS}")
        A(f"s_add_u32 s{sMI}, s{sMI}, 1")
        A(f"s_cmp_lg_u32 s{sMI}, 4"); A("s_cbranch_scc1 L_nw")
        weights()
        A.label("L_nw")
        A(f"s_cmp_le_u32 s{sMI}, {LASTM}"); A("s_cbranch_scc1 L_cloop")
    stamp(10); stamp(11)
    A("s_waitcnt vmcnt(0) lgkmcnt(0)")
    A.label("L_end")
    A("s_endpgm")

    nn = A.fix_hazards()
    out = HEADER
    out += f"; @launch grid=(256,1,1) block=(320,1,1) lds={LDS_BYTES}\n"
    out += '.amdgcn_target "amdgcn-amd-amdhsa--gfx950"\n.text\n'
    out += f".globl {NAME}_kernel\n.p2align 8\n.type {NAME}_kernel,@function\n{NAME}_kernel:\n"
    out += A.text()
    out += '.section .rodata,"a"\n.p2align 6\n'
    out += f".amdhsa_kernel {NAME}_kernel\n"
    out += "  .amdhsa_next_free_vgpr 256\n  .amdhsa_next_free_sgpr 102\n  .amdhsa_accum_offset 128\n"
    out += "  .amdhsa_group_segment_fixed_size 0\n  .amdhsa_kernarg_size 104\n  .amdhsa_user_sgpr_count 2\n"
    out += "  .amdhsa_user_sgpr_kernarg_segment_ptr 1\n  .amdhsa_system_sgpr_workgroup_id_x 1\n"
    out += "  .amdhsa_float_denorm_mode_32 3\n"
    out += ".end_amdhsa_kernel\n"
    return out

if __name__ == "__main__":
    import json
    kw = json.loads(sys.argv[2]) if len(sys.argv) > 2 else {}
    open(sys.argv[1], "w").write(gen(**kw))
```

```python
import sys, struct, math
sys.path.insert(0, "dev")
from asmlib import Asm
NAME = "concat_heads__mha_block_cached__sliding_block_cached__decode"

HEADER = """; Kernarg layout for this problem (104 bytes, ptrs only, base s[0:1]):
;   offset  32: d_in[4] A_wo  shape=(4096, 1024) dtype=bfloat16
;   offset  72: d_in[9] B_wo  shape=(4096, 1024) dtype=bfloat16
;   offset  88: d_debug   256 bytes (words 0..7: "flag lines cleared")
;   offset  96: d_ws      workspace
; 256 workgroups x 5 waves: waves 0-3 stream all HBM data, wave 4 does hand-offs and branch B math.
"""

QP_A = 0x000000
QP_B = 0x080000
BP   = 0x100000
FLG  = 0x180000
CNT  = 0x188000
BLK  = 0x200000
BS   = 2944
O_QB2, O_BST, O_AST, O_REC, O_P2 = 0, 128, 256, 384, 896
TS   = 0x400000
WS_BYTES = 0x800000
L_WO  = 0
L_R2  = 0x10000
L_R3  = 0x18000
L_SC  = 0x20000
L_EX  = 0x24000
L_QL  = 0x26000
L_QBL = 0x26100
L_ST  = 0x26200
L_WGT = 0x26220
L_PRG = 0x26240
LDS_BYTES = 0x26300
FULL = "row_mask:0xf bank_mask:0xf"
SCALE = (128 ** -0.5) * math.log2(math.e)
def f32bits(x): return struct.unpack("<I", struct.pack("<f", x))[0]

def gen(lfl="sc1", XB=3, GX=0, SAMEL=0, afl="sc0 sc1", qpre=0, l2pre=0, BROT=1, NDEF=8, DW=6, BURST=4, TRN=4, preBP=False, pfl="sc1", sfl="sc1", gsleep=2, s3sleep=6, PIPE=1, ORD="seq", TLB=0, prof3=False, CS=384, MS=(3, 7, 10, 12), TAU=(28, 40), SMPMASK=15, SMPVAL=5, LV=(4, 5, 6), THR=(0.6, 0.85), NG=32, PER=2, csleep=4, LASTM=12, bfl="sc1", qfl="sc1", l2sleep=16, prof2=False, G=1, osc1="", DP0=6, DP=(4,), DK=(4,), DV=(4,), DE=None, NE=0, X=12, prof=False, spin=1 << 16, hsleep=16, psleep=100, tsleep=1, qsleep=4, skip="", gfl="sc1", diag=None):
    tup = lambda x: (x,) if isinstance(x, int) else tuple(x)
    DP, DK, DV = tup(DP), tup(DK), tup(DV)
    DE = DV if DE is None else tup(DE)
    A = Asm()
    in_helper = [False]
    def srd(base, ptr, size):
        A(f"s_mov_b32 s{base}, s{ptr}"); A(f"s_mov_b32 s{base+1}, s{ptr+1}")
        A(f"s_mov_b32 s{base+2}, {hex(size)}"); A(f"s_mov_b32 s{base+3}, 0x00020000")
    def smask(r, val):
        A(f"s_mov_b32 s{r}, {hex(val & 0xffffffff)}"); A(f"s_mov_b32 s{r+1}, {hex(val >> 32)}")
    S_K, S_V, S_X, S_W, S_WS, S_O, S_WO = 32, 36, 40, 44, 48, 52, 56
    sr = lambda b: f"s[{b}:{b+3}]"
    vr = lambda b, n=4: f"v[{b}:{b+n-1}]"
    ar = lambda b, n=4: f"a[{b}:{b+n-1}]"
    sT0, sT1, sT2, sT3, sCNT, sOFFK, sOFFV, sC, sSPIN, sLD = 60, 61, 62, 63, 64, 65, 66, 67, 68, 69
    sM = 70
    sE = 86
    sTS = 88
    sTI = 90
    sH1, sKS, sB, sH, sS = 91, 92, 93, 94, 95
    sKB = 30
    vL, vG, vJ = 1, 2, 3
    def stamp(idx):
        if diag and not in_helper[0]:
            wg, sidx, base, mul = diag
            if idx == sidx:
                A("s_memrealtime s[4:5]"); A("s_waitcnt lgkmcnt(0)"); A("s_sub_u32 s90, s4, s88"); A(f"s_mul_i32 s90, s90, {mul}")
            if idx == 10:
                if sidx < 0: A("s_mov_b32 s90, 0")
                if wg >= 0:
                    A(f"s_cmp_lg_u32 s2, {wg}"); A("s_cbranch_scc1 L_end")
                A(f"s_add_u32 s90, s90, {base*100}")
                A.label("L_diag")
                A("s_memrealtime s[4:5]"); A("s_waitcnt lgkmcnt(0)"); A("s_sub_u32 s4, s4, s88")
                A("s_cmp_lt_u32 s4, s90"); A("s_cbranch_scc1 L_diag")
        if not prof: return
        A(f"s_memrealtime s[{sTS}:{sTS+1}]")
        A("s_waitcnt lgkmcnt(0)")
        A(f"v_mov_b32 v63, s{sTS}")
        A(f"s_mov_b64 exec, 1")
        A(f"buffer_store_dword v63, v62, {sr(S_WS)}, s{sTI} offen offset:{idx*4}")
        A(f"s_mov_b64 exec, -1")
    def lstamp():
        if not prof2: return
        A(f"s_memrealtime s[{sTS}:{sTS+1}]")
        A("s_waitcnt lgkmcnt(0)")
        A(f"s_mov_b32 m0, s31")
        A(f"v_writelane_b32 v63, s{sTS}, m0")
        A("s_add_u32 s31, s31, 1")
    def spin_tail(lab, sl):
        A(f"s_sleep {sl}")
        A(f"s_sub_u32 s{sSPIN}, s{sSPIN}, 1"); A(f"s_cmp_lg_u32 s{sSPIN}, 0"); A(f"s_cbranch_scc1 {lab}")
    def allreduce(v, tmp, op, rors):
        for r in rors: A(f"{op}_dpp v{v}, v{v}, v{v} row_ror:{r} {FULL}")
        A(f"v_mov_b32 v{tmp}, v{v}"); A(f"v_permlane16_swap_b32 v{tmp}, v{v}"); A(f"{op} v{v}, v{v}, v{tmp}")
        A(f"v_mov_b32 v{tmp}, v{v}"); A(f"v_permlane32_swap_b32 v{tmp}, v{v}"); A(f"{op} v{v}, v{v}, v{tmp}")

    A(f"s_cmp_ge_u32 s2, 256")
    A("s_cbranch_scc1 L_end")
    A("s_load_dwordx16 s[4:19], s[0:1], 0")
    A("s_load_dwordx8 s[20:27], s[0:1], 64")
    A("s_load_dwordx2 s[28:29], s[0:1], 96")
    A(f"v_lshrrev_b32 v4, 6, v0")
    A(f"v_and_b32 v{vL}, 63, v0")
    A(f"v_readfirstlane_b32 s3, v4")
    A(f"v_lshrrev_b32 v{vG}, 4, v{vL}")
    A(f"v_and_b32 v{vJ}, 15, v{vL}")
    A(f"s_lshr_b32 s{sH1}, s2, 3")
    A(f"s_and_b32 s{sKS}, s2, 7")
    A(f"s_lshr_b32 s{sB}, s2, 6")
    A(f"s_bfe_u32 s{sH}, s2, 0x50001")
    A(f"s_and_b32 s{sS}, s2, 1")
    A(f"s_mov_b32 s{sC}, {hex(f32bits(SCALE))}")
    if prof:
        A(f"s_mul_i32 s{sTI}, s2, 5"); A(f"s_add_u32 s{sTI}, s{sTI}, s3"); A(f"s_lshl_b32 s{sTI}, s{sTI}, 6")
        A(f"s_add_u32 s{sTI}, s{sTI}, {TS}"); A("v_mov_b32 v62, 0")
    vSEL, vMSK = 8, 16
    def build_sel():
        for rr in range(4): smask(sM + 2 * rr, 0x0303030303030303 << (2 * rr))
        smask(sE, 0xAAAAAAAAAAAAAAAA)
        A("v_mov_b32 v4, 0x0c0c0100"); A("v_mov_b32 v5, 0x01000c0c")
        A(f"v_cndmask_b32 v6, v4, v5, s[{sE}:{sE+1}]")
        A("v_mov_b32 v4, 0x0c0c0302"); A("v_mov_b32 v5, 0x03020c0c")
        A(f"v_cndmask_b32 v7, v4, v5, s[{sE}:{sE+1}]")
        A("v_mov_b32 v4, 0x0c0c0c0c")
        for rr in range(4):
            A(f"v_cndmask_b32 v{vSEL+2*rr}, v4, v6, s[{sM+2*rr}:{sM+2*rr+1}]")
            A(f"v_cndmask_b32 v{vSEL+2*rr+1}, v4, v7, s[{sM+2*rr}:{sM+2*rr+1}]")
        A("v_mov_b32 v4, 0x0000ffff"); A("v_mov_b32 v5, 0xffff0000")
        A(f"v_cndmask_b32 v6, v4, v5, s[{sE}:{sE+1}]")
        for rr in range(4):
            A(f"v_cndmask_b32 v{vMSK+rr}, 0, v6, s[{sM+2*rr}:{sM+2*rr+1}]")
    A("s_cmp_eq_u32 s3, 4")
    A("s_cbranch_scc1 L_helper")

    vOK, vOV, vAS, vAP, vMAX, vT = 20, 21, 22, 23, 24, 25
    vX = 26
    vBB = 34
    vD = 42
    QB = [8, 12, 26, 30]
    vPP = 58
    vACC = 50
    vSL = 89
    vW0, vW1 = 98, 99
    sWB, sWL = 6, 7
    vDM = 64
    vXB = 90
    A("s_setprio 1")
    if prof2:
        A("s_mov_b32 s31, 0"); A("v_mov_b32 v63, 0"); lstamp()
    if diag: A("s_memrealtime s[88:89]")
    A(f"v_lshrrev_b32 v4, 3, v{vJ}")
    A(f"v_lshlrev_b32 v5, 11, v4")
    A(f"v_lshl_add_u32 v5, v{vG}, 4, v5")
    A(f"v_lshlrev_b32 v{vDM+3}, 16, v{vG}")
    A(f"v_lshl_add_u32 v{vDM+3}, v{vJ}, 4, v{vDM+3}")
    A(f"s_lshl_b32 s{sT0}, s{sKS}, 8"); A(f"s_lshl_b32 s{sT1}, s3, 6"); A(f"s_add_u32 s{sT0}, s{sT0}, s{sT1}")
    A(f"s_add_u32 s{sT1}, s{sT0}, 4096")
    A(f"s_lshl_b32 s{sT2}, s{sT0}, 12")
    A(f"s_lshl_b32 s{sT3}, s{sH1}, 8"); A(f"s_add_u32 s{sT2}, s{sT2}, s{sT3}")
    A("s_waitcnt lgkmcnt(0)")
    srd(S_X, 4, 8192); srd(S_W, 10, 1 << 23); srd(S_K, 14, 8192)
    A(f"buffer_load_dwordx4 {vr(vX)}, v5, {sr(S_X)}, s{sT0} offen")
    A(f"buffer_load_dwordx4 {vr(vX+4)}, v5, {sr(S_X)}, s{sT1} offen")
    A(f"buffer_load_dwordx4 {vr(vXB)}, v5, {sr(S_K)}, s{sT0} offen")
    A(f"buffer_load_dwordx4 {vr(vXB+4)}, v5, {sr(S_K)}, s{sT1} offen")
    for t in range(8):
        A(f"buffer_load_dwordx4 {ar(4*t)}, v{vDM+3}, {sr(S_W)}, s{sT2} offen nt")
        A(f"s_add_u32 s{sT2}, s{sT2}, {8192 if t < 7 else -7 * 8192}")
    srd(S_K, 6, 1 << 28); srd(S_V, 8, 1 << 28); srd(S_WS, 28, WS_BYTES)
    srd(S_W, 20, 1 << 23)
    srd(S_X, 16, 1 << 25)
    srd(S_O, 18, 1 << 25)
    A(f"s_cmp_ge_u32 s2, 128")
    A(f"s_cselect_b32 s{S_WO}, s22, s12"); A(f"s_cselect_b32 s{S_WO+1}, s23, s13")
    A(f"s_mov_b32 s{S_WO+2}, {hex(1 << 23)}"); A(f"s_mov_b32 s{S_WO+3}, 0x00020000")
    stamp(0)
    A(f"v_lshrrev_b32 v7, 2, v{vJ}")
    A(f"v_lshlrev_b32 v{vOK}, 8, v7")
    A(f"v_lshl_add_u32 v{vOK}, v{vG}, 6, v{vOK}")
    A(f"v_and_b32 v5, 3, v{vJ}")
    A(f"v_lshl_add_u32 v{vOK}, v5, 4, v{vOK}")
    A(f"v_lshl_add_u32 v6, v{vG}, 1, v4")
    A(f"v_lshlrev_b32 v{vOV}, 8, v6")
    A(f"v_and_b32 v5, 7, v{vJ}")
    A(f"v_lshl_add_u32 v{vOV}, v5, 4, v{vOV}")
    A(f"s_lshl_b32 s{sT0}, s3, 1"); A(f"v_lshrrev_b32 v{vW0}, 1, v{vG}"); A(f"v_add_u32 v{vW0}, s{sT0}, v{vW0}")
    A(f"v_xor_b32 v{vW0}, v{vW0}, v{vJ}"); A(f"v_lshlrev_b32 v{vW0}, 4, v{vW0}"); A(f"v_lshl_add_u32 v{vW0}, v{vG}, 11, v{vW0}")
    A(f"s_lshl_b32 s{sOFFK}, s2, 20"); A(f"s_lshl_b32 s{sT0}, s3, 12"); A(f"s_add_u32 s{sOFFK}, s{sOFFK}, s{sT0}")
    A(f"s_mov_b32 s{sOFFV}, s{sOFFK}")
    A(f"s_add_u32 s{sT0}, s{sT0}, {L_SC}")
    A(f"v_lshl_add_u32 v{vAS}, v7, 2, v{vG}")
    A(f"v_lshl_add_u32 v{vAS}, v{vAS}, 2, s{sT0}")
    A(f"v_lshl_add_u32 v{vAP}, v6, 2, s{sT0}")
    A(f"v_lshl_add_u32 v{vSL}, v{vL}, 4, s{sT0}")
    A(f"v_mov_b32 v{vMAX}, 0xff800000")
    A(f"v_lshrrev_b32 v4, 1, v{vJ}"); A(f"v_lshlrev_b32 v{vDM+2}, 8, v4")
    A(f"v_lshl_add_u32 v{vDM+2}, v{vG}, 5, v{vDM+2}")
    A(f"v_and_b32 v4, 1, v{vJ}"); A(f"v_lshl_add_u32 v{vDM+2}, v4, 4, v{vDM+2}")
    A(f"v_lshlrev_b32 v{vDM}, 9, v{vG}"); A(f"v_lshl_add_u32 v{vDM}, v{vJ}, 4, v{vDM}")
    A(f"s_lshr_b32 s{sKB}, s2, 4"); A(f"s_lshl_b32 s{sKB}, s{sKB}, 21")
    A(f"s_and_b32 s{sT0}, s2, 15"); A(f"s_lshl_b32 s{sT0}, s{sT0}, 15"); A(f"s_add_u32 s{sKB}, s{sKB}, s{sT0}")
    A(f"s_lshl_b32 s{sLD}, s3, 13"); A(f"s_add_u32 s{sKB}, s{sKB}, s{sLD}"); A(f"s_add_u32 s{sKB}, s{sKB}, {6144 * 256}")
    A(f"s_and_b32 s{sT3}, s2, 15"); A(f"s_lshl_b32 s{sT3}, s{sT3}, 19"); A(f"s_bfe_u32 s{sT0}, s2, 0x30004"); A(f"s_lshl_b32 s{sT0}, s{sT0}, 8")
    A(f"s_add_u32 s{sT3}, s{sT3}, s{sT0}"); A(f"s_add_u32 s{sWB}, s{sT3}, s{sLD}")
    A(f"s_lshl_b32 s{sWL}, s3, 10")
    if BROT: A(f"s_and_b32 s{sT1}, s{sH1}, 3"); A(f"s_lshl_b32 s{sT1}, s{sT1}, 11")
    else: A(f"s_mov_b32 s{sT1}, 0")
    build_sel()

    def ring_reg(n): return ar(4 * (n % 16))
    kcnt = [0]; vcnt = [0]
    def loadK(reg):
        m = kcnt[0] % 4; kcnt[0] += 1
        A(f"buffer_load_dwordx4 {reg}, v{vOK}, {sr(S_K)}, s{sOFFK} offen offset:{m*1024} nt")
        if m == 3: A(f"s_add_u32 s{sOFFK}, s{sOFFK}, 16384")
    def loadV(reg):
        m = vcnt[0] % 4; vcnt[0] += 1
        A(f"buffer_load_dwordx4 {reg}, v{vOV}, {sr(S_V)}, s{sOFFV} offen offset:{(m>>1)*2048+(m&1)*128} nt")
        if m == 3: A(f"s_add_u32 s{sOFFV}, s{sOFFV}, 16384")
    def qk(reg, m, d):
        A(f"v_mfma_f32_16x16x32_bf16 {vr(d)}, {reg}, {vr(QB[m])}, {'0' if m == 0 else vr(d)}")
    def post(d, off):
        A(f"v_mov_b32_dpp v{vT}, v{d} quad_perm:[0,0,0,0] {FULL}")
        for r in range(1, 4):
            A(f"v_add_f32_dpp v{vT}, v{d+r}, v{vT} quad_perm:[{r},{r},{r},{r}] {FULL}")
        A(f"v_max_f32 v{vMAX}, v{vMAX}, v{vT}")
        A(f"ds_write_b32 v{vAS}, v{vT} offset:{off}")
    def qpart(t):
        x0, d0, tt = (vX, vD, t) if t < 8 else (vXB, vACC, t - 8)
        for q in range(2):
            b = vBB + 4 * q
            for rr in range(4):
                A(f"v_perm_b32 v{b+rr}, v{x0+4*q+(tt>>1)}, v{x0+4*q+(tt>>1)}, v{vSEL+2*rr+(tt&1)}")
            A(f"v_mfma_f32_16x16x32_bf16 {vr(d0+4*q)}, {ar(4*t)}, {vr(b)}, {'0' if tt == 0 else vr(d0+4*q)}")
    def dma(voff, srdb, soff, m0base, m0imm, step, tag):
        if m0base is None:
            def issue():
                A(f"buffer_load_dwordx4 {ar(m0imm)}, v{voff}, {sr(srdb)}, s{soff} offen nt")
                A(f"s_add_u32 s{soff}, s{soff}, {step}")
            return issue
        A(f"s_add_u32 m0, s{m0base}, {m0imm}")
        def issue():
            A(f"buffer_load_dwordx4 v{voff}, {sr(srdb)}, s{soff} offen nt lds")
            A(f"s_add_u32 s{soff}, s{soff}, {step}")
        return issue
    p1 = [(vDM + 3, S_W, sT2, None, 32 + 4 * t, 8192, "q") for t in range(8)]
    def b_dma(voff, srdb, lds, second, k):
        if k % 2 == 0:
            A(f"s_add_u32 s{sT3}, s{sKB}, s{sT1}"); A(f"s_add_u32 s{sCNT}, s{sLD}, s{sT1}")
            A(f"s_add_u32 m0, s{sCNT}, {lds}")
        else:
            A(f"s_add_u32 s{sT3}, s{sT3}, {second}"); A(f"s_add_u32 m0, s{sCNT}, {lds + 1024}")
            A(f"s_add_u32 s{sT1}, s{sT1}, 2048"); A(f"s_and_b32 s{sT1}, s{sT1}, 8191")
        return lambda: A(f"buffer_load_dwordx4 v{voff}, {sr(srdb)}, s{sT3} offen nt lds")
    p1 += [("b", vDM + 2, S_X, L_R3, 128, k) for k in range(8)]
    p1 += [("b", vDM, S_O, L_R2, 256, k) for k in range(8)]
    def wo_dma(ip):
        A(f"s_add_u32 m0, s{sWL}, {L_WO + ip * 4096}")
        A(f"s_add_u32 s{sT3}, s{sWB}, {ip * 32768}")
        x = (128 if ip & 1 else 0) ^ (32 if ip >= 8 else 0)
        if x: A(f"v_xor_b32 v{vW1}, {x}, v{vW0}")
        return lambda: A(f"buffer_load_dwordx4 v{vW1 if x else vW0}, {sr(S_WO)}, s{sT3} offen nt lds")
    tdef = list(range(4 - NDEF // 4, 4)); tearly = list(range(4 - NDEF // 4))
    wo_early = sorted(i for t in tearly for i in (2*t, 2*t+1, 8+2*t, 9+2*t))
    wo_late = sorted(i for t in tdef for i in (2*t, 2*t+1, 8+2*t, 9+2*t))
    p1 += [("wo", i) for i in wo_early]
    NPOOL = 16
    tdone = 0
    LAG = max(DK) + 1
    n = 0
    def q_progress(landed):
        nonlocal tdone
        while tdone < 16 and 4 + tdone <= landed:
            qpart(tdone); tdone += 1
            if tdone == 16:
                for i, r in enumerate((vD, vD + 4, vACC, vACC + 4)): A(f"ds_write_b128 v{vSL}, {vr(r)} offset:{i*1024}")
                A("s_waitcnt lgkmcnt(0)")
                A("s_barrier")
                stamp(1)
    for p, d in enumerate(p1):
        go = wo_dma(d[1]) if d[0] == "wo" else b_dma(*d[1:]) if d[0] == "b" else dma(*d)
        dd = DP0 if p < 8 else DP[p % len(DP)]
        A(f"s_waitcnt vmcnt({dd})"); go()
        if prof3 and p % 4 == 3: lstamp()
        q_progress(12 + p - 1 - dd)
    assert tdone == 16
    def tickK():
        nonlocal n
        A(f"s_waitcnt vmcnt({DK[n % len(DK)]})"); loadK(ring_reg(n)); n += 1
        if prof3 and n % 4 == 0: lstamp()
    srd(S_O, 24, 16384)
    assert X >= LAG
    for p in range(NPOOL):
        A(f"s_waitcnt vmcnt({DK[0]})"); loadK(ar(64 + 4 * p))
        if prof3 and p % 4 == 3: lstamp()
    for _ in range(X): tickK()
    stamp(2)
    lstamp()
    A("s_barrier")
    lstamp()
    stamp(3)
    A(f"v_and_b32 v4, 3, v{vJ}")
    A(f"v_lshl_add_u32 v4, v{vG}, 2, v4")
    A(f"v_lshlrev_b32 v4, 4, v4")
    A(f"v_add_u32 v4, {L_QL}, v4")
    A(f"ds_read_b128 {vr(vBB)}, v4")
    tickK()
    for m in range(4): smask(sM + 2 * m, 0x000F000F000F000F << (4 * m))
    A("s_waitcnt lgkmcnt(0)")
    for m in range(4):
        for rr in range(4):
            A(f"v_cndmask_b32 v{QB[m]+rr}, 0, v{vBB+rr}, s[{sM+2*m}:{sM+2*m+1}]")
    side = []
    GP = NPOOL // 4
    def mk_pool(pg):
        def f():
            if pg < GP:
                for m in range(4): qk(ar(64 + 16 * pg + 4 * m), m, vACC + 4 * (pg & 1))
            if pg > 0: post(vACC + 4 * ((pg - 1) & 1), (pg - 1) * 64)
        return f
    for pg in range(GP + 1): side.append(mk_pool(pg))
    vTR = 82
    def side_tr_addr():
        A(f"v_bfe_u32 v6, v{vJ}, 1, 1"); A("v_lshlrev_b32 v4, 7, v6")
        A(f"v_lshrrev_b32 v5, 2, v{vJ}"); A("v_lshl_add_u32 v4, v5, 3, v4")
        A(f"v_lshl_add_u32 v4, v{vG}, 1, v4"); A("v_lshlrev_b32 v4, 8, v4")
        A(f"v_lshl_add_u32 v5, v5, 2, v{vG}"); A("v_lshlrev_b32 v6, 1, v6"); A("v_xor_b32 v5, v5, v6")
        A(f"s_lshl_b32 s{sT0}, s3, 2"); A(f"v_xor_b32 v5, s{sT0}, v5"); A("v_lshl_add_u32 v4, v5, 4, v4")
        A(f"v_and_b32 v5, 1, v{vJ}"); A(f"v_lshl_add_u32 v{vTR}, v5, 3, v4")
        for ch in range(1, 4): A(f"v_xor_b32 v{vTR2+ch-1}, {ch*16}, v{vTR}")
    vTR2 = 26
    def traddr(ch): return vTR if ch == 0 else vTR2 + ch - 1
    def wofrag(t, ch): return 64 + 4 * (t * 4 + ch)
    def mk_tr(lst):
        def f():
            for t, ch, a in lst:
                A(f"ds_read_b64_tr_b16 {ar(wofrag(t,ch)+2*a,2)}, v{traddr(ch)} offset:{L_WO + (32*t+a)*256}")
        return f
    rc = 0
    pend = []
    while n < 32 or n % 16 or side:
        assert rc >= n - 15, (rc, n)
        tickK()
        old = list(pend); pend.clear()
        budget = 4
        while budget > 0 and rc <= n - 1 - LAG:
            g = rc // 4
            if rc % 4 == 0 and any(d == vD + 4 * (g & 1) for d, _ in old + pend):
                for po in old + pend: post(*po)
                old = []; pend.clear()
            qk(ring_reg(rc), rc % 4, vD + 4 * (g & 1))
            if rc % 4 == 3: pend.append((vD + 4 * (g & 1), (GP + g) * 64))
            rc += 1; budget -= 1
        for po in old: post(*po)
        if budget >= 3 and side: side.pop(0)()
    assert rc == n - LAG and not side, (rc, n, len(side))
    assert len(pend) == (1 if (n - 1 - LAG) % 4 == 3 else 0)
    A(f"v_add_u32 v{vAS}, {(GP + n // 4 - 3) * 64}, v{vAS}")
    A(f"s_mov_b32 s{sCNT}, {(256 - NPOOL - n) // 16}")
    A.label("L_kloop")
    lstamp()
    for i0 in range(0, 16, G):
        for i in range(i0, i0 + G):
            A(f"s_waitcnt vmcnt({DK[i % len(DK)]})"); loadK(ring_reg(i))
        for i in range(i0, i0 + G):
            c = i - LAG
            qk(ring_reg(c), c % 4, vD + 4 * ((c // 4) & 1))
            if (c - 1) % 4 == 3: post(vD + 4 * (((c - 1) // 4) & 1), ((c - 1) // 4 + 3) * 64)
    A(f"v_add_u32 v{vAS}, 256, v{vAS}")
    A(f"s_sub_u32 s{sCNT}, s{sCNT}, 1"); A(f"s_cmp_lg_u32 s{sCNT}, 0"); A("s_cbranch_scc1 L_kloop")
    stamp(4)
    LAGV = max(DV) + 1
    if LV: LAGV = max(LV) + 1
    n = 0
    def tickT():
        nonlocal n
        dd = min(DV[n % len(DV)], max(DK))
        A(f"s_waitcnt vmcnt({dd})"); loadV(ring_reg(n)); n += 1
    for i in range(LAG + 1):
        tickT()
        c = i - LAG
        if c < 0: qk(ring_reg(c), c % 4, vD + 4 * ((c // 4) & 1))
        if (c - 1) % 4 == 3: post(vD + 4 * (((c - 1) // 4) & 1), ((c - 1) // 4 + 3) * 64)
    vS = 64
    vNM, vLS = 80, 81
    for i in range(4): A(f"ds_read_b128 {vr(vS+4*i)}, v{vSL} offset:{i*1024}")
    allreduce(vMAX, vT, "v_max_f32", [4, 8])
    A(f"v_mul_f32 v{vMAX}, s{sC}, v{vMAX}")
    A(f"v_sub_f32 v{vNM}, 0, v{vMAX}")
    for r in range(8): A(f"v_mov_b32 v{vACC+r}, 0")
    tickT()
    A("s_waitcnt lgkmcnt(0)")
    for i in range(4):
        for r in range(4): A(f"v_fma_f32 v{vS+4*i+r}, v{vS+4*i+r}, s{sC}, v{vNM}")
        for r in range(4): A(f"v_exp_f32 v{vS+4*i+r}, v{vS+4*i+r}")
        A(f"v_add_f32 v5, v{vS+4*i}, v{vS+4*i+1}"); A(f"v_add_f32 v6, v{vS+4*i+2}, v{vS+4*i+3}")
        A(f"v_add_f32 v5, v5, v6")
        A(f"v_mov_b32 v{vLS}, v5" if i == 0 else f"v_add_f32 v{vLS}, v{vLS}, v5")
        for r in range(4): A(f"v_cvt_pk_bf16_f32 v{vS+4*i+r}, v{vS+4*i+r}, v{vS+4*i+r}")
        A(f"ds_write_b128 v{vSL}, {vr(vS+4*i)} offset:{i*1024}")
        if i % 2 == 1: tickT()
    A(f"ds_read2_b32 {vr(vPP,2)}, v{vAP} offset0:0 offset1:8")
    def pv(reg, c, poff):
        beta, u = (c % 4) >> 1, c & 1
        pp = vPP + 2 * ((c // 4) & 1)
        if c % 4 == 0:
            A("s_waitcnt lgkmcnt(0)")
            A(f"ds_read2_b32 {vr(vPP + 2 * ((c // 4 + 1) & 1), 2)}, v{vAP} offset0:{poff//4} offset1:{poff//4+8}")
        if u == 0:
            for rr in range(4): A(f"v_and_b32 v{vBB+4*beta+rr}, v{pp+beta}, v{vMSK+rr}")
        A(f"v_mfma_f32_16x16x32_bf16 {vr(vACC+4*u)}, {reg}, {vr(vBB+4*beta)}, {vr(vACC+4*u)}")
    def side_stats():
        allreduce(vLS, vT, "v_add_f32", [1, 2, 4, 8])
        A(f"v_min_u32 v6, -2, v{vMAX}"); A(f"v_min_u32 v7, -2, v{vLS}")
        A(f"s_lshl_b32 s{sT0}, s3, 3"); A(f"s_add_u32 s{sT0}, s{sT0}, {L_ST}")
        A(f"v_mov_b32 v4, s{sT0}")
        A("ds_write_b64 v4, v[6:7]")
    vFW, vFR, vWA, vRO, vGO, vPO = 83, 84, 85, 86, 87, 88
    sREC, sGA, sGB, sP2, sP3, sOUT = 96, 97, 98, 99, 100, 101
    def side_tail1():
        A(f"s_lshl_b32 s{sT0}, s3, 11"); A(f"s_add_u32 s{sT0}, s{sT0}, {L_EX}")
        A(f"v_lshl_add_u32 v{vFW}, v{vL}, 4, s{sT0}")
        A(f"v_and_b32 v4, 1, v{vL}"); A("v_mul_u32_u24 v4, 40, v4")
        A(f"v_lshrrev_b32 v5, 3, v{vL}"); A("v_add_u32 v4, v4, v5"); A("v_lshlrev_b32 v4, 4, v4")
        A(f"v_bfe_u32 v6, v{vL}, 1, 2"); A("v_lshl_add_u32 v4, v6, 11, v4")
        A(f"s_lshr_b32 s{sT0}, s3, 1"); A(f"s_lshl_b32 s{sT0}, s{sT0}, 10")
        A(f"s_and_b32 s{sT1}, s3, 1"); A(f"s_lshl_b32 s{sT1}, s{sT1}, 8")
        A(f"s_add_u32 s{sT0}, s{sT0}, s{sT1}"); A(f"s_add_u32 s{sT0}, s{sT0}, {L_EX}")
        A(f"v_add_u32 v{vFR}, s{sT0}, v4")
        A(f"v_lshlrev_b32 v{vWA}, 2, v6"); A(f"v_add_u32 v{vWA}, {L_WGT}, v{vWA}")
        A(f"v_lshlrev_b32 v{vRO}, 3, v5")
    def side_tail2():
        A(f"s_mul_i32 s{sP2}, s2, {BS}"); A(f"s_add_u32 s{sP2}, s{sP2}, {BLK}")
        A(f"s_lshl_b32 s{sT0}, s3, 6"); A(f"s_add_u32 s{sREC}, s{sP2}, s{sT0}")
        A(f"s_lshl_b32 s{sT0}, s3, 9"); A(f"s_add_u32 s{sP2}, s{sP2}, s{sT0}")
        A(f"v_lshrrev_b32 v4, 2, v{vJ}"); A(f"v_lshlrev_b32 v4, 6, v4")
        A(f"v_and_b32 v5, 3, v{vJ}"); A("v_add_u32 v4, v4, v5")
        A(f"v_mul_u32_u24 v{vGO}, {BS}, v4"); A(f"v_lshl_add_u32 v{vGO}, v{vG}, 4, v{vGO}")
        A(f"s_lshr_b32 s{sT0}, s2, 7"); A(f"s_lshl_b32 s{sT0}, s{sT0}, 8")
        A(f"s_and_b32 s{sT1}, s2, 15")
        A(f"s_mul_i32 s{sGA}, s{sT1}, {4 * BS}"); A(f"s_add_u32 s{sGA}, s{sGA}, s{sT0}"); A(f"s_add_u32 s{sGA}, s{sGA}, {BLK + O_REC}")
    def side_tail3():
        A(f"v_lshrrev_b32 v4, 2, v{vJ}"); A(f"v_lshlrev_b32 v{vPO}, 7, v4"); A(f"v_lshl_add_u32 v{vPO}, v{vG}, 5, v{vPO}")
        A(f"v_and_b32 v4, 3, v{vJ}"); A(f"v_lshl_add_u32 v{vPO}, v4, 3, v{vPO}")
        A(f"s_and_b32 s{sT1}, s2, 0xf0"); A(f"s_mul_i32 s{sP3}, s{sT1}, {BS}"); A(f"s_add_u32 s{sP3}, s{sP3}, {BLK + O_P2}")
        A(f"s_and_b32 s{sT1}, s2, 15"); A(f"s_lshl_b32 s{sT0}, s{sT1}, 7"); A(f"s_add_u32 s{sP3}, s{sP3}, s{sT0}")
        A(f"s_lshl_b32 s{sT0}, s3, 4"); A(f"s_add_u32 s{sP3}, s{sP3}, s{sT0}")
        A(f"v_mul_u32_u24 v8, {BS}, v{vJ}"); A(f"v_lshl_add_u32 v8, v{vG}, 5, v8")
        A(f"s_lshr_b32 s{sOUT}, s2, 4"); A(f"s_lshl_b32 s{sOUT}, s{sOUT}, 8")
        A(f"s_lshr_b32 s{sT0}, s{sT1}, 2"); A(f"s_lshl_b32 s{sT0}, s{sT0}, 6"); A(f"s_add_u32 s{sOUT}, s{sOUT}, s{sT0}")
        A(f"s_and_b32 s{sT0}, s{sT1}, 3"); A(f"s_lshl_b32 s{sT0}, s{sT0}, 3"); A(f"s_add_u32 s{sOUT}, s{sOUT}, s{sT0}")
        A(f"s_lshl_b32 s{sT0}, s3, 2"); A(f"s_add_u32 s{sOUT}, s{sOUT}, s{sT0}")
        A(f"v_lshlrev_b32 v9, 12, v{vG}"); A(f"v_lshl_add_u32 v9, v{vJ}, 5, v9")
        smask(sM, 0x0101010101010101); smask(sM + 2, 0x0002000200020002); smask(sM + 4, 0x0003000300030003)
    side = [side_stats, side_tail1, side_tail2, side_tail3, side_tr_addr]
    trs = [(t, ch, a) for t in tearly for ch in range(4) for a in range(2)]
    for i in range(0, len(trs), TRN): side.append(mk_tr(trs[i:i + TRN]))
    rc = 0
    while n < 16 or (n % 16) or side or rc != n - LAGV:
        assert rc >= n - 15, (rc, n)
        tickT()
        budget = 4
        while budget > 0 and rc <= n - 1 - LAGV:
            pv(ring_reg(rc), rc, (rc // 4 + 1) * 64); rc += 1; budget -= 1
        if budget >= 3 and side: side.pop(0)()
    stamp(5)
    def vloop(name, iters, Dw, lag):
        A(f"s_mov_b32 s{sCNT}, {iters}")
        A.label(name)
        lstamp()
        for i0 in range(0, 16, G):
            for i in range(i0, i0 + G):
                A(f"s_waitcnt vmcnt({Dw[i % len(Dw)]})"); loadV(ring_reg(i))
            for i in range(i0, i0 + G):
                c = i - lag
                pv(ring_reg(c), c, (c // 4 + 1 + 4) * 64)
        A(f"v_add_u32 v{vAP}, 256, v{vAP}")
        A(f"s_sub_u32 s{sCNT}, s{sCNT}, 1"); A(f"s_cmp_lg_u32 s{sCNT}, 0"); A(f"s_cbranch_scc1 {name}")
    A(f"v_add_u32 v{vAP}, {(n // 4 - 4) * 64}, v{vAP}")
    tot = (256 - n) // 16
    lag = LAGV
    if LV:
        vPG, vDEC = 90, 91
        A(f"s_lshl_b32 s{sT0}, s3, 2"); A(f"s_add_u32 s{sT0}, s{sT0}, {L_PRG}"); A(f"v_mov_b32 v{vPG}, s{sT0}")
        A(f"v_mov_b32 v92, {L_PRG}")
        A(f"ds_read_b32 v{vDEC}, v92 offset:16")
        A(f"s_mov_b32 s{sCNT}, 0")
        A.label("L_vtop")
        lstamp()
        A("s_waitcnt lgkmcnt(0)")
        A(f"v_readfirstlane_b32 s{sT0}, v{vDEC}")
        A(f"v_mov_b32 v93, s{sCNT}")
        A(f"ds_write_b32 v{vPG}, v93")
        A(f"s_add_u32 s{sCNT}, s{sCNT}, 1")
        for li in range(1, len(LV)):
            A(f"s_cmp_eq_u32 s{sT0}, {li}"); A(f"s_cbranch_scc1 L_vlv{li}")
        for li, dd in enumerate(LV):
            A.label(f"L_vlv{li}")
            for i in range(16):
                A(f"s_waitcnt vmcnt({dd})"); loadV(ring_reg(i))
                c = i - LAGV
                pv(ring_reg(c), c, (c // 4 + 1 + 4) * 64)
                if i == 14: A(f"ds_read_b32 v{vDEC}, v92 offset:16")
            A(f"v_add_u32 v{vAP}, 256, v{vAP}")
            A(f"s_cmp_lt_u32 s{sCNT}, {tot}"); A("s_cbranch_scc1 L_vtop")
            if li < len(LV) - 1: A("s_branch L_vdone")
        A.label("L_vdone")
    elif NE == 0:
        vloop("L_vloop", tot, DV, LAGV)
    else:
        LAGE = max(DE) + 1
        assert LAGE >= LAGV and LAGE <= 15
        vloop("L_vloop", tot - NE, DV, LAGV)
        rcc = -LAGV
        for i in range(16):
            A(f"s_waitcnt vmcnt({DE[i % len(DE)]})"); loadV(ring_reg(i))
            if rcc <= i - LAGE:
                pv(ring_reg(rcc), rcc, (rcc // 4 + 1 + 4) * 64); rcc += 1
        assert rcc == 16 - LAGE
        A(f"v_add_u32 v{vAP}, 256, v{vAP}")
        if NE > 1: vloop("L_vloop2", NE - 1, DE, LAGE)
        lag = LAGE
    rem = list(range(-lag, 0)); late = list(wo_late); k = 0
    while rem:
        if late:
            go = wo_dma(late.pop(0))
            A(f"s_waitcnt vmcnt({DW})"); go()
            while rem and rem[0] <= k - DW - 1:
                c = rem.pop(0); pv(ring_reg(c), c, (c // 4 + 1 + 4) * 64)
            k += 1
        else:
            c = rem.pop(0)
            A(f"s_waitcnt vmcnt({k - 1 - c})")
            pv(ring_reg(c), c, (c // 4 + 1 + 4) * 64)
    for _ in range(min(BURST, len(late))): wo_dma(late.pop(0))()
    stamp(6)
    lstamp()
    A(f"ds_write_b128 v{vFW}, {vr(vACC)}")
    A(f"ds_write_b128 v{vFW}, {vr(vACC+4)} offset:1024")
    A(f"s_mov_b32 s{sSPIN}, {spin}")
    A("s_waitcnt lgkmcnt(0)")
    A("s_barrier")
    A(f"ds_read_b128 v[4:7], v{vFR}")
    A(f"ds_read_b32 v{vT}, v{vWA}")
    vGA = 64
    def gpoll():
        for t in range(4):
            A(f"buffer_load_dwordx4 {vr(vGA+4*t)}, v{vGO}, {sr(S_WS)}, s{sGA} offen offset:{t*64} {pfl}")
    A("s_waitcnt lgkmcnt(0)")
    for r in range(4): A(f"v_mul_f32 v{4+r}, v{4+r}, v{vT}")
    for mode in ("quad_perm:[1,0,3,2]", "quad_perm:[2,3,0,1]", "row_half_mirror"):
        for r in range(4): A(f"v_add_f32_dpp v{4+r}, v{4+r}, v{4+r} {mode} {FULL}")
    A("v_cvt_pk_bf16_f32 v4, v4, v5"); A("v_cvt_pk_bf16_f32 v5, v6, v7")
    A("v_min_u32 v4, -2, v4"); A("v_min_u32 v5, -2, v5")
    A(f"s_mov_b64 exec, s[{sM}:{sM+1}]")
    A(f"buffer_store_dwordx2 v[4:5], v{vRO}, {sr(S_WS)}, s{sREC} offen offset:{O_REC} {sfl}")
    A("s_mov_b64 exec, -1")
    stamp(7)
    while late:
        go = wo_dma(late.pop(0))
        A(f"s_waitcnt vmcnt({DW})"); go()
    gpoll()
    if NDEF:
        A("s_waitcnt vmcnt(4)")
        A("s_barrier")
        for ti, t in enumerate(tdef):
            if ti: A("s_waitcnt lgkmcnt(7)")
            mk_tr([(t, ch, a) for ch in range(4) for a in range(2)])()
        lstamp()
    A("s_branch L_gchk")
    A.label("L_gather")
    if gsleep: A(f"s_sleep {gsleep}")
    gpoll()
    A.label("L_gchk")
    A(f"s_waitcnt vmcnt(0)")
    A(f"v_max3_u32 v4, v{vGA}, v{vGA+1}, v{vGA+2}"); A(f"v_max3_u32 v5, v{vGA+3}, v{vGA+4}, v{vGA+5}")
    for k in range(6, 14, 4):
        A(f"v_max3_u32 v4, v4, v{vGA+k}, v{vGA+k+1}"); A(f"v_max3_u32 v5, v5, v{vGA+k+2}, v{vGA+k+3}")
    A(f"v_max3_u32 v4, v4, v{vGA+14}, v{vGA+15}"); A("v_max_u32 v4, v4, v5")
    A(f"v_cmp_eq_u32 s[{sE}:{sE+1}], -1, v4")
    A(f"s_sub_u32 s{sSPIN}, s{sSPIN}, 1"); A("s_cbranch_scc1 L_gdone")
    A(f"s_and_b64 exec, exec, s[{sE}:{sE+1}]")
    A("s_cbranch_scc1 L_gather")
    A.label("L_gdone")
    A("s_mov_b64 exec, -1")
    stamp(8)
    lstamp()
    vO = 112
    for t in range(4):
        if tdef and t == tdef[0]: A("s_waitcnt lgkmcnt(0)")
        for ch in range(4):
            A(f"v_mfma_f32_16x16x32_bf16 {vr(vO+4*ch)}, {vr(vGA+4*t)}, {ar(wofrag(t,ch))}, {'0' if t == 0 else vr(vO+4*ch)}")
    A(f"s_mov_b32 s{sSPIN}, {spin}")
    for c2 in range(2):
        o = vO + 8 * c2
        A(f"v_add_f32 v{4+c2}, v{o}, v{o+1}"); A(f"v_add_f32 v{o+2}, v{o+2}, v{o+3}")
        A(f"v_add_f32 v{o+4}, v{o+4}, v{o+5}"); A(f"v_add_f32 v{o+6}, v{o+6}, v{o+7}")
    for c2 in range(2):
        o = vO + 8 * c2
        A(f"v_add_f32_dpp v{4+c2}, v{o+2}, v{4+c2} row_ror:8 row_mask:0xf bank_mask:0x3")
        A(f"v_add_f32_dpp v{4+c2}, v{o+4}, v{o+6} row_ror:8 row_mask:0xf bank_mask:0xc")
    A("v_min_u32 v4, -2, v4"); A("v_min_u32 v5, -2, v5")
    A(f"buffer_store_dwordx2 v[4:5], v{vPO}, {sr(S_WS)}, s{sP2} offen offset:{O_P2} {sfl}")
    stamp(9)
    def dump():
        A(f"s_lshl_b32 s{sT0}, s2, 2"); A(f"s_add_u32 s{sT0}, s{sT0}, s3"); A(f"s_lshl_b32 s{sT0}, s{sT0}, 8"); A(f"s_add_u32 s{sT0}, s{sT0}, {TS}")
        A(f"v_lshlrev_b32 v62, 2, v{vL}")
        A(f"buffer_store_dword v63, v62, {sr(S_WS)}, s{sT0} offen")
    A("s_cmp_ge_u32 s3, 2")
    A("s_cbranch_scc1 L_dump" if prof2 else "s_cbranch_scc1 L_end")
    for _ in range(PIPE - 1):
        A(f"buffer_load_dwordx4 v[12:15], v8, {sr(S_WS)}, s{sP3} offen {pfl}")
        A(f"s_sleep {tsleep}")
    A.label("L_s3")
    if s3sleep: A(f"s_sleep {s3sleep}")
    A(f"buffer_load_dwordx4 v[12:15], v8, {sr(S_WS)}, s{sP3} offen {pfl}")
    A(f"s_waitcnt vmcnt({PIPE - 1})")
    A("v_max3_u32 v10, v12, v13, v14"); A("v_max_u32 v10, v10, v15")
    A(f"v_cmp_eq_u32 s[{sE}:{sE+1}], -1, v10")
    A(f"s_sub_u32 s{sSPIN}, s{sSPIN}, 1"); A("s_cbranch_scc1 L_s3done")
    A(f"s_and_b64 exec, exec, s[{sE}:{sE+1}]")
    A("s_cbranch_scc1 L_s3")
    A.label("L_s3done")
    A("s_mov_b64 exec, -1")
    for r in range(4): A(f"v_add_f32_dpp v{16+r}, v{12+r}, v{12+r} row_ror:8 {FULL}")
    for rot in (4, 2, 1):
        for r in range(4): A(f"v_add_f32_dpp v{16+r}, v{16+r}, v{16+r} row_ror:{rot} {FULL}")
    A("v_cvt_pk_bf16_f32 v4, v16, v18"); A("v_cvt_pk_bf16_f32 v5, v17, v19")
    A(f"v_cndmask_b32 v4, v4, v5, s[{sM+2}:{sM+3}]")
    A(f"s_mov_b64 exec, s[{sM+4}:{sM+5}]")
    A(f"buffer_store_dword v4, v9, {sr(S_O)}, s{sOUT} offen {osc1}")
    A("s_mov_b64 exec, -1")
    stamp(10)
    if prof2:
        A.label("L_dump"); lstamp(); dump()
    A("s_endpgm")

    A.label("L_helper")
    in_helper[0] = True
    S_DBG = S_O
    hO1, hO2, hO3 = 21, 22, 23
    sBLK, sGRP, sFL = 96, 97, 66
    def poll(name, load, reduce_to_v6, cmpop, cmpval, sl, pre_sleep=False):
        A(f"s_mov_b32 s{sSPIN}, {spin}")
        A.label(name)
        if pre_sleep: A(f"s_sleep {sl}")
        load()
        reduce_to_v6()
        A(f"{cmpop} s[{sE}:{sE+1}], {cmpval}, v6")
        A(f"s_cmp_eq_u64 s[{sE}:{sE+1}], 0"); A(f"s_cbranch_scc1 {name}_ok")
        spin_tail(name, sl)
        A.label(name + "_ok")
    A(f"v_lshlrev_b32 v{hO1}, 4, v{vL}")
    A(f"s_mul_i32 s{sBLK}, s2, {BS}"); A(f"s_add_u32 s{sBLK}, s{sBLK}, {BLK}")
    A(f"s_and_b32 s{sGRP}, s2, 0xf0")
    A("s_waitcnt lgkmcnt(0)")
    srd(S_WS, 28, WS_BYTES); srd(S_DBG, 26, 256)
    stamp(0)
    A("s_cmp_ge_u32 s2, 8"); A("s_cbranch_scc1 L_noinit")
    for r in range(4): A(f"v_mov_b32 v{4+r}, 0")
    A(f"s_lshl_b32 s{sT0}, s2, 12"); A(f"s_add_u32 s{sT0}, s{sT0}, {FLG}"); A(f"s_lshl_b32 s{sT1}, s2, 2")
    for i in range(4):
        A(f"buffer_store_dwordx4 v[4:7], v{hO1}, {sr(S_WS)}, s{sT0} offen offset:{i*1024} sc1")
    if LV:
        A(f"s_add_u32 s{sT0}, s{sT0}, {CNT - FLG}")
        for i in range(4):
            A(f"buffer_store_dwordx4 v[4:7], v{hO1}, {sr(S_WS)}, s{sT0} offen offset:{i*1024} sc1")
    A("v_mov_b32 v5, 1")
    A("s_waitcnt vmcnt(0)")
    A("s_mov_b64 exec, 1")
    A(f"buffer_store_dword v5, v4, {sr(S_DBG)}, s{sT1} offen sc1")
    A("s_mov_b64 exec, -1")
    A.label("L_noinit")
    for r in range(4): A(f"v_mov_b32 v{4+r}, -1")
    if "i" not in skip: A(f"buffer_store_dwordx4 v[4:7], v{hO1}, {sr(S_WS)}, s{sBLK} offen sc1")
    if "i" not in skip: A(f"buffer_store_dwordx4 v[4:7], v{hO1}, {sr(S_WS)}, s{sBLK} offen offset:1024 sc1")
    if preBP:
        A(f"s_lshl_b32 s{sT0}, s2, 11"); A(f"s_add_u32 s{sT0}, s{sT0}, {BP}")
        for i in range(2): A(f"buffer_store_dwordx4 v[4:7], v{hO1}, {sr(S_WS)}, s{sT0} offen offset:{i*1024} sc1")
    smask(sE, (1 << 56) - 1)
    A(f"s_mov_b64 exec, s[{sE}:{sE+1}]")
    if "i" not in skip: A(f"buffer_store_dwordx4 v[4:7], v{hO1}, {sr(S_WS)}, s{sBLK} offen offset:2048 sc1")
    A("s_mov_b64 exec, -1")
    A(f"v_mov_b32 v{hO2}, {L_ST}")
    A(f"ds_write_b128 v{hO2}, v[4:7]"); A(f"ds_write_b128 v{hO2}, v[4:7] offset:16")
    if LV:
        for r in range(4): A(f"v_mov_b32 v{30+r}, 0")
        A(f"ds_write_b128 v{hO2}, v[30:33] offset:{L_PRG - L_ST}"); A(f"ds_write_b32 v{hO2}, v30 offset:{L_PRG - L_ST + 16}")
    build_sel()
    A(f"v_lshrrev_b32 v4, 3, v{vJ}"); A(f"v_lshlrev_b32 v{hO2}, 9, v4")
    A(f"v_lshl_add_u32 v{hO2}, v{vG}, 7, v{hO2}")
    A(f"v_and_b32 v7, 7, v{vJ}"); A(f"v_lshl_add_u32 v{hO2}, v7, 4, v{hO2}")
    A(f"v_add_u32 v{hO3}, {L_SC}, v{hO1}")
    A(f"s_lshl_b32 s{sFL}, s2, 7"); A(f"s_add_u32 s{sFL}, s{sFL}, {FLG}")
    hQW, hQG, hFP, hD8, hQG2, hQW2 = 24, 25, 20, 26, 27, 28
    A(f"v_lshlrev_b32 v{hFP}, 7, v7")
    A(f"v_lshlrev_b32 v{hD8}, 2, v7")
    A(f"v_lshlrev_b32 v{hQW2}, 6, v4"); A(f"v_lshl_add_u32 v{hQW2}, v7, 1, v{hQW2}"); A(f"v_add_u32 v{hQW2}, {L_QBL}, v{hQW2}")
    A(f"v_lshlrev_b32 v{hQG2}, 11, v{vG}"); A(f"v_lshl_add_u32 v{hQG2}, v{vJ}, 4, v{hQG2}")
    A(f"v_lshrrev_b32 v4, 5, v{vL}"); A(f"v_and_b32 v5, 31, v{vL}")
    A(f"v_lshlrev_b32 v{hQG}, 11, v4"); A(f"v_lshl_add_u32 v{hQG}, v5, 4, v{hQG}")
    A("v_lshrrev_b32 v5, 3, v5"); A(f"v_lshlrev_b32 v{hQW}, 6, v5")
    A(f"v_lshl_add_u32 v{hQW}, v7, 1, v{hQW}"); A(f"v_add_u32 v{hQW}, {L_QL}, v{hQW}")
    A("v_mov_b32 v4, 1"); A("v_mov_b32 v5, 0")
    A(f"s_lshl_b32 s{sT0}, s2, 11"); A(f"s_add_u32 s{sT1}, s{sT0}, {QP_B}")
    A(f"s_lshl_b32 s{sT2}, s{sH}, 10"); A(f"s_add_u32 s{sT2}, s{sT2}, {FLG}")
    A(f"s_lshl_b32 s{sT3}, s{sH}, 14"); A(f"s_lshl_b32 s{sCNT}, s{sB}, 9"); A(f"s_add_u32 s{sT3}, s{sT3}, s{sCNT}")
    A(f"s_lshl_b32 s{sCNT}, s{sS}, 8"); A(f"s_add_u32 s{sCNT}, s{sCNT}, s{sT3}"); A(f"s_add_u32 s{sCNT}, s{sCNT}, {QP_B}")
    A("s_waitcnt lgkmcnt(0)")
    A("s_barrier")
    stamp(1)
    for i in range(4):
        for v in range(4): A(f"ds_read_b128 {vr(64+16*i+4*v)}, v{hO3} offset:{v*4096+i*1024}")
        if i == 1: A("s_waitcnt lgkmcnt(4)")
    for i in range(4):
        b = 64 + 16 * i
        A(f"s_waitcnt lgkmcnt({12 - 4 * i})")
        for r in range(4):
            A(f"v_add_f32 v{b+r}, v{b+r}, v{b+4+r}"); A(f"v_add_f32 v{b+8+r}, v{b+8+r}, v{b+12+r}")
        for r in range(4): A(f"v_add_f32 v{b+r}, v{b+r}, v{b+8+r}")
        if "q" not in skip: A(f"buffer_store_dwordx4 {vr(b)}, v{hO2}, {sr(S_WS)}, s{sT1 if i >= 2 else sT0} offen offset:{(i&1)*1024} {qfl}")
    poll("L_pi", lambda: (A(f"buffer_load_dword v6, v{hD8}, {sr(S_DBG)}, 0 offen sc1"), A("s_waitcnt vmcnt(0)")), lambda: None, "v_cmp_ne_u32", 1, qsleep)
    A("s_mov_b64 exec, 1")
    A(f"buffer_store_dword v4, v5, {sr(S_WS)}, s{sFL} offen sc1")
    A("s_mov_b64 exec, -1")
    stamp(2)
    for _ in range(qpre): A("s_sleep 32")
    poll("L_pq", lambda: (A(f"buffer_load_dword v6, v{hFP}, {sr(S_WS)}, s{sT2} offen sc1"), A("s_waitcnt vmcnt(0)")), lambda: None, "v_cmp_ne_u32", 1, qsleep)
    stamp(3)
    for i in range(4):
        if "g" not in skip: A(f"buffer_load_dwordx4 {vr(64+4*i)}, v{hQG}, {sr(S_WS)}, s{sT3} offen sc1")
        if i < 3: A(f"s_add_u32 s{sT3}, s{sT3}, 4096")
    if "g" not in skip: A(f"buffer_load_dwordx4 {vr(80)}, v{hQG2}, {sr(S_WS)}, s{sCNT} offen sc1")
    A(f"s_add_u32 s{sCNT}, s{sCNT}, 8192")
    if "g" not in skip: A(f"buffer_load_dwordx4 {vr(84)}, v{hQG2}, {sr(S_WS)}, s{sCNT} offen sc1")
    A("s_waitcnt vmcnt(2)")
    for r in range(4):
        A(f"v_add_f32 v{64+r}, v{64+r}, v{68+r}"); A(f"v_add_f32 v{72+r}, v{72+r}, v{76+r}")
    for r in range(4): A(f"v_add_f32 v{64+r}, v{64+r}, v{72+r}")
    for r in range(4): A(f"v_mov_b32 v{68+r}, v{64+r}")
    for r in range(4): A(f"v_permlane32_swap_b32 v{68+r}, v{64+r}")
    for r in range(4): A(f"v_add_f32 v{64+r}, v{64+r}, v{68+r}")
    def write_b16(addr, b, off):
        A(f"v_cvt_pk_bf16_f32 v{b}, v{b}, v{b+1}"); A(f"v_cvt_pk_bf16_f32 v{b+2}, v{b+2}, v{b+3}")
        A(f"ds_write_b16 v{addr}, v{b} offset:{off}"); A(f"ds_write_b16_d16_hi v{addr}, v{b} offset:{off+16}")
        A(f"ds_write_b16 v{addr}, v{b+2} offset:{off+32}"); A(f"ds_write_b16_d16_hi v{addr}, v{b+2} offset:{off+48}")
    write_b16(hQW, 64, 0)
    A("s_waitcnt vmcnt(0)")
    for r in range(4): A(f"v_add_f32 v{80+r}, v{80+r}, v{84+r}")
    for r in range(4): allreduce(80 + r, 84 + r, "v_add_f32", [])
    write_b16(hQW2, 80, 0)
    A(f"v_and_b32 v4, 0x70, v{hO1}"); A(f"v_add_u32 v5, {L_QBL}, v4")
    A("ds_read_b128 v[80:83], v5")
    A("s_waitcnt lgkmcnt(0)")
    for r in range(4): A(f"v_min_u32 v{80+r}, -2, v{80+r}")
    A("s_mov_b64 exec, 0xff")
    A(f"buffer_store_dwordx4 v[80:83], v4, {sr(S_WS)}, s{sBLK} offen offset:{O_QB2} sc1")
    A("s_mov_b64 exec, -1")
    hR = 23
    A(f"v_add_u32 v{hR}, {L_R2}, v{hO1}")
    stamp(4)
    A("s_barrier")
    def lds_frags(off):
        for k in range(32):
            A(f"ds_read_b128 {ar(4*k)}, v{hR} offset:{off + k*1024}")
            if k % 8 == 7: A("s_waitcnt lgkmcnt(0)")
    lds_frags(L_R3 - L_R2)
    A(f"v_add_u32 v4, s{sGRP}, v{vJ}")
    A(f"v_lshrrev_b32 v5, 2, v{vJ}"); A("v_lshlrev_b32 v5, 6, v5")
    A(f"v_and_b32 v7, 3, v{vJ}"); A("v_add_u32 v5, v5, v7")
    A(f"s_and_b32 s{sT0}, s2, 15"); A(f"s_lshl_b32 s{sT0}, s{sT0}, 2"); A(f"v_add_u32 v5, s{sT0}, v5")
    smask(sE, 0xFFFF0000FFFF0000)
    A(f"v_cndmask_b32 v4, v4, v5, s[{sE}:{sE+1}]"); A("v_lshlrev_b32 v4, 7, v4")
    A(f"s_mov_b32 s{sT1}, {FLG}")
    if "a" not in skip: poll("L_pa", lambda: (A(f"buffer_load_dword v6, v4, {sr(S_WS)}, s{sT1} offen sc1"), A("s_waitcnt vmcnt(0)")), lambda: None, "v_cmp_ne_u32", 1, hsleep)
    stamp(5)
    hETA = 28
    sGB_ = 98
    A(f"s_mul_i32 s{sGB_}, s{sGRP}, {BS}"); A(f"s_add_u32 s{sGB_}, s{sGB_}, {BLK}")
    A(f"v_bfe_u32 v4, v{vJ}, 1, 2"); A(f"v_lshrrev_b32 v5, 3, v{vJ}"); A(f"v_lshl_add_u32 v{hETA}, v4, 1, v5")
    A(f"v_mul_u32_u24 v4, {2 * BS}, v{hETA}"); A(f"v_lshl_add_u32 v4, v{vG}, 5, v4")
    A(f"v_and_b32 v5, 1, v{vJ}"); A("v_lshl_add_u32 v4, v5, 4, v4")
    hQ = 30
    def ldq():
        A(f"buffer_load_dwordx4 {vr(hQ)}, v4, {sr(S_WS)}, s{sGB_} offen offset:{O_QB2} sc1")
        A(f"buffer_load_dwordx4 {vr(hQ+4)}, v4, {sr(S_WS)}, s{sGB_} offen offset:{O_QB2 + BS} sc1")
        A("s_waitcnt vmcnt(0)")
    def redq():
        A(f"v_max3_u32 v6, v{hQ}, v{hQ+1}, v{hQ+2}"); A(f"v_max3_u32 v6, v6, v{hQ+3}, v{hQ+4}")
        A(f"v_max3_u32 v6, v6, v{hQ+5}, v{hQ+6}"); A(f"v_max_u32 v6, v6, v{hQ+7}")
    poll("L_q2", ldq, redq, "v_cmp_eq_u32", -1, hsleep)
    stamp(6)
    hS = 64
    hDD = 38
    def postB(g8):
        d = hDD + 4 * (g8 & 1)
        for r2 in range(2):
            A(f"v_mov_b32_dpp v{hS+2*g8+r2}, v{d+2*r2} quad_perm:[0,0,2,2] {FULL}")
            A(f"v_add_f32_dpp v{hS+2*g8+r2}, v{d+2*r2+1}, v{hS+2*g8+r2} quad_perm:[1,1,3,3] {FULL}")
    for g8 in range(16):
        d = hDD + 4 * (g8 & 1)
        A(f"v_mfma_f32_16x16x32_bf16 {vr(d)}, {ar(8*g8)}, {vr(hQ)}, 0")
        A(f"v_mfma_f32_16x16x32_bf16 {vr(d)}, {ar(8*g8+4)}, {vr(hQ+4)}, {vr(d)}")
        if g8 > 0: postB(g8 - 1)
    postB(15)
    lds_frags(0)
    hM, hL, hNM = 46, 47, 48
    A(f"v_max_f32 v{hM}, v{hS}, v{hS+1}")
    for k in range(2, 32, 2): A(f"v_max3_f32 v{hM}, v{hM}, v{hS+k}, v{hS+k+1}")
    allreduce(hM, 4, "v_max_f32", [])
    A(f"v_mul_f32 v{hM}, s{sC}, v{hM}"); A(f"v_sub_f32 v{hNM}, 0, v{hM}")
    for k in range(32): A(f"v_fma_f32 v{hS+k}, v{hS+k}, s{sC}, v{hNM}")
    for k in range(32): A(f"v_exp_f32 v{hS+k}, v{hS+k}")
    A(f"v_add_f32 v{hL}, v{hS}, v{hS+1}")
    for k in range(2, 32): A(f"v_add_f32 v{hL}, v{hL}, v{hS+k}")
    allreduce(hL, 4, "v_add_f32", [])
    for k in range(32): A(f"v_cvt_pk_bf16_f32 v{hS+k}, v{hS+k}, v{hS+k}")
    hOB = 96
    hBB = 50
    cnt = 0
    for k in range(32):
        for q in range(4):
            b = hBB + 4 * (cnt & 1); cnt += 1
            for rr in range(4):
                if q == rr: A(f"v_and_b32 v{b+rr}, v{hS+k}, v{vMSK+rr}")
                elif q > rr: A(f"v_and_b32_dpp v{b+rr}, v{hS+k}, v{vMSK+rr} row_shl:{2*(q-rr)} {FULL} bound_ctrl:0")
                else: A(f"v_and_b32_dpp v{b+rr}, v{hS+k}, v{vMSK+rr} row_shr:{2*(rr-q)} {FULL} bound_ctrl:0")
            A(f"v_mfma_f32_16x16x32_bf16 {vr(hOB+4*q)}, {ar(4*k)}, {vr(b)}, {'0' if k == 0 else vr(hOB+4*q)}")
    A(f"v_rcp_f32 v7, v{hL}"); A(f"v_log_f32 v{hL}, v{hL}"); A(f"v_add_f32 v{hM}, v{hM}, v{hL}"); A(f"v_min_u32 v{hM}, -2, v{hM}")
    A(f"v_lshrrev_b32 v4, 1, v{hO2}")
    A(f"s_lshl_b32 s{sT0}, s2, 11"); A(f"s_add_u32 s{sT0}, s{sT0}, {BP}")
    for q in range(4):
        o = hOB + 4 * q
        A(f"v_mov_b32_dpp v5, v7 row_newbcast:{2*q} row_mask:0xf bank_mask:0x3")
        A(f"v_mov_b32_dpp v5, v7 row_newbcast:{8+2*q} row_mask:0xf bank_mask:0xc")
        for r in range(4): A(f"v_mul_f32 v{o+r}, v{o+r}, v5")
        A(f"v_cvt_pk_bf16_f32 v{o}, v{o}, v{o+1}"); A(f"v_cvt_pk_bf16_f32 v{o+1}, v{o+2}, v{o+3}")
        if "b" not in skip: A(f"buffer_store_dwordx2 {vr(o,2)}, v4, {sr(S_WS)}, s{sT0} offen offset:{q*512} {bfl}")
    A(f"v_lshlrev_b32 v4, 2, v{hETA}")
    A("s_waitcnt vmcnt(0)")
    A("s_mov_b64 exec, 0x5555")
    if "s" not in skip: A(f"buffer_store_dword v{hM}, v4, {sr(S_WS)}, s{sBLK} offen offset:{O_BST} sc1")
    A("s_mov_b64 exec, -1")
    stamp(7)
    A(f"v_mul_u32_u24 v4, {BS}, v{vJ}")
    A(f"s_and_b32 s{sT1}, s{sH}, 7"); A(f"s_lshl_b32 s{sT0}, s{sT1}, 2"); A(f"s_add_u32 s{sT0}, s{sT0}, s{sGB_}")
    for _ in range(l2pre): A("s_sleep 32")
    if "s" not in skip: poll("L_l2", lambda: (A(f"buffer_load_dword v6, v4, {sr(S_WS)}, s{sT0} offen offset:{O_BST} sc1"), A("s_waitcnt vmcnt(0)")), lambda: None, "v_cmp_eq_u32", -1, l2sleep, pre_sleep=True)
    A(f"v_lshlrev_b32 v5, 11, v{vJ}"); A(f"v_lshl_add_u32 v5, v{vG}, 4, v5")
    A(f"s_lshl_b32 s{sT0}, s{sGRP}, 11"); A(f"s_and_b32 s{sT1}, s2, 15"); A(f"s_lshl_b32 s{sT1}, s{sT1}, 7")
    A(f"s_add_u32 s{sT0}, s{sT0}, s{sT1}"); A(f"s_add_u32 s{sT0}, s{sT0}, {BP}")
    for i in range(2):
        if "l" not in skip: A(f"buffer_load_dwordx4 {vr(80+4*i)}, v5, {sr(S_WS)}, s{sT0} offen offset:{i*64} sc1")
    A("v_mov_b32 v7, v6")
    for r in (8, 4, 2, 1): A(f"v_max_f32_dpp v7, v7, v7 row_ror:{r} {FULL}")
    A("v_sub_f32 v6, v6, v7"); A("v_exp_f32 v6, v6"); A("v_mov_b32 v7, v6")
    for r in (8, 4, 2, 1): A(f"v_add_f32_dpp v7, v7, v7 row_ror:{r} {FULL}")
    A("v_rcp_f32 v7, v7"); A("v_mul_f32 v6, v6, v7")
    A("s_waitcnt vmcnt(0)")
    for r in range(8):
        A(f"v_lshlrev_b32 v{64+2*r}, 16, v{80+r}"); A(f"v_and_b32 v{65+2*r}, 0xffff0000, v{80+r}")
    for r in range(16): A(f"v_mul_f32 v{64+r}, v{64+r}, v6")
    for rot in (8, 4, 2, 1):
        for r in range(16): A(f"v_add_f32_dpp v{64+r}, v{64+r}, v{64+r} row_ror:{rot} {FULL}")
    smask(sE, 0x0001000100010001)
    for r in range(8):
        A(f"v_cvt_pk_bf16_f32 v{80+r}, v{64+2*r}, v{65+2*r}")
        A(f"v_min_u32 v{80+r}, -2, v{80+r}"); A(f"v_cndmask_b32 v{80+r}, 0, v{80+r}, s[{sE}:{sE+1}]")
    A(f"v_and_b32 v4, 1, v{vJ}"); A(f"v_xor_b32 v4, s{sS}, v4"); A("v_lshlrev_b32 v4, 7, v4"); A(f"v_lshl_add_u32 v4, v{vG}, 4, v4")
    smask(sE, 0x0003000300030003)
    A(f"s_mov_b64 exec, s[{sE}:{sE+1}]")
    for i in range(2):
        if "r" not in skip: A(f"buffer_store_dwordx4 {vr(80+4*i)}, v4, {sr(S_WS)}, s{sBLK} offen offset:{O_REC + 256 + i*64} sc1")
    A("s_mov_b64 exec, -1")
    stamp(8)
    A(f"v_and_b32 v4, 3, v{vL}"); A("v_lshlrev_b32 v5, 3, v4"); A(f"v_add_u32 v5, {L_ST}, v5")
    hm, hl = 58, 59
    poll("L_st", lambda: (A(f"ds_read_b64 {vr(hm,2)}, v5"), A("s_waitcnt lgkmcnt(0)")), lambda: A(f"v_max_u32 v6, v{hm}, v{hl}"), "v_cmp_eq_u32", -1, hsleep)
    hMW, hLW, hZ = 60, 61, 20
    A(f"v_mov_b32 v{hMW}, v{hm}")
    for mode in ("quad_perm:[1,0,3,2]", "quad_perm:[2,3,0,1]"): A(f"v_max_f32_dpp v{hMW}, v{hMW}, v{hMW} {mode} {FULL}")
    A(f"v_sub_f32 v6, v{hm}, v{hMW}"); A("v_exp_f32 v6, v6"); A(f"v_mul_f32 v{hLW}, v6, v{hl}")
    for mode in ("quad_perm:[1,0,3,2]", "quad_perm:[2,3,0,1]"): A(f"v_add_f32_dpp v{hLW}, v{hLW}, v{hLW} {mode} {FULL}")
    A(f"v_min_u32 v6, -2, v{hMW}"); A(f"v_min_u32 v7, -2, v{hLW}")
    A(f"v_mov_b32 v{hZ}, 0")
    A("s_mov_b64 exec, 1")
    A(f"buffer_store_dwordx2 v[6:7], v{hZ}, {sr(S_WS)}, s{sBLK} offen offset:{O_AST} sc1")
    A("s_mov_b64 exec, -1")
    stamp(9)
    def weights():
        A(f"s_xor_b32 s{sT0}, s2, 1"); A(f"s_mul_i32 s{sT0}, s{sT0}, {BS}"); A(f"s_add_u32 s{sT0}, s{sT0}, {BLK}")
        poll("L_ps", lambda: (A(f"buffer_load_dwordx2 v[36:37], v{hZ}, {sr(S_WS)}, s{sT0} offen offset:{O_AST} sc1"), A("s_waitcnt vmcnt(0)")), lambda: A("v_max_u32 v6, v36, v37"), "v_cmp_eq_u32", -1, psleep if not LV else 16, pre_sleep=not LV)
        A(f"v_max_f32 v4, v{hMW}, v36")
        A(f"v_sub_f32 v5, v{hMW}, v4"); A("v_sub_f32 v6, v36, v4"); A(f"v_sub_f32 v7, v{hm}, v4")
        A("v_exp_f32 v5, v5"); A("v_exp_f32 v6, v6"); A("v_exp_f32 v7, v7")
        A(f"v_mul_f32 v5, v5, v{hLW}"); A("v_fmac_f32 v5, v6, v37")
        A("v_rcp_f32 v5, v5"); A("v_mul_f32 v7, v7, v5")
        A(f"v_and_b32 v4, 3, v{vL}"); A("v_lshlrev_b32 v4, 2, v4"); A(f"v_add_u32 v4, {L_WGT}, v4")
        A("ds_write_b32 v4, v7")

    if not LV: weights()
    elif TAU is None:
        ngrp = 256 // NG
        sCA = 99
        if GX: A(f"s_and_b32 s{sCA}, s2, {ngrp - 1}")
        else: A(f"s_lshr_b32 s{sCA}, s2, {int(math.log2(NG))}")
        A(f"s_mul_i32 s{sCA}, s{sCA}, {CS}"); A(f"s_add_u32 s{sCA}, s{sCA}, {CNT}")
        A(f"v_mov_b32 v30, {L_PRG}")
        ms = MS or list(range(0, LASTM + 1, PER))
        assert SAMEL or len(ms) * ngrp * CS <= 32768
        for mi, it in enumerate(ms):
            if it > 0:
                A(f"s_mov_b32 s{sSPIN}, {spin}")
                A.label(f"L_cm{mi}")
                A("ds_read_b128 v[32:35], v30")
                A("s_waitcnt lgkmcnt(0)")
                A("v_add3_u32 v32, v32, v33, v34"); A("v_add_u32 v32, v32, v35")
                A(f"v_readfirstlane_b32 s{sT0}, v32")
                A(f"s_cmp_ge_u32 s{sT0}, {4 * it - 1}"); A(f"s_cbranch_scc1 L_cm{mi}_ok")
                spin_tail(f"L_cm{mi}", csleep)
                A.label(f"L_cm{mi}_ok")
            A("v_mov_b32 v32, 1")
            A("s_mov_b64 exec, 1")
            A(f"buffer_atomic_add v32, v{hZ}, {sr(S_WS)}, s{sCA} offen {afl}")
            A("s_mov_b64 exec, -1")
            A(f"s_add_u32 s{sCA}, s{sCA}, {4 if SAMEL else ngrp * CS}")
            A(f"s_mov_b32 s{sT1}, 0")
            A("s_waitcnt vmcnt(0)")
            A(f"v_readfirstlane_b32 s{sT0}, v32")
            for li, t in enumerate(THR):
                A(f"s_cmp_ge_u32 s{sT0}, {int(t * NG)}"); A(f"s_cselect_b32 s{sT1}, {li+1}, s{sT1}")
            A(f"v_mov_b32 v33, s{sT1}"); A("ds_write_b32 v30, v33 offset:16")
            if mi == min(2, len(ms) - 1): weights()
    else:
        sCA, sMI, sLN, sOW = 99, 100, 101, 65
        A(f"s_mul_i32 s{sLN}, s{sKS}, 3840"); A(f"s_add_u32 s{sLN}, s{sLN}, {CNT}")
        A(f"s_lshl_b32 s{sOW}, s{sH1}, 1"); A(f"s_add_u32 s{sOW}, s{sOW}, s{sLN}")
        A(f"s_mov_b32 s{sCA}, {CNT + 128}")
        A(f"v_mov_b32 v30, {L_PRG}"); A(f"v_lshlrev_b32 v31, 1, v{vL}")
        A(f"s_mov_b32 s{sMI}, 0")
        A.label("L_cloop")
        A(f"s_lshl_b32 s{sT2}, s{sMI}, 2")
        A(f"s_mov_b32 s{sSPIN}, {spin}")
        A.label("L_cw")
        A("ds_read_b128 v[32:35], v30")
        A("s_waitcnt lgkmcnt(0)")
        A("v_add3_u32 v32, v32, v33, v34"); A("v_add3_u32 v32, v32, v35, 1")
        A(f"v_readfirstlane_b32 s{sT0}, v32")
        A(f"s_cmp_ge_u32 s{sT0}, s{sT2}"); A("s_cbranch_scc1 L_cw_ok")
        spin_tail("L_cw", csleep)
        A.label("L_cw_ok")
        A(f"s_add_u32 s{sT3}, s{sMI}, 1"); A(f"v_mov_b32 v32, s{sT3}")
        A(f"buffer_load_ushort v34, v31, {sr(S_WS)}, s{sLN} offen {lfl}")
        A("s_mov_b64 exec, 1")
        A(f"buffer_store_short v32, v{hZ}, {sr(S_WS)}, s{sOW} offen")
        A("s_mov_b64 exec, -1")
        A("s_waitcnt vmcnt(0)")
        A(f"v_cmp_lt_u32 s[{sE}:{sE+1}], s{sMI}, v34"); A(f"s_bcnt1_i32_b32 s{sT0}, s{sE}")
        A(f"v_cmp_lt_u32 s[{sE}:{sE+1}], s{sT3}, v34"); A(f"s_bcnt1_i32_b32 s{sT1}, s{sE}")
        if XB:
            A(f"s_cmp_lg_u32 s{sT0}, 15"); A("s_cbranch_scc1 L_nrep")
            A("v_mov_b32 v32, 1")
            A("s_mov_b64 exec, 1")
            A(f"buffer_atomic_add v32, v{hZ}, {sr(S_WS)}, s{sCA} offen sc0 sc1")
            A("s_waitcnt vmcnt(0)")
            A(f"buffer_store_short v32, v{hZ}, {sr(S_WS)}, s{sLN} offen offset:64")
            A("s_mov_b64 exec, -1")
            A.label("L_nrep")
            A(f"v_readlane_b32 s{sT2}, v34, 32")
            A(f"s_min_u32 s{sT2}, s{sT2}, 7"); A(f"s_mul_i32 s{sT2}, s{sT2}, {XB}")
            A(f"s_add_u32 s{sT1}, s{sT1}, s{sT2}")
        A(f"s_add_u32 s{sT0}, s{sT0}, s{sT1}")
        A(f"s_mov_b32 s{sT1}, 0")
        for li, t in enumerate(TAU):
            A(f"s_cmp_ge_u32 s{sT0}, {t}"); A(f"s_cselect_b32 s{sT1}, {li+1}, s{sT1}")
        A(f"v_mov_b32 v33, s{sT1}"); A("ds_write_b32 v30, v33 offset:16")
        A(f"s_add_u32 s{sCA}, s{sCA}, 2304")
        A(f"s_add_u32 s{sMI}, s{sMI}, 1")
        A(f"s_cmp_lg_u32 s{sMI}, 4"); A("s_cbranch_scc1 L_nw")
        weights()
        A.label("L_nw")
        A(f"s_cmp_le_u32 s{sMI}, {LASTM}"); A("s_cbranch_scc1 L_cloop")
    stamp(10); stamp(11)
    A("s_waitcnt vmcnt(0) lgkmcnt(0)")
    A.label("L_end")
    A("s_endpgm")

    nn = A.fix_hazards()
    out = HEADER
    out += f"; @launch grid=(256,1,1) block=(320,1,1) lds={LDS_BYTES}\n"
    out += '.amdgcn_target "amdgcn-amd-amdhsa--gfx950"\n.text\n'
    out += f".globl {NAME}_kernel\n.p2align 8\n.type {NAME}_kernel,@function\n{NAME}_kernel:\n"
    out += A.text()
    out += '.section .rodata,"a"\n.p2align 6\n'
    out += f".amdhsa_kernel {NAME}_kernel\n"
    out += "  .amdhsa_next_free_vgpr 256\n  .amdhsa_next_free_sgpr 102\n  .amdhsa_accum_offset 128\n"
    out += "  .amdhsa_group_segment_fixed_size 0\n  .amdhsa_kernarg_size 104\n  .amdhsa_user_sgpr_count 2\n"
    out += "  .amdhsa_user_sgpr_kernarg_segment_ptr 1\n  .amdhsa_system_sgpr_workgroup_id_x 1\n"
    out += "  .amdhsa_float_denorm_mode_32 3\n"
    out += ".end_amdhsa_kernel\n"
    return out

if __name__ == "__main__":
    import json
    kw = json.loads(sys.argv[2]) if len(sys.argv) > 2 else {}
    open(sys.argv[1], "w").write(gen(**kw))
```

```python
import sys, struct, math
sys.path.insert(0, "dev")
from asmlib import Asm
NAME = "concat_heads__mha_block_cached__sliding_block_cached__decode"

HEADER = """; Kernarg layout for this problem (104 bytes, ptrs only, base s[0:1]):
;   offset  32: d_in[4] A_wo  shape=(4096, 1024) dtype=bfloat16
;   offset  72: d_in[9] B_wo  shape=(4096, 1024) dtype=bfloat16
;   offset  88: d_debug   256 bytes (words 0..7: "flag lines cleared")
;   offset  96: d_ws      workspace
; 256 workgroups x 5 waves: waves 0-3 stream all HBM data, wave 4 does hand-offs and branch B math.
"""

QP_A = 0x000000
QP_B = 0x080000
BP   = 0x100000
FLG  = 0x180000
CNT  = 0x188000
BLK  = 0x200000
BS   = 2944
O_QB2, O_BST, O_AST, O_REC, O_P2 = 0, 128, 256, 384, 896
TS   = 0x400000
WS_BYTES = 0x800000
L_WO  = 0
L_R2  = 0x10000
L_R3  = 0x18000
L_SC  = 0x20000
L_EX  = 0x24000
L_QL  = 0x26000
L_QBL = 0x26100
L_ST  = 0x26200
L_WGT = 0x26220
L_PRG = 0x26240
LDS_BYTES = 0x26300
FULL = "row_mask:0xf bank_mask:0xf"
SCALE = (128 ** -0.5) * math.log2(math.e)
def f32bits(x): return struct.unpack("<I", struct.pack("<f", x))[0]

def gen(LOCB=1, LOC=1, U=16, KC=0, M0=5, XP=1, NCMP=2, LASTD=2, lfl="sc1", XB=3, GX=0, SAMEL=0, afl="sc0 sc1", qpre=0, l2pre=0, BROT=1, NDEF=8, DW=6, BURST=4, TRN=4, preBP=False, pfl="sc1", sfl="sc1", gsleep=1, s3sleep=1, PIPE=1, ORD="seq", TLB=0, prof3=False, CS=384, MS=(3, 7, 10, 12), TAU=(28, 40), SMPMASK=15, SMPVAL=5, LV=(4, 5, 6), THR=(0.6, 0.85), NG=32, PER=2, csleep=4, LASTM=12, bfl="sc1", qfl="sc1", l2sleep=16, prof2=False, G=1, osc1="", DP0=6, DP=(4,), DK=(4,), DV=(4,), DE=None, NE=0, X=12, prof=False, spin=1 << 16, hsleep=16, psleep=100, tsleep=1, qsleep=4, skip="", gfl="sc1", diag=None):
    tup = lambda x: (x,) if isinstance(x, int) else tuple(x)
    DP, DK, DV = tup(DP), tup(DK), tup(DV)
    DE = DV if DE is None else tup(DE)
    A = Asm()
    in_helper = [False]
    def srd(base, ptr, size):
        A(f"s_mov_b32 s{base}, s{ptr}"); A(f"s_mov_b32 s{base+1}, s{ptr+1}")
        A(f"s_mov_b32 s{base+2}, {hex(size)}"); A(f"s_mov_b32 s{base+3}, 0x00020000")
    def smask(r, val):
        A(f"s_mov_b32 s{r}, {hex(val & 0xffffffff)}"); A(f"s_mov_b32 s{r+1}, {hex(val >> 32)}")
    S_K, S_V, S_X, S_W, S_WS, S_O, S_WO = 32, 36, 40, 44, 48, 52, 56
    sr = lambda b: f"s[{b}:{b+3}]"
    vr = lambda b, n=4: f"v[{b}:{b+n-1}]"
    ar = lambda b, n=4: f"a[{b}:{b+n-1}]"
    sT0, sT1, sT2, sT3, sCNT, sOFFK, sOFFV, sC, sSPIN, sLD = 60, 61, 62, 63, 64, 65, 66, 67, 68, 69
    sM = 70
    sE = 86
    sTS = 88
    sTI = 90
    sH1, sKS, sB, sH, sS = 91, 92, 93, 94, 95
    sKB = 30
    vL, vG, vJ = 1, 2, 3
    def stamp(idx):
        if diag and not in_helper[0]:
            wg, sidx, base, mul = diag
            if idx == sidx:
                A("s_memrealtime s[4:5]"); A("s_waitcnt lgkmcnt(0)"); A("s_sub_u32 s90, s4, s88"); A(f"s_mul_i32 s90, s90, {mul}")
            if idx == 10:
                if sidx < 0: A("s_mov_b32 s90, 0")
                if wg >= 0:
                    A(f"s_cmp_lg_u32 s2, {wg}"); A("s_cbranch_scc1 L_end")
                A(f"s_add_u32 s90, s90, {base*100}")
                A.label("L_diag")
                A("s_memrealtime s[4:5]"); A("s_waitcnt lgkmcnt(0)"); A("s_sub_u32 s4, s4, s88")
                A("s_cmp_lt_u32 s4, s90"); A("s_cbranch_scc1 L_diag")
        if not prof: return
        A(f"s_memrealtime s[{sTS}:{sTS+1}]")
        A("s_waitcnt lgkmcnt(0)")
        A(f"v_mov_b32 v63, s{sTS}")
        A(f"s_mov_b64 exec, 1")
        A(f"buffer_store_dword v63, v62, {sr(S_WS)}, s{sTI} offen offset:{idx*4}")
        A(f"s_mov_b64 exec, -1")
    def lstamp():
        if not prof2: return
        A(f"s_memrealtime s[{sTS}:{sTS+1}]")
        A("s_waitcnt lgkmcnt(0)")
        A(f"s_mov_b32 m0, s31")
        A(f"v_writelane_b32 v63, s{sTS}, m0")
        A("s_add_u32 s31, s31, 1")
    def spin_tail(lab, sl):
        A(f"s_sleep {sl}")
        A(f"s_sub_u32 s{sSPIN}, s{sSPIN}, 1"); A(f"s_cmp_lg_u32 s{sSPIN}, 0"); A(f"s_cbranch_scc1 {lab}")
    def allreduce(v, tmp, op, rors):
        for r in rors: A(f"{op}_dpp v{v}, v{v}, v{v} row_ror:{r} {FULL}")
        A(f"v_mov_b32 v{tmp}, v{v}"); A(f"v_permlane16_swap_b32 v{tmp}, v{v}"); A(f"{op} v{v}, v{v}, v{tmp}")
        A(f"v_mov_b32 v{tmp}, v{v}"); A(f"v_permlane32_swap_b32 v{tmp}, v{v}"); A(f"{op} v{v}, v{v}, v{tmp}")

    A(f"s_cmp_ge_u32 s2, 256")
    A("s_cbranch_scc1 L_end")
    A("s_load_dwordx16 s[4:19], s[0:1], 0")
    A("s_load_dwordx8 s[20:27], s[0:1], 64")
    A("s_load_dwordx2 s[28:29], s[0:1], 96")
    A(f"v_lshrrev_b32 v4, 6, v0")
    A(f"v_and_b32 v{vL}, 63, v0")
    A(f"v_readfirstlane_b32 s3, v4")
    A(f"v_lshrrev_b32 v{vG}, 4, v{vL}")
    A(f"v_and_b32 v{vJ}, 15, v{vL}")
    A(f"s_lshr_b32 s{sH1}, s2, 3")
    A(f"s_and_b32 s{sKS}, s2, 7")
    A(f"s_lshr_b32 s{sB}, s2, 6")
    A(f"s_bfe_u32 s{sH}, s2, 0x50001")
    A(f"s_and_b32 s{sS}, s2, 1")
    A(f"s_mov_b32 s{sC}, {hex(f32bits(SCALE))}")
    if prof:
        A(f"s_mul_i32 s{sTI}, s2, 5"); A(f"s_add_u32 s{sTI}, s{sTI}, s3"); A(f"s_lshl_b32 s{sTI}, s{sTI}, 6")
        A(f"s_add_u32 s{sTI}, s{sTI}, {TS}"); A("v_mov_b32 v62, 0")
    vSEL, vMSK = 8, 16
    def build_sel():
        for rr in range(4): smask(sM + 2 * rr, 0x0303030303030303 << (2 * rr))
        smask(sE, 0xAAAAAAAAAAAAAAAA)
        A("v_mov_b32 v4, 0x0c0c0100"); A("v_mov_b32 v5, 0x01000c0c")
        A(f"v_cndmask_b32 v6, v4, v5, s[{sE}:{sE+1}]")
        A("v_mov_b32 v4, 0x0c0c0302"); A("v_mov_b32 v5, 0x03020c0c")
        A(f"v_cndmask_b32 v7, v4, v5, s[{sE}:{sE+1}]")
        A("v_mov_b32 v4, 0x0c0c0c0c")
        for rr in range(4):
            A(f"v_cndmask_b32 v{vSEL+2*rr}, v4, v6, s[{sM+2*rr}:{sM+2*rr+1}]")
            A(f"v_cndmask_b32 v{vSEL+2*rr+1}, v4, v7, s[{sM+2*rr}:{sM+2*rr+1}]")
        A("v_mov_b32 v4, 0x0000ffff"); A("v_mov_b32 v5, 0xffff0000")
        A(f"v_cndmask_b32 v6, v4, v5, s[{sE}:{sE+1}]")
        for rr in range(4):
            A(f"v_cndmask_b32 v{vMSK+rr}, 0, v6, s[{sM+2*rr}:{sM+2*rr+1}]")
    def rec_producer(dst, t1, t2):
        A(f"s_and_b32 s{sT1}, s{sH1}, 15")
        A(f"v_lshrrev_b32 v{t1}, 2, v{vJ}"); A(f"v_and_b32 v{t2}, 3, v{vJ}")
        A(f"s_cmp_ge_u32 s2, 128"); lb = A.newlabel("L_rpb"); le = A.newlabel("L_rpe")
        A(f"s_cbranch_scc1 {lb}")
        A(f"v_lshl_add_u32 v{dst}, v{t1}, 6, v{t2}"); A(f"s_lshl_b32 s{sT0}, s{sT1}, 2")
        A(f"s_branch {le}")
        A.label(lb)
        A(f"v_lshlrev_b32 v{dst}, 3, v{t2}"); A(f"v_and_b32 v{t2}, 1, v{t1}"); A(f"v_lshl_add_u32 v{dst}, v{t2}, 2, v{dst}")
        A(f"v_lshrrev_b32 v{t1}, 1, v{t1}"); A(f"v_lshl_add_u32 v{dst}, v{t1}, 7, v{dst}")
        A(f"s_and_b32 s{sT0}, s{sT1}, 3"); A(f"s_lshl_b32 s{sT0}, s{sT0}, 5"); A(f"s_lshr_b32 s{sT1}, s{sT1}, 2"); A(f"s_add_u32 s{sT0}, s{sT0}, s{sT1}")
        A.label(le)
        A(f"v_add_u32 v{dst}, s{sT0}, v{dst}")
    A("s_cmp_eq_u32 s3, 4")
    A("s_cbranch_scc1 L_helper")

    vOK, vOV, vAS, vAP, vMAX, vT = 20, 21, 22, 23, 24, 25
    vX = 26
    vBB = 34
    vD = 42
    QB = [8, 12, 26, 30]
    vPP = 58
    vACC = 50
    vSL = 89
    vW0, vW1 = 98, 99
    sWB, sWL = 6, 7
    vDM = 64
    vXB = 90
    A("s_setprio 1")
    if prof2:
        A("s_mov_b32 s31, 0"); A("v_mov_b32 v63, 0"); lstamp()
    if diag: A("s_memrealtime s[88:89]")
    A(f"v_lshrrev_b32 v4, 3, v{vJ}")
    A(f"v_lshlrev_b32 v5, 11, v4")
    A(f"v_lshl_add_u32 v5, v{vG}, 4, v5")
    A(f"v_lshlrev_b32 v{vDM+3}, 16, v{vG}")
    A(f"v_lshl_add_u32 v{vDM+3}, v{vJ}, 4, v{vDM+3}")
    A(f"s_lshl_b32 s{sT0}, s{sKS}, 8"); A(f"s_lshl_b32 s{sT1}, s3, 6"); A(f"s_add_u32 s{sT0}, s{sT0}, s{sT1}")
    A(f"s_add_u32 s{sT1}, s{sT0}, 4096")
    A(f"s_lshl_b32 s{sT2}, s{sT0}, 12")
    A(f"s_lshl_b32 s{sT3}, s{sH1}, 8"); A(f"s_add_u32 s{sT2}, s{sT2}, s{sT3}")
    A("s_waitcnt lgkmcnt(0)")
    srd(S_X, 4, 8192); srd(S_W, 10, 1 << 23); srd(S_K, 14, 8192)
    A(f"buffer_load_dwordx4 {vr(vX)}, v5, {sr(S_X)}, s{sT0} offen")
    A(f"buffer_load_dwordx4 {vr(vX+4)}, v5, {sr(S_X)}, s{sT1} offen")
    A(f"buffer_load_dwordx4 {vr(vXB)}, v5, {sr(S_K)}, s{sT0} offen")
    A(f"buffer_load_dwordx4 {vr(vXB+4)}, v5, {sr(S_K)}, s{sT1} offen")
    for t in range(8):
        A(f"buffer_load_dwordx4 {ar(4*t)}, v{vDM+3}, {sr(S_W)}, s{sT2} offen nt")
        A(f"s_add_u32 s{sT2}, s{sT2}, {8192 if t < 7 else -7 * 8192}")
    srd(S_K, 6, 1 << 28); srd(S_V, 8, 1 << 28); srd(S_WS, 28, WS_BYTES)
    srd(S_W, 20, 1 << 23)
    srd(S_X, 16, 1 << 25)
    srd(S_O, 18, 1 << 25)
    A(f"s_cmp_ge_u32 s2, 128")
    A(f"s_cselect_b32 s{S_WO}, s22, s12"); A(f"s_cselect_b32 s{S_WO+1}, s23, s13")
    A(f"s_mov_b32 s{S_WO+2}, {hex(1 << 23)}"); A(f"s_mov_b32 s{S_WO+3}, 0x00020000")
    stamp(0)
    A(f"v_lshrrev_b32 v7, 2, v{vJ}")
    A(f"v_lshlrev_b32 v{vOK}, 8, v7")
    A(f"v_lshl_add_u32 v{vOK}, v{vG}, 6, v{vOK}")
    A(f"v_and_b32 v5, 3, v{vJ}")
    A(f"v_lshl_add_u32 v{vOK}, v5, 4, v{vOK}")
    A(f"v_lshl_add_u32 v6, v{vG}, 1, v4")
    A(f"v_lshlrev_b32 v{vOV}, 8, v6")
    A(f"v_and_b32 v5, 7, v{vJ}")
    A(f"v_lshl_add_u32 v{vOV}, v5, 4, v{vOV}")
    A(f"s_lshl_b32 s{sT0}, s3, 1"); A(f"v_lshrrev_b32 v{vW0}, 1, v{vG}"); A(f"v_add_u32 v{vW0}, s{sT0}, v{vW0}")
    A(f"v_xor_b32 v{vW0}, v{vW0}, v{vJ}"); A(f"v_lshlrev_b32 v{vW0}, 4, v{vW0}"); A(f"v_lshl_add_u32 v{vW0}, v{vG}, 11, v{vW0}")
    A(f"s_lshl_b32 s{sOFFK}, s2, 20"); A(f"s_lshl_b32 s{sT0}, s3, 12"); A(f"s_add_u32 s{sOFFK}, s{sOFFK}, s{sT0}")
    A(f"s_mov_b32 s{sOFFV}, s{sOFFK}")
    A(f"s_add_u32 s{sT0}, s{sT0}, {L_SC}")
    A(f"v_lshl_add_u32 v{vAS}, v7, 2, v{vG}")
    A(f"v_lshl_add_u32 v{vAS}, v{vAS}, 2, s{sT0}")
    A(f"v_lshl_add_u32 v{vAP}, v6, 2, s{sT0}")
    A(f"v_lshl_add_u32 v{vSL}, v{vL}, 4, s{sT0}")
    A(f"v_mov_b32 v{vMAX}, 0xff800000")
    A(f"v_lshrrev_b32 v4, 1, v{vJ}"); A(f"v_lshlrev_b32 v{vDM+2}, 8, v4")
    A(f"v_lshl_add_u32 v{vDM+2}, v{vG}, 5, v{vDM+2}")
    A(f"v_and_b32 v4, 1, v{vJ}"); A(f"v_lshl_add_u32 v{vDM+2}, v4, 4, v{vDM+2}")
    A(f"v_lshlrev_b32 v{vDM}, 9, v{vG}"); A(f"v_lshl_add_u32 v{vDM}, v{vJ}, 4, v{vDM}")
    A(f"s_lshr_b32 s{sKB}, s2, 7"); A(f"s_lshl_b32 s{sKB}, s{sKB}, 3"); A(f"s_add_u32 s{sKB}, s{sKB}, s{sKS}"); A(f"s_lshl_b32 s{sKB}, s{sKB}, 21")
    A(f"s_and_b32 s{sT0}, s{sH1}, 15"); A(f"s_lshl_b32 s{sT0}, s{sT0}, 15"); A(f"s_add_u32 s{sKB}, s{sKB}, s{sT0}")
    A(f"s_lshl_b32 s{sLD}, s3, 13"); A(f"s_add_u32 s{sKB}, s{sKB}, s{sLD}"); A(f"s_add_u32 s{sKB}, s{sKB}, {6144 * 256}")
    A(f"s_and_b32 s{sT3}, s{sH1}, 15"); A(f"s_lshl_b32 s{sT3}, s{sT3}, 19"); A(f"s_lshl_b32 s{sT0}, s{sKS}, 8")
    A(f"s_add_u32 s{sT3}, s{sT3}, s{sT0}"); A(f"s_add_u32 s{sWB}, s{sT3}, s{sLD}")
    A(f"s_lshl_b32 s{sWL}, s3, 10")
    if BROT: A(f"s_and_b32 s{sT1}, s{sH1}, 3"); A(f"s_lshl_b32 s{sT1}, s{sT1}, 11")
    else: A(f"s_mov_b32 s{sT1}, 0")
    build_sel()

    def ring_reg(n): return ar(4 * (n % 16))
    kcnt = [0]; vcnt = [0]
    def loadK(reg):
        m = kcnt[0] % 4; kcnt[0] += 1
        A(f"buffer_load_dwordx4 {reg}, v{vOK}, {sr(S_K)}, s{sOFFK} offen offset:{m*1024} nt")
        if m == 3: A(f"s_add_u32 s{sOFFK}, s{sOFFK}, 16384")
    def loadV(reg):
        m = vcnt[0] % 4; vcnt[0] += 1
        A(f"buffer_load_dwordx4 {reg}, v{vOV}, {sr(S_V)}, s{sOFFV} offen offset:{(m>>1)*2048+(m&1)*128} nt")
        if m == 3: A(f"s_add_u32 s{sOFFV}, s{sOFFV}, 16384")
    def qk(reg, m, d):
        A(f"v_mfma_f32_16x16x32_bf16 {vr(d)}, {reg}, {vr(QB[m])}, {'0' if m == 0 else vr(d)}")
    def post(d, off):
        A(f"v_mov_b32_dpp v{vT}, v{d} quad_perm:[0,0,0,0] {FULL}")
        for r in range(1, 4):
            A(f"v_add_f32_dpp v{vT}, v{d+r}, v{vT} quad_perm:[{r},{r},{r},{r}] {FULL}")
        A(f"v_max_f32 v{vMAX}, v{vMAX}, v{vT}")
        A(f"ds_write_b32 v{vAS}, v{vT} offset:{off}")
    def qpart(t):
        x0, d0, tt = (vX, vD, t) if t < 8 else (vXB, vACC, t - 8)
        for q in range(2):
            b = vBB + 4 * q
            for rr in range(4):
                A(f"v_perm_b32 v{b+rr}, v{x0+4*q+(tt>>1)}, v{x0+4*q+(tt>>1)}, v{vSEL+2*rr+(tt&1)}")
            A(f"v_mfma_f32_16x16x32_bf16 {vr(d0+4*q)}, {ar(4*t)}, {vr(b)}, {'0' if tt == 0 else vr(d0+4*q)}")
    def dma(voff, srdb, soff, m0base, m0imm, step, tag):
        if m0base is None:
            def issue():
                A(f"buffer_load_dwordx4 {ar(m0imm)}, v{voff}, {sr(srdb)}, s{soff} offen nt")
                A(f"s_add_u32 s{soff}, s{soff}, {step}")
            return issue
        A(f"s_add_u32 m0, s{m0base}, {m0imm}")
        def issue():
            A(f"buffer_load_dwordx4 v{voff}, {sr(srdb)}, s{soff} offen nt lds")
            A(f"s_add_u32 s{soff}, s{soff}, {step}")
        return issue
    p1 = [(vDM + 3, S_W, sT2, None, 32 + 4 * t, 8192, "q") for t in range(8)]
    def b_dma(voff, srdb, lds, second, k):
        if k % 2 == 0:
            A(f"s_add_u32 s{sT3}, s{sKB}, s{sT1}"); A(f"s_add_u32 s{sCNT}, s{sLD}, s{sT1}")
            A(f"s_add_u32 m0, s{sCNT}, {lds}")
        else:
            A(f"s_add_u32 s{sT3}, s{sT3}, {second}"); A(f"s_add_u32 m0, s{sCNT}, {lds + 1024}")
            A(f"s_add_u32 s{sT1}, s{sT1}, 2048"); A(f"s_and_b32 s{sT1}, s{sT1}, 8191")
        return lambda: A(f"buffer_load_dwordx4 v{voff}, {sr(srdb)}, s{sT3} offen nt lds")
    p1 += [("b", vDM + 2, S_X, L_R3, 128, k) for k in range(8)]
    p1 += [("b", vDM, S_O, L_R2, 256, k) for k in range(8)]
    def wo_dma(ip):
        A(f"s_add_u32 m0, s{sWL}, {L_WO + ip * 4096}")
        A(f"s_add_u32 s{sT3}, s{sWB}, {ip * 32768}")
        x = (128 if ip & 1 else 0) ^ (32 if ip >= 8 else 0)
        if x: A(f"v_xor_b32 v{vW1}, {x}, v{vW0}")
        return lambda: A(f"buffer_load_dwordx4 v{vW1 if x else vW0}, {sr(S_WO)}, s{sT3} offen nt lds")
    tdef = list(range(4 - NDEF // 4, 4)); tearly = list(range(4 - NDEF // 4))
    wo_early = sorted(i for t in tearly for i in (2*t, 2*t+1, 8+2*t, 9+2*t))
    wo_late = sorted(i for t in tdef for i in (2*t, 2*t+1, 8+2*t, 9+2*t))
    p1 += [("wo", i) for i in wo_early]
    NPOOL = 16
    tdone = 0
    LAG = max(DK) + 1
    if LV and KC: LAG = max(LV) + 1
    n = 0
    def q_progress(landed):
        nonlocal tdone
        while tdone < 16 and 4 + tdone <= landed:
            qpart(tdone); tdone += 1
            if tdone == 16:
                for i, r in enumerate((vD, vD + 4, vACC, vACC + 4)): A(f"ds_write_b128 v{vSL}, {vr(r)} offset:{i*1024}")
                A("s_waitcnt lgkmcnt(0)")
                A("s_barrier")
                stamp(1)
    for p, d in enumerate(p1):
        go = wo_dma(d[1]) if d[0] == "wo" else b_dma(*d[1:]) if d[0] == "b" else dma(*d)
        dd = DP0 if p < 8 else DP[p % len(DP)]
        A(f"s_waitcnt vmcnt({dd})"); go()
        if prof3 and p % 4 == 3: lstamp()
        q_progress(12 + p - 1 - dd)
    assert tdone == 16
    def tickK():
        nonlocal n
        A(f"s_waitcnt vmcnt({DK[n % len(DK)]})"); loadK(ring_reg(n)); n += 1
        if prof3 and n % 4 == 0: lstamp()
    srd(S_O, 24, 16384)
    assert X >= LAG
    for p in range(NPOOL):
        A(f"s_waitcnt vmcnt({DK[0]})"); loadK(ar(64 + 4 * p))
        if prof3 and p % 4 == 3: lstamp()
    for _ in range(X): tickK()
    stamp(2)
    lstamp()
    A("s_barrier")
    lstamp()
    stamp(3)
    A(f"v_and_b32 v4, 3, v{vJ}")
    A(f"v_lshl_add_u32 v4, v{vG}, 2, v4")
    A(f"v_lshlrev_b32 v4, 4, v4")
    A(f"v_add_u32 v4, {L_QL}, v4")
    A(f"ds_read_b128 {vr(vBB)}, v4")
    tickK()
    for m in range(4): smask(sM + 2 * m, 0x000F000F000F000F << (4 * m))
    A("s_waitcnt lgkmcnt(0)")
    for m in range(4):
        for rr in range(4):
            A(f"v_cndmask_b32 v{QB[m]+rr}, 0, v{vBB+rr}, s[{sM+2*m}:{sM+2*m+1}]")
    side = []
    GP = NPOOL // 4
    def mk_pool(pg):
        def f():
            if pg < GP:
                for m in range(4): qk(ar(64 + 16 * pg + 4 * m), m, vACC + 4 * (pg & 1))
            if pg > 0: post(vACC + 4 * ((pg - 1) & 1), (pg - 1) * 64)
        return f
    for pg in range(GP + 1): side.append(mk_pool(pg))
    vTR = 82
    def side_tr_addr():
        A(f"v_bfe_u32 v6, v{vJ}, 1, 1"); A("v_lshlrev_b32 v4, 7, v6")
        A(f"v_lshrrev_b32 v5, 2, v{vJ}"); A("v_lshl_add_u32 v4, v5, 3, v4")
        A(f"v_lshl_add_u32 v4, v{vG}, 1, v4"); A("v_lshlrev_b32 v4, 8, v4")
        A(f"v_lshl_add_u32 v5, v5, 2, v{vG}"); A("v_lshlrev_b32 v6, 1, v6"); A("v_xor_b32 v5, v5, v6")
        A(f"s_lshl_b32 s{sT0}, s3, 2"); A(f"v_xor_b32 v5, s{sT0}, v5"); A("v_lshl_add_u32 v4, v5, 4, v4")
        A(f"v_and_b32 v5, 1, v{vJ}"); A(f"v_lshl_add_u32 v{vTR}, v5, 3, v4")
        for ch in range(1, 4): A(f"v_xor_b32 v{vTR2+ch-1}, {ch*16}, v{vTR}")
    vTR2 = 26
    def traddr(ch): return vTR if ch == 0 else vTR2 + ch - 1
    def wofrag(t, ch): return 64 + 4 * (t * 4 + ch)
    def mk_tr(lst):
        def f():
            for t, ch, a in lst:
                A(f"ds_read_b64_tr_b16 {ar(wofrag(t,ch)+2*a,2)}, v{traddr(ch)} offset:{L_WO + (32*t+a)*256}")
        return f
    rc = 0
    pend = []
    while n < 32 or n % 16 or side:
        assert rc >= n - 15, (rc, n)
        tickK()
        old = list(pend); pend.clear()
        budget = 4
        while budget > 0 and rc <= n - 1 - LAG:
            g = rc // 4
            if rc % 4 == 0 and any(d == vD + 4 * (g & 1) for d, _ in old + pend):
                for po in old + pend: post(*po)
                old = []; pend.clear()
            qk(ring_reg(rc), rc % 4, vD + 4 * (g & 1))
            if rc % 4 == 3: pend.append((vD + 4 * (g & 1), (GP + g) * 64))
            rc += 1; budget -= 1
        for po in old: post(*po)
        if budget >= 3 and side: side.pop(0)()
    assert rc == n - LAG and not side, (rc, n, len(side))
    assert len(pend) == (1 if (n - 1 - LAG) % 4 == 3 else 0)
    def lring(k): return ring_reg(k) if U == 16 else ar(32 + 4 * (k % 8))
    vPG, vDEC = 90, 91
    def ctl_loop(name, levels, upto, tick, step):
        A(f"ds_read_b32 v{vDEC}, v92 offset:16")
        A.label(f"{name}top")
        if U == 16: lstamp()
        elif prof2:
            A(f"s_and_b32 s{sT0}, s{sCNT}, 1"); A(f"s_cbranch_scc1 {name}ns"); lstamp(); A.label(f"{name}ns")
        A("s_waitcnt lgkmcnt(0)")
        A(f"v_readfirstlane_b32 s{sT0}, v{vDEC}")
        A(f"v_mov_b32 v93, s{sCNT}")
        A(f"ds_write_b32 v{vPG}, v93")
        A(f"s_add_u32 s{sCNT}, s{sCNT}, 1")
        for li in range(1, len(levels)):
            A(f"s_cmp_eq_u32 s{sT0}, {li}"); A(f"s_cbranch_scc1 {name}lv{li}")
        for li, dd in enumerate(levels):
            A.label(f"{name}lv{li}")
            for i in range(U):
                A(f"s_waitcnt vmcnt({dd})"); tick(i)
                if i == U - 2: A(f"ds_read_b32 v{vDEC}, v92 offset:16")
            step()
            A(f"s_cmp_lt_u32 s{sCNT}, {upto}"); A(f"s_cbranch_scc1 {name}top")
            if li < len(levels) - 1: A(f"s_branch {name}done")
        A.label(f"{name}done")
    A(f"v_add_u32 v{vAS}, {(GP + n // 4 - 3) * 64}, v{vAS}")
    A(f"s_lshl_b32 s{sT0}, s3, 2"); A(f"s_add_u32 s{sT0}, s{sT0}, {L_PRG}"); A(f"v_mov_b32 v{vPG}, s{sT0}")
    A(f"v_mov_b32 v92, {L_PRG}")
    A(f"s_mov_b32 s{sCNT}, 0")
    KT = (256 - NPOOL - n) // U
    assert LAG <= U - 1 or U == 16
    def ktick(i):
        loadK(lring(i))
        c = i - LAG
        qk(lring(c), c % 4, vD + 4 * ((c // 4) & 1))
        if (c - 1) % 4 == 3: post(vD + 4 * (((c - 1) // 4) & 1), ((c - 1) // 4 + 3) * 64)
    ctl_loop("L_k", LV if KC else DK[:1], KT, ktick, lambda: A(f"v_add_u32 v{vAS}, {16 * U}, v{vAS}"))
    stamp(4)
    LAGV = max(DV) + 1
    if LV: LAGV = max(LV) + 1
    n = 0
    def tickT():
        nonlocal n
        dd = min(DV[n % len(DV)], max(DK))
        A(f"s_waitcnt vmcnt({dd})"); loadV(ring_reg(n)); n += 1
    for i in range(LAG + 1):
        tickT()
        c = i - LAG
        if c < 0: qk(ring_reg(c), c % 4, vD + 4 * ((c // 4) & 1))
        if (c - 1) % 4 == 3: post(vD + 4 * (((c - 1) // 4) & 1), ((c - 1) // 4 + 3) * 64)
    vS = 64
    vNM, vLS = 80, 81
    for i in range(4): A(f"ds_read_b128 {vr(vS+4*i)}, v{vSL} offset:{i*1024}")
    allreduce(vMAX, vT, "v_max_f32", [4, 8])
    A(f"v_mul_f32 v{vMAX}, s{sC}, v{vMAX}")
    A(f"v_sub_f32 v{vNM}, 0, v{vMAX}")
    for r in range(8): A(f"v_mov_b32 v{vACC+r}, 0")
    tickT()
    A("s_waitcnt lgkmcnt(0)")
    for i in range(4):
        for r in range(4): A(f"v_fma_f32 v{vS+4*i+r}, v{vS+4*i+r}, s{sC}, v{vNM}")
        for r in range(4): A(f"v_exp_f32 v{vS+4*i+r}, v{vS+4*i+r}")
        A(f"v_add_f32 v5, v{vS+4*i}, v{vS+4*i+1}"); A(f"v_add_f32 v6, v{vS+4*i+2}, v{vS+4*i+3}")
        A(f"v_add_f32 v5, v5, v6")
        A(f"v_mov_b32 v{vLS}, v5" if i == 0 else f"v_add_f32 v{vLS}, v{vLS}, v5")
        for r in range(4): A(f"v_cvt_pk_bf16_f32 v{vS+4*i+r}, v{vS+4*i+r}, v{vS+4*i+r}")
        A(f"ds_write_b128 v{vSL}, {vr(vS+4*i)} offset:{i*1024}")
        if i % 2 == 1: tickT()
    A(f"ds_read2_b32 {vr(vPP,2)}, v{vAP} offset0:0 offset1:8")
    def pv(reg, c, poff):
        beta, u = (c % 4) >> 1, c & 1
        pp = vPP + 2 * ((c // 4) & 1)
        if c % 4 == 0:
            A("s_waitcnt lgkmcnt(0)")
            A(f"ds_read2_b32 {vr(vPP + 2 * ((c // 4 + 1) & 1), 2)}, v{vAP} offset0:{poff//4} offset1:{poff//4+8}")
        if u == 0:
            for rr in range(4): A(f"v_and_b32 v{vBB+4*beta+rr}, v{pp+beta}, v{vMSK+rr}")
        A(f"v_mfma_f32_16x16x32_bf16 {vr(vACC+4*u)}, {reg}, {vr(vBB+4*beta)}, {vr(vACC+4*u)}")
    def side_stats():
        allreduce(vLS, vT, "v_add_f32", [1, 2, 4, 8])
        A(f"v_min_u32 v6, -2, v{vMAX}"); A(f"v_min_u32 v7, -2, v{vLS}")
        A(f"s_lshl_b32 s{sT0}, s3, 3"); A(f"s_add_u32 s{sT0}, s{sT0}, {L_ST}")
        A(f"v_mov_b32 v4, s{sT0}")
        A("ds_write_b64 v4, v[6:7]")
    vFW, vFR, vWA, vRO, vGO, vPO = 83, 84, 85, 86, 87, 88
    sREC, sGA, sGB, sP2, sP3, sOUT = 96, 97, 98, 99, 100, 101
    def side_tail1():
        A(f"s_lshl_b32 s{sT0}, s3, 11"); A(f"s_add_u32 s{sT0}, s{sT0}, {L_EX}")
        A(f"v_lshl_add_u32 v{vFW}, v{vL}, 4, s{sT0}")
        A(f"v_and_b32 v4, 1, v{vL}"); A("v_mul_u32_u24 v4, 40, v4")
        A(f"v_lshrrev_b32 v5, 3, v{vL}"); A("v_add_u32 v4, v4, v5"); A("v_lshlrev_b32 v4, 4, v4")
        A(f"v_bfe_u32 v6, v{vL}, 1, 2"); A("v_lshl_add_u32 v4, v6, 11, v4")
        A(f"s_lshr_b32 s{sT0}, s3, 1"); A(f"s_lshl_b32 s{sT0}, s{sT0}, 10")
        A(f"s_and_b32 s{sT1}, s3, 1"); A(f"s_lshl_b32 s{sT1}, s{sT1}, 8")
        A(f"s_add_u32 s{sT0}, s{sT0}, s{sT1}"); A(f"s_add_u32 s{sT0}, s{sT0}, {L_EX}")
        A(f"v_add_u32 v{vFR}, s{sT0}, v4")
        A(f"v_lshlrev_b32 v{vWA}, 2, v6"); A(f"v_add_u32 v{vWA}, {L_WGT}, v{vWA}")
        A(f"v_lshlrev_b32 v{vRO}, 3, v5")
    def side_tail2():
        A(f"s_mul_i32 s{sP2}, s2, {BS}"); A(f"s_add_u32 s{sP2}, s{sP2}, {BLK}")
        A(f"s_lshl_b32 s{sT0}, s3, 6"); A(f"s_add_u32 s{sREC}, s{sP2}, s{sT0}")
        A(f"s_lshl_b32 s{sT0}, s3, 9"); A(f"s_add_u32 s{sP2}, s{sP2}, s{sT0}")
        rec_producer(4, 5, 6)
        A(f"v_mul_u32_u24 v{vGO}, {BS}, v4"); A(f"v_lshl_add_u32 v{vGO}, v{vG}, 4, v{vGO}")
        A(f"s_lshr_b32 s{sGA}, s2, 7"); A(f"s_lshl_b32 s{sGA}, s{sGA}, 8"); A(f"s_add_u32 s{sGA}, s{sGA}, {BLK + O_REC}")
    def side_tail3():
        A(f"v_lshrrev_b32 v4, 2, v{vJ}"); A(f"v_lshlrev_b32 v{vPO}, 7, v4"); A(f"v_lshl_add_u32 v{vPO}, v{vG}, 5, v{vPO}")
        A(f"v_and_b32 v4, 3, v{vJ}"); A(f"v_lshl_add_u32 v{vPO}, v4, 3, v{vPO}")
        A(f"s_and_b32 s{sT1}, s2, 0x87"); A(f"s_mul_i32 s{sP3}, s{sT1}, {BS}"); A(f"s_add_u32 s{sP3}, s{sP3}, {BLK + O_P2}")
        A(f"s_and_b32 s{sT1}, s{sH1}, 15"); A(f"s_lshl_b32 s{sT0}, s{sT1}, 7"); A(f"s_add_u32 s{sP3}, s{sP3}, s{sT0}")
        A(f"s_lshl_b32 s{sT0}, s3, 4"); A(f"s_add_u32 s{sP3}, s{sP3}, s{sT0}")
        A(f"v_mul_u32_u24 v8, {8 * BS}, v{vJ}"); A(f"v_lshl_add_u32 v8, v{vG}, 5, v8")
        A(f"s_lshr_b32 s{sOUT}, s2, 7"); A(f"s_lshl_b32 s{sOUT}, s{sOUT}, 3"); A(f"s_add_u32 s{sOUT}, s{sOUT}, s{sKS}"); A(f"s_lshl_b32 s{sOUT}, s{sOUT}, 8")
        A(f"s_lshr_b32 s{sT0}, s{sT1}, 2"); A(f"s_lshl_b32 s{sT0}, s{sT0}, 6"); A(f"s_add_u32 s{sOUT}, s{sOUT}, s{sT0}")
        A(f"s_and_b32 s{sT0}, s{sT1}, 3"); A(f"s_lshl_b32 s{sT0}, s{sT0}, 3"); A(f"s_add_u32 s{sOUT}, s{sOUT}, s{sT0}")
        A(f"s_lshl_b32 s{sT0}, s3, 2"); A(f"s_add_u32 s{sOUT}, s{sOUT}, s{sT0}")
        A(f"v_lshlrev_b32 v9, 12, v{vG}"); A(f"v_lshl_add_u32 v9, v{vJ}, 5, v9")
        smask(sM, 0x0101010101010101); smask(sM + 2, 0x0002000200020002); smask(sM + 4, 0x0003000300030003)
    side = [side_stats, side_tail1, side_tail2, side_tail3, side_tr_addr]
    trs = [(t, ch, a) for t in tearly for ch in range(4) for a in range(2)]
    for i in range(0, len(trs), TRN): side.append(mk_tr(trs[i:i + TRN]))
    rc = 0
    while n < 16 or (n % 16) or side or rc != n - LAGV:
        assert rc >= n - 15, (rc, n)
        tickT()
        budget = 4
        while budget > 0 and rc <= n - 1 - LAGV:
            pv(ring_reg(rc), rc, (rc // 4 + 1) * 64); rc += 1; budget -= 1
        if budget >= 3 and side: side.pop(0)()
    stamp(5)
    A(f"v_add_u32 v{vAP}, {(n // 4 - 4) * 64}, v{vAP}")
    VT = (256 - n) // U
    lag = LAGV
    assert LAGV <= U - 1 or U == 16
    def vtick(i):
        loadV(lring(i))
        c = i - LAGV
        pv(lring(c), c, (c // 4 + 1 + 4) * 64)
    ctl_loop("L_v", LV, KT + VT, vtick, lambda: A(f"v_add_u32 v{vAP}, {16 * U}, v{vAP}"))
    rem = list(range(-lag, 0)); late = list(wo_late); k = 0
    while rem:
        if late:
            go = wo_dma(late.pop(0))
            A(f"s_waitcnt vmcnt({DW})"); go()
            while rem and rem[0] <= k - DW - 1:
                c = rem.pop(0); pv(ring_reg(c), c, (c // 4 + 1 + 4) * 64)
            k += 1
        else:
            c = rem.pop(0)
            A(f"s_waitcnt vmcnt({k - 1 - c})")
            pv(ring_reg(c), c, (c // 4 + 1 + 4) * 64)
    for _ in range(min(BURST, len(late))): wo_dma(late.pop(0))()
    stamp(6)
    lstamp()
    A(f"ds_write_b128 v{vFW}, {vr(vACC)}")
    A(f"ds_write_b128 v{vFW}, {vr(vACC+4)} offset:1024")
    A(f"s_mov_b32 s{sSPIN}, {spin}")
    A("s_waitcnt lgkmcnt(0)")
    A("s_barrier")
    A(f"ds_read_b128 v[4:7], v{vFR}")
    A(f"ds_read_b32 v{vT}, v{vWA}")
    A(f"ds_read_b32 v{vDEC}, v92 offset:20")
    vGA = 64
    def gpoll():
        for t in range(4):
            A(f"buffer_load_dwordx4 {vr(vGA+4*t)}, v{vGO}, {sr(S_WS)}, s{sGA} offen offset:{t*64} {pfl}")
    A("s_waitcnt lgkmcnt(0)")
    for r in range(4): A(f"v_mul_f32 v{4+r}, v{4+r}, v{vT}")
    for mode in ("quad_perm:[1,0,3,2]", "quad_perm:[2,3,0,1]", "row_half_mirror"):
        for r in range(4): A(f"v_add_f32_dpp v{4+r}, v{4+r}, v{4+r} {mode} {FULL}")
    A("v_cvt_pk_bf16_f32 v4, v4, v5"); A("v_cvt_pk_bf16_f32 v5, v6, v7")
    A("v_min_u32 v4, -2, v4"); A("v_min_u32 v5, -2, v5")
    A(f"s_mov_b64 exec, s[{sM}:{sM+1}]")
    A(f"buffer_store_dwordx2 v[4:5], v{vRO}, {sr(S_WS)}, s{sREC} offen offset:{O_REC} {sfl}")
    A("s_mov_b64 exec, -1")
    stamp(7)
    while late:
        go = wo_dma(late.pop(0))
        A(f"s_waitcnt vmcnt({DW})"); go()
    gpoll()
    if NDEF:
        A("s_waitcnt vmcnt(4)")
        A("s_barrier")
        for ti, t in enumerate(tdef):
            if ti: A("s_waitcnt lgkmcnt(7)")
            mk_tr([(t, ch, a) for ch in range(4) for a in range(2)])()
        lstamp()
    A("s_branch L_gchk")
    A.label("L_gather")
    if gsleep: A(f"s_sleep {gsleep}")
    gpoll()
    A.label("L_gchk")
    A(f"s_waitcnt vmcnt(0)")
    A(f"v_max3_u32 v4, v{vGA}, v{vGA+1}, v{vGA+2}"); A(f"v_max3_u32 v5, v{vGA+3}, v{vGA+4}, v{vGA+5}")
    for k in range(6, 14, 4):
        A(f"v_max3_u32 v4, v4, v{vGA+k}, v{vGA+k+1}"); A(f"v_max3_u32 v5, v5, v{vGA+k+2}, v{vGA+k+3}")
    A(f"v_max3_u32 v4, v4, v{vGA+14}, v{vGA+15}"); A("v_max_u32 v4, v4, v5")
    A(f"v_cmp_eq_u32 s[{sE}:{sE+1}], -1, v4")
    A(f"s_sub_u32 s{sSPIN}, s{sSPIN}, 1"); A("s_cbranch_scc1 L_gdone")
    A(f"s_and_b64 exec, exec, s[{sE}:{sE+1}]")
    A("s_cbranch_scc1 L_gather")
    A.label("L_gdone")
    A("s_mov_b64 exec, -1")
    stamp(8)
    lstamp()
    vO = 112
    for t in range(4):
        if tdef and t == tdef[0]: A("s_waitcnt lgkmcnt(0)")
        for ch in range(4):
            A(f"v_mfma_f32_16x16x32_bf16 {vr(vO+4*ch)}, {vr(vGA+4*t)}, {ar(wofrag(t,ch))}, {'0' if t == 0 else vr(vO+4*ch)}")
    A(f"s_mov_b32 s{sSPIN}, {spin}")
    A(f"v_readfirstlane_b32 s{sT0}, v{vDEC}")
    A(f"s_cmp_eq_u32 s{sT0}, 1")
    for c2 in range(2):
        o = vO + 8 * c2
        A(f"v_add_f32 v{4+c2}, v{o}, v{o+1}"); A(f"v_add_f32 v{o+2}, v{o+2}, v{o+3}")
        A(f"v_add_f32 v{o+4}, v{o+4}, v{o+5}"); A(f"v_add_f32 v{o+6}, v{o+6}, v{o+7}")
    for c2 in range(2):
        o = vO + 8 * c2
        A(f"v_add_f32_dpp v{4+c2}, v{o+2}, v{4+c2} row_ror:8 row_mask:0xf bank_mask:0x3")
        A(f"v_add_f32_dpp v{4+c2}, v{o+4}, v{o+6} row_ror:8 row_mask:0xf bank_mask:0xc")
    A("v_min_u32 v4, -2, v4"); A("v_min_u32 v5, -2, v5")
    A(f"s_cbranch_scc1 L_p2loc")
    A(f"buffer_store_dwordx2 v[4:5], v{vPO}, {sr(S_WS)}, s{sP2} offen offset:{O_P2} {sfl}")
    A("s_branch L_p2done")
    A.label("L_p2loc")
    A(f"buffer_store_dwordx2 v[4:5], v{vPO}, {sr(S_WS)}, s{sP2} offen offset:{O_P2}")
    A.label("L_p2done")
    stamp(9)
    def dump():
        A(f"s_lshl_b32 s{sT0}, s2, 2"); A(f"s_add_u32 s{sT0}, s{sT0}, s3"); A(f"s_lshl_b32 s{sT0}, s{sT0}, 8"); A(f"s_add_u32 s{sT0}, s{sT0}, {TS}")
        A(f"v_lshlrev_b32 v62, 2, v{vL}")
        A(f"buffer_store_dword v63, v62, {sr(S_WS)}, s{sT0} offen")
    A("s_cmp_ge_u32 s3, 2")
    A("s_cbranch_scc1 L_dump" if prof2 else "s_cbranch_scc1 L_end")
    for _ in range(PIPE - 1):
        A(f"buffer_load_dwordx4 v[12:15], v8, {sr(S_WS)}, s{sP3} offen {pfl}")
        A(f"s_sleep {tsleep}")
    A.label("L_s3")
    if s3sleep: A(f"s_sleep {s3sleep}")
    A(f"buffer_load_dwordx4 v[12:15], v8, {sr(S_WS)}, s{sP3} offen {pfl}")
    A(f"s_waitcnt vmcnt({PIPE - 1})")
    A("v_max3_u32 v10, v12, v13, v14"); A("v_max_u32 v10, v10, v15")
    A(f"v_cmp_eq_u32 s[{sE}:{sE+1}], -1, v10")
    A(f"s_sub_u32 s{sSPIN}, s{sSPIN}, 1"); A("s_cbranch_scc1 L_s3done")
    A(f"s_and_b64 exec, exec, s[{sE}:{sE+1}]")
    A("s_cbranch_scc1 L_s3")
    A.label("L_s3done")
    A("s_mov_b64 exec, -1")
    for r in range(4): A(f"v_add_f32_dpp v{16+r}, v{12+r}, v{12+r} row_ror:8 {FULL}")
    for rot in (4, 2, 1):
        for r in range(4): A(f"v_add_f32_dpp v{16+r}, v{16+r}, v{16+r} row_ror:{rot} {FULL}")
    A("v_cvt_pk_bf16_f32 v4, v16, v18"); A("v_cvt_pk_bf16_f32 v5, v17, v19")
    A(f"v_cndmask_b32 v4, v4, v5, s[{sM+2}:{sM+3}]")
    A(f"s_mov_b64 exec, s[{sM+4}:{sM+5}]")
    A(f"buffer_store_dword v4, v9, {sr(S_O)}, s{sOUT} offen {osc1}")
    A("s_mov_b64 exec, -1")
    stamp(10)
    if prof2:
        A.label("L_dump"); lstamp(); dump()
    A("s_endpgm")

    A.label("L_helper")
    in_helper[0] = True
    S_DBG = S_O
    hO1, hO2, hO3 = 21, 22, 23
    sBLK, sGRP, sFL = 96, 97, 66
    def poll(name, load, reduce_to_v6, cmpop, cmpval, sl, pre_sleep=False):
        A(f"s_mov_b32 s{sSPIN}, {spin}")
        A.label(name)
        if pre_sleep: A(f"s_sleep {sl}")
        load()
        reduce_to_v6()
        A(f"{cmpop} s[{sE}:{sE+1}], {cmpval}, v6")
        A(f"s_cmp_eq_u64 s[{sE}:{sE+1}], 0"); A(f"s_cbranch_scc1 {name}_ok")
        spin_tail(name, sl)
        A.label(name + "_ok")
    A(f"v_lshlrev_b32 v{hO1}, 4, v{vL}")
    A(f"s_mul_i32 s{sBLK}, s2, {BS}"); A(f"s_add_u32 s{sBLK}, s{sBLK}, {BLK}")
    A(f"s_lshr_b32 s{sGRP}, s2, 7"); A(f"s_lshl_b32 s{sGRP}, s{sGRP}, 3"); A(f"s_add_u32 s{sGRP}, s{sGRP}, s{sKS}"); A(f"s_lshl_b32 s{sGRP}, s{sGRP}, 4")
    A("s_waitcnt lgkmcnt(0)")
    srd(S_WS, 28, WS_BYTES); srd(S_DBG, 26, 256)
    stamp(0)
    A("s_cmp_ge_u32 s2, 8"); A("s_cbranch_scc1 L_noinit")
    for r in range(4): A(f"v_mov_b32 v{4+r}, 0")
    A(f"s_lshl_b32 s{sT0}, s2, 12"); A(f"s_add_u32 s{sT0}, s{sT0}, {FLG}"); A(f"s_lshl_b32 s{sT1}, s2, 2")
    for i in range(4):
        A(f"buffer_store_dwordx4 v[4:7], v{hO1}, {sr(S_WS)}, s{sT0} offen offset:{i*1024} sc1")
    if LV:
        A(f"s_add_u32 s{sT0}, s{sT0}, {CNT - FLG}")
        for i in range(4):
            A(f"buffer_store_dwordx4 v[4:7], v{hO1}, {sr(S_WS)}, s{sT0} offen offset:{i*1024} sc1")
    A("v_mov_b32 v5, 1")
    A("s_waitcnt vmcnt(0)")
    A("s_mov_b64 exec, 1")
    A(f"buffer_store_dword v5, v4, {sr(S_DBG)}, s{sT1} offen sc1")
    A("s_mov_b64 exec, -1")
    A.label("L_noinit")
    for r in range(4): A(f"v_mov_b32 v{4+r}, -1")
    if "i" not in skip: A(f"buffer_store_dwordx4 v[4:7], v{hO1}, {sr(S_WS)}, s{sBLK} offen sc1")
    if "i" not in skip: A(f"buffer_store_dwordx4 v[4:7], v{hO1}, {sr(S_WS)}, s{sBLK} offen offset:1024 sc1")
    if preBP:
        A(f"s_lshl_b32 s{sT0}, s2, 11"); A(f"s_add_u32 s{sT0}, s{sT0}, {BP}")
        for i in range(2): A(f"buffer_store_dwordx4 v[4:7], v{hO1}, {sr(S_WS)}, s{sT0} offen offset:{i*1024} sc1")
    smask(sE, (1 << 56) - 1)
    A(f"s_mov_b64 exec, s[{sE}:{sE+1}]")
    if "i" not in skip: A(f"buffer_store_dwordx4 v[4:7], v{hO1}, {sr(S_WS)}, s{sBLK} offen offset:2048 sc1")
    A("s_mov_b64 exec, -1")
    A(f"v_mov_b32 v{hO2}, {L_ST}")
    A(f"ds_write_b128 v{hO2}, v[4:7]"); A(f"ds_write_b128 v{hO2}, v[4:7] offset:16")
    if LV:
        for r in range(4): A(f"v_mov_b32 v{30+r}, 0")
        A(f"ds_write_b128 v{hO2}, v[30:33] offset:{L_PRG - L_ST}"); A(f"ds_write_b32 v{hO2}, v30 offset:{L_PRG - L_ST + 16}")
    build_sel()
    A(f"v_lshrrev_b32 v4, 3, v{vJ}"); A(f"v_lshlrev_b32 v{hO2}, 9, v4")
    A(f"v_lshl_add_u32 v{hO2}, v{vG}, 7, v{hO2}")
    A(f"v_and_b32 v7, 7, v{vJ}"); A(f"v_lshl_add_u32 v{hO2}, v7, 4, v{hO2}")
    A(f"v_add_u32 v{hO3}, {L_SC}, v{hO1}")
    A(f"s_lshl_b32 s{sFL}, s2, 7"); A(f"s_add_u32 s{sFL}, s{sFL}, {FLG}")
    hQW, hQG, hFP, hD8, hQG2, hQW2 = 24, 25, 20, 26, 27, 28
    A(f"v_lshlrev_b32 v{hFP}, 7, v7")
    A(f"v_lshlrev_b32 v{hD8}, 2, v7")
    A(f"v_lshlrev_b32 v{hQW2}, 6, v4"); A(f"v_lshl_add_u32 v{hQW2}, v7, 1, v{hQW2}"); A(f"v_add_u32 v{hQW2}, {L_QBL}, v{hQW2}")
    A(f"v_lshlrev_b32 v{hQG2}, 11, v{vG}"); A(f"v_lshl_add_u32 v{hQG2}, v{vJ}, 4, v{hQG2}")
    A(f"v_lshrrev_b32 v4, 5, v{vL}"); A(f"v_and_b32 v5, 31, v{vL}")
    A(f"v_lshlrev_b32 v{hQG}, 11, v4"); A(f"v_lshl_add_u32 v{hQG}, v5, 4, v{hQG}")
    A("v_lshrrev_b32 v5, 3, v5"); A(f"v_lshlrev_b32 v{hQW}, 6, v5")
    A(f"v_lshl_add_u32 v{hQW}, v7, 1, v{hQW}"); A(f"v_add_u32 v{hQW}, {L_QL}, v{hQW}")
    sXC = 69
    A(f"s_getreg_b32 s{sXC}, hwreg(HW_REG_XCC_ID, 0, 4)"); A(f"s_add_u32 s{sXC}, s{sXC}, 16")
    A(f"v_mov_b32 v4, s{sXC}"); A("v_mov_b32 v5, 0")
    A(f"s_lshl_b32 s{sT0}, s2, 11"); A(f"s_add_u32 s{sT1}, s{sT0}, {QP_B}")
    A(f"s_lshl_b32 s{sT2}, s{sH}, 10"); A(f"s_add_u32 s{sT2}, s{sT2}, {FLG}")
    A(f"s_lshl_b32 s{sT3}, s{sH}, 14"); A(f"s_lshl_b32 s{sCNT}, s{sB}, 9"); A(f"s_add_u32 s{sT3}, s{sT3}, s{sCNT}")
    A(f"s_lshl_b32 s{sCNT}, s{sS}, 8"); A(f"s_add_u32 s{sCNT}, s{sCNT}, s{sT3}"); A(f"s_add_u32 s{sCNT}, s{sCNT}, {QP_B}")
    A("s_waitcnt lgkmcnt(0)")
    A("s_barrier")
    stamp(1)
    for i in range(4):
        for v in range(4): A(f"ds_read_b128 {vr(64+16*i+4*v)}, v{hO3} offset:{v*4096+i*1024}")
        if i == 1: A("s_waitcnt lgkmcnt(4)")
    for i in range(4):
        b = 64 + 16 * i
        A(f"s_waitcnt lgkmcnt({12 - 4 * i})")
        for r in range(4):
            A(f"v_add_f32 v{b+r}, v{b+r}, v{b+4+r}"); A(f"v_add_f32 v{b+8+r}, v{b+8+r}, v{b+12+r}")
        for r in range(4): A(f"v_add_f32 v{b+r}, v{b+r}, v{b+8+r}")
        if "q" not in skip: A(f"buffer_store_dwordx4 {vr(b)}, v{hO2}, {sr(S_WS)}, s{sT1 if i >= 2 else sT0} offen offset:{(i&1)*1024} {qfl}")
    poll("L_pi", lambda: (A(f"buffer_load_dword v6, v{hD8}, {sr(S_DBG)}, 0 offen sc1"), A("s_waitcnt vmcnt(0)")), lambda: None, "v_cmp_ne_u32", 1, qsleep)
    A("s_mov_b64 exec, 1")
    A(f"buffer_store_dword v4, v5, {sr(S_WS)}, s{sFL} offen sc1")
    A("s_mov_b64 exec, -1")
    stamp(2)
    for _ in range(qpre): A("s_sleep 32")
    poll("L_pq", lambda: (A(f"buffer_load_dword v6, v{hFP}, {sr(S_WS)}, s{sT2} offen sc1"), A("s_waitcnt vmcnt(0)")), lambda: None, "v_cmp_eq_u32", 0, qsleep)
    stamp(3)
    for i in range(4):
        if "g" not in skip: A(f"buffer_load_dwordx4 {vr(64+4*i)}, v{hQG}, {sr(S_WS)}, s{sT3} offen sc1")
        if i < 3: A(f"s_add_u32 s{sT3}, s{sT3}, 4096")
    if "g" not in skip: A(f"buffer_load_dwordx4 {vr(80)}, v{hQG2}, {sr(S_WS)}, s{sCNT} offen sc1")
    A(f"s_add_u32 s{sCNT}, s{sCNT}, 8192")
    if "g" not in skip: A(f"buffer_load_dwordx4 {vr(84)}, v{hQG2}, {sr(S_WS)}, s{sCNT} offen sc1")
    A("s_waitcnt vmcnt(2)")
    for r in range(4):
        A(f"v_add_f32 v{64+r}, v{64+r}, v{68+r}"); A(f"v_add_f32 v{72+r}, v{72+r}, v{76+r}")
    for r in range(4): A(f"v_add_f32 v{64+r}, v{64+r}, v{72+r}")
    for r in range(4): A(f"v_mov_b32 v{68+r}, v{64+r}")
    for r in range(4): A(f"v_permlane32_swap_b32 v{68+r}, v{64+r}")
    for r in range(4): A(f"v_add_f32 v{64+r}, v{64+r}, v{68+r}")
    def write_b16(addr, b, off):
        A(f"v_cvt_pk_bf16_f32 v{b}, v{b}, v{b+1}"); A(f"v_cvt_pk_bf16_f32 v{b+2}, v{b+2}, v{b+3}")
        A(f"ds_write_b16 v{addr}, v{b} offset:{off}"); A(f"ds_write_b16_d16_hi v{addr}, v{b} offset:{off+16}")
        A(f"ds_write_b16 v{addr}, v{b+2} offset:{off+32}"); A(f"ds_write_b16_d16_hi v{addr}, v{b+2} offset:{off+48}")
    write_b16(hQW, 64, 0)
    A("s_waitcnt vmcnt(0)")
    for r in range(4): A(f"v_add_f32 v{80+r}, v{80+r}, v{84+r}")
    for r in range(4): allreduce(80 + r, 84 + r, "v_add_f32", [])
    write_b16(hQW2, 80, 0)
    A(f"v_and_b32 v4, 0x70, v{hO1}"); A(f"v_add_u32 v5, {L_QBL}, v4")
    A("ds_read_b128 v[80:83], v5")
    A("s_waitcnt lgkmcnt(0)")
    for r in range(4): A(f"v_min_u32 v{80+r}, -2, v{80+r}")
    A("s_mov_b64 exec, 0xff")
    A(f"buffer_store_dwordx4 v[80:83], v4, {sr(S_WS)}, s{sBLK} offen offset:{O_QB2} sc1")
    A("s_mov_b64 exec, -1")
    hR = 23
    A(f"v_add_u32 v{hR}, {L_R2}, v{hO1}")
    stamp(4)
    A("s_barrier")
    def lds_frags(off):
        for k in range(32):
            A(f"ds_read_b128 {ar(4*k)}, v{hR} offset:{off + k*1024}")
            if k % 8 == 7: A("s_waitcnt lgkmcnt(0)")
    lds_frags(L_R3 - L_R2)
    rec_producer(5, 6, 7)
    A(f"v_add_u32 v4, s{sGRP}, v{vJ}")
    smask(sE, 0x00000000FFFF0000)
    A(f"v_cndmask_b32 v4, v4, v5, s[{sE}:{sE+1}]")
    sLG = 64
    A(f"s_and_b32 s{sLG}, s2, 0x87"); A(f"v_lshl_add_u32 v5, v{vJ}, 3, s{sLG}")
    smask(sE, 0x0000FFFF00000000)
    A(f"v_cndmask_b32 v4, v4, v5, s[{sE}:{sE+1}]")
    A(f"s_xor_b32 s{sT0}, s2, 1"); A(f"v_mov_b32 v5, s{sT0}")
    smask(sE, 0xFFFF000000000000)
    A(f"v_cndmask_b32 v4, v4, v5, s[{sE}:{sE+1}]"); A("v_lshlrev_b32 v4, 7, v4")
    A(f"s_mov_b32 s{sT1}, {FLG}")
    poll("L_pa", lambda: (A(f"buffer_load_dword v6, v4, {sr(S_WS)}, s{sT1} offen sc1"), A("s_waitcnt vmcnt(0)")), lambda: None, "v_cmp_eq_u32", 0, hsleep)
    A(f"v_cmp_ne_u32 s[{sE}:{sE+1}], s{sXC}, v6")
    A(f"s_and_b32 s{sT0}, s{sE+1}, 0xffff")
    A(f"s_cselect_b32 s{sT0}, 0, {LOC}")
    A(f"s_cselect_b32 s{sXC}, 0, {LOCB}")
    A(f"v_mov_b32 v4, {L_PRG}"); A(f"v_mov_b32 v5, s{sT0}"); A("ds_write_b32 v4, v5 offset:20")
    stamp(5)
    hETA = 28
    sGB_ = 98
    A(f"s_mul_i32 s{sGB_}, s{sGRP}, {BS}"); A(f"s_add_u32 s{sGB_}, s{sGB_}, {BLK}")
    A(f"v_bfe_u32 v4, v{vJ}, 1, 2"); A(f"v_lshrrev_b32 v5, 3, v{vJ}"); A(f"v_lshl_add_u32 v{hETA}, v4, 1, v5")
    A(f"v_mul_u32_u24 v4, {2 * BS}, v{hETA}"); A(f"v_lshl_add_u32 v4, v{vG}, 5, v4")
    A(f"v_and_b32 v5, 1, v{vJ}"); A("v_lshl_add_u32 v4, v5, 4, v4")
    hQ = 30
    def ldq():
        A(f"buffer_load_dwordx4 {vr(hQ)}, v4, {sr(S_WS)}, s{sGB_} offen offset:{O_QB2} sc1")
        A(f"buffer_load_dwordx4 {vr(hQ+4)}, v4, {sr(S_WS)}, s{sGB_} offen offset:{O_QB2 + BS} sc1")
        A("s_waitcnt vmcnt(0)")
    def redq():
        A(f"v_max3_u32 v6, v{hQ}, v{hQ+1}, v{hQ+2}"); A(f"v_max3_u32 v6, v6, v{hQ+3}, v{hQ+4}")
        A(f"v_max3_u32 v6, v6, v{hQ+5}, v{hQ+6}"); A(f"v_max_u32 v6, v6, v{hQ+7}")
    poll("L_q2", ldq, redq, "v_cmp_eq_u32", -1, hsleep)
    stamp(6)
    hS = 64
    hDD = 38
    def postB(g8):
        d = hDD + 4 * (g8 & 1)
        for r2 in range(2):
            A(f"v_mov_b32_dpp v{hS+2*g8+r2}, v{d+2*r2} quad_perm:[0,0,2,2] {FULL}")
            A(f"v_add_f32_dpp v{hS+2*g8+r2}, v{d+2*r2+1}, v{hS+2*g8+r2} quad_perm:[1,1,3,3] {FULL}")
    for g8 in range(16):
        d = hDD + 4 * (g8 & 1)
        A(f"v_mfma_f32_16x16x32_bf16 {vr(d)}, {ar(8*g8)}, {vr(hQ)}, 0")
        A(f"v_mfma_f32_16x16x32_bf16 {vr(d)}, {ar(8*g8+4)}, {vr(hQ+4)}, {vr(d)}")
        if g8 > 0: postB(g8 - 1)
    postB(15)
    lds_frags(0)
    hM, hL, hNM = 46, 47, 48
    A(f"v_max_f32 v{hM}, v{hS}, v{hS+1}")
    for k in range(2, 32, 2): A(f"v_max3_f32 v{hM}, v{hM}, v{hS+k}, v{hS+k+1}")
    allreduce(hM, 4, "v_max_f32", [])
    A(f"v_mul_f32 v{hM}, s{sC}, v{hM}"); A(f"v_sub_f32 v{hNM}, 0, v{hM}")
    for k in range(32): A(f"v_fma_f32 v{hS+k}, v{hS+k}, s{sC}, v{hNM}")
    for k in range(32): A(f"v_exp_f32 v{hS+k}, v{hS+k}")
    A(f"v_add_f32 v{hL}, v{hS}, v{hS+1}")
    for k in range(2, 32): A(f"v_add_f32 v{hL}, v{hL}, v{hS+k}")
    allreduce(hL, 4, "v_add_f32", [])
    for k in range(32): A(f"v_cvt_pk_bf16_f32 v{hS+k}, v{hS+k}, v{hS+k}")
    hOB = 96
    hBB = 50
    cnt = 0
    for k in range(32):
        for q in range(4):
            b = hBB + 4 * (cnt & 1); cnt += 1
            for rr in range(4):
                if q == rr: A(f"v_and_b32 v{b+rr}, v{hS+k}, v{vMSK+rr}")
                elif q > rr: A(f"v_and_b32_dpp v{b+rr}, v{hS+k}, v{vMSK+rr} row_shl:{2*(q-rr)} {FULL} bound_ctrl:0")
                else: A(f"v_and_b32_dpp v{b+rr}, v{hS+k}, v{vMSK+rr} row_shr:{2*(rr-q)} {FULL} bound_ctrl:0")
            A(f"v_mfma_f32_16x16x32_bf16 {vr(hOB+4*q)}, {ar(4*k)}, {vr(b)}, {'0' if k == 0 else vr(hOB+4*q)}")
    A(f"v_rcp_f32 v7, v{hL}"); A(f"v_log_f32 v{hL}, v{hL}"); A(f"v_add_f32 v{hM}, v{hM}, v{hL}"); A(f"v_min_u32 v{hM}, -2, v{hM}")
    A(f"v_lshrrev_b32 v4, 1, v{hO2}")
    A(f"s_lshl_b32 s{sT0}, s2, 11"); A(f"s_add_u32 s{sT0}, s{sT0}, {BP}")
    for q in range(4):
        o = hOB + 4 * q
        A(f"v_mov_b32_dpp v5, v7 row_newbcast:{2*q} row_mask:0xf bank_mask:0x3")
        A(f"v_mov_b32_dpp v5, v7 row_newbcast:{8+2*q} row_mask:0xf bank_mask:0xc")
        for r in range(4): A(f"v_mul_f32 v{o+r}, v{o+r}, v5")
        A(f"v_cvt_pk_bf16_f32 v{o}, v{o}, v{o+1}"); A(f"v_cvt_pk_bf16_f32 v{o+1}, v{o+2}, v{o+3}")
    A(f"v_lshlrev_b32 v5, 2, v{hETA}")
    A(f"s_cmp_eq_u32 s{sXC}, 1"); A("s_cbranch_scc1 L_bploc")
    for fl in ("sc1", ""):
        for q in range(4):
            A(f"buffer_store_dwordx2 {vr(hOB+4*q,2)}, v4, {sr(S_WS)}, s{sT0} offen offset:{q*512} {fl}")
        A("s_waitcnt vmcnt(0)")
        A("s_mov_b64 exec, 0x5555")
        A(f"buffer_store_dword v{hM}, v5, {sr(S_WS)}, s{sBLK} offen offset:{O_BST} {fl}")
        A("s_mov_b64 exec, -1")
        if fl: A("s_branch L_bpdone"); A.label("L_bploc")
    A.label("L_bpdone")
    stamp(7)
    A(f"v_mul_u32_u24 v4, {8 * BS}, v{vJ}")
    A(f"s_and_b32 s{sT2}, s{sH1}, 15")
    A(f"s_lshr_b32 s{sT1}, s{sT2}, 1"); A(f"s_lshl_b32 s{sT1}, s{sT1}, 2")
    A(f"s_mul_i32 s{sT0}, s{sLG}, {BS}"); A(f"s_add_u32 s{sT0}, s{sT0}, s{sT1}"); A(f"s_add_u32 s{sT0}, s{sT0}, {BLK}")
    for _ in range(l2pre): A("s_sleep 32")
    if "s" not in skip: poll("L_l2", lambda: (A(f"buffer_load_dword v6, v4, {sr(S_WS)}, s{sT0} offen offset:{O_BST} sc1"), A("s_waitcnt vmcnt(0)")), lambda: None, "v_cmp_eq_u32", -1, l2sleep, pre_sleep=True)
    A(f"v_lshlrev_b32 v5, 14, v{vJ}"); A(f"v_lshl_add_u32 v5, v{vG}, 4, v5")
    A(f"s_lshl_b32 s{sT0}, s{sLG}, 11"); A(f"s_lshl_b32 s{sT1}, s{sT2}, 7")
    A(f"s_add_u32 s{sT0}, s{sT0}, s{sT1}"); A(f"s_add_u32 s{sT0}, s{sT0}, {BP}")
    for i in range(2):
        if "l" not in skip: A(f"buffer_load_dwordx4 {vr(80+4*i)}, v5, {sr(S_WS)}, s{sT0} offen offset:{i*64} sc1")
    A("v_mov_b32 v7, v6")
    for r in (8, 4, 2, 1): A(f"v_max_f32_dpp v7, v7, v7 row_ror:{r} {FULL}")
    A("v_sub_f32 v6, v6, v7"); A("v_exp_f32 v6, v6"); A("v_mov_b32 v7, v6")
    for r in (8, 4, 2, 1): A(f"v_add_f32_dpp v7, v7, v7 row_ror:{r} {FULL}")
    A("v_rcp_f32 v7, v7"); A("v_mul_f32 v6, v6, v7")
    A("s_waitcnt vmcnt(0)")
    for r in range(8):
        A(f"v_lshlrev_b32 v{64+2*r}, 16, v{80+r}"); A(f"v_and_b32 v{65+2*r}, 0xffff0000, v{80+r}")
    for r in range(16): A(f"v_mul_f32 v{64+r}, v{64+r}, v6")
    for rot in (8, 4, 2, 1):
        for r in range(16): A(f"v_add_f32_dpp v{64+r}, v{64+r}, v{64+r} row_ror:{rot} {FULL}")
    smask(sE, 0x0001000100010001)
    for r in range(8):
        A(f"v_cvt_pk_bf16_f32 v{80+r}, v{64+2*r}, v{65+2*r}")
        A(f"v_min_u32 v{80+r}, -2, v{80+r}"); A(f"v_cndmask_b32 v{80+r}, 0, v{80+r}, s[{sE}:{sE+1}]")
    A(f"v_xor_b32 v4, s{sT2}, v{vJ}"); A(f"v_and_b32 v4, 1, v4"); A("v_lshlrev_b32 v4, 7, v4"); A(f"v_lshl_add_u32 v4, v{vG}, 4, v4")
    smask(sE, 0x0003000300030003)
    A(f"s_mov_b64 exec, s[{sE}:{sE+1}]")
    for i in range(2):
        if "r" not in skip: A(f"buffer_store_dwordx4 {vr(80+4*i)}, v4, {sr(S_WS)}, s{sBLK} offen offset:{O_REC + 256 + i*64} sc1")
    A("s_mov_b64 exec, -1")
    stamp(8)
    hm, hl = 58, 59
    hMW, hLW, hZ = 60, 61, 20
    A(f"v_mov_b32 v{hZ}, 0")
    def astats():
        A(f"v_and_b32 v4, 3, v{vL}"); A("v_lshlrev_b32 v5, 3, v4"); A(f"v_add_u32 v5, {L_ST}, v5")
        poll("L_st", lambda: (A(f"ds_read_b64 {vr(hm,2)}, v5"), A("s_waitcnt lgkmcnt(0)")), lambda: A(f"v_max_u32 v6, v{hm}, v{hl}"), "v_cmp_eq_u32", -1, hsleep)
        A(f"v_mov_b32 v{hMW}, v{hm}")
        for mode in ("quad_perm:[1,0,3,2]", "quad_perm:[2,3,0,1]"): A(f"v_max_f32_dpp v{hMW}, v{hMW}, v{hMW} {mode} {FULL}")
        A(f"v_sub_f32 v6, v{hm}, v{hMW}"); A("v_exp_f32 v6, v6"); A(f"v_mul_f32 v{hLW}, v6, v{hl}")
        for mode in ("quad_perm:[1,0,3,2]", "quad_perm:[2,3,0,1]"): A(f"v_add_f32_dpp v{hLW}, v{hLW}, v{hLW} {mode} {FULL}")
        A(f"v_min_u32 v6, -2, v{hMW}"); A(f"v_min_u32 v7, -2, v{hLW}")
        A("s_mov_b64 exec, 1")
        A(f"buffer_store_dwordx2 v[6:7], v{hZ}, {sr(S_WS)}, s{sBLK} offen offset:{O_AST} sc1")
        A("s_mov_b64 exec, -1")

    def weights():
        A(f"s_xor_b32 s{sT0}, s2, 1"); A(f"s_mul_i32 s{sT0}, s{sT0}, {BS}"); A(f"s_add_u32 s{sT0}, s{sT0}, {BLK}")
        poll("L_ps", lambda: (A(f"buffer_load_dwordx2 v[36:37], v{hZ}, {sr(S_WS)}, s{sT0} offen offset:{O_AST} sc1"), A("s_waitcnt vmcnt(0)")), lambda: A("v_max_u32 v6, v36, v37"), "v_cmp_eq_u32", -1, psleep if not LV else 16, pre_sleep=not LV)
        A(f"v_max_f32 v4, v{hMW}, v36")
        A(f"v_sub_f32 v5, v{hMW}, v4"); A("v_sub_f32 v6, v36, v4"); A(f"v_sub_f32 v7, v{hm}, v4")
        A("v_exp_f32 v5, v5"); A("v_exp_f32 v6, v6"); A("v_exp_f32 v7, v7")
        A(f"v_mul_f32 v5, v5, v{hLW}"); A("v_fmac_f32 v5, v6, v37")
        A("v_rcp_f32 v5, v5"); A("v_mul_f32 v7, v7, v5")
        A(f"v_and_b32 v4, 3, v{vL}"); A("v_lshlrev_b32 v4, 2, v4"); A(f"v_add_u32 v4, {L_WGT}, v4")
        A("ds_write_b32 v4, v7")

    if True:
        sCA, sMI, sLN, sOW = 99, 100, 101, 65
        A(f"s_mul_i32 s{sLN}, s{sKS}, 3840"); A(f"s_add_u32 s{sLN}, s{sLN}, {CNT}")
        A(f"s_lshl_b32 s{sOW}, s{sH1}, 1"); A(f"s_add_u32 s{sOW}, s{sOW}, s{sLN}")
        A(f"s_mov_b32 s{sCA}, {CNT + 128}")
        A(f"v_mov_b32 v30, {L_PRG}"); A(f"v_lshlrev_b32 v31, 1, v{vL}")
        A(f"s_mov_b32 s{sMI}, {M0 if KC else KT}")
        A.label("L_cloop")
        A(f"s_lshl_b32 s{sT2}, s{sMI}, 2")
        A(f"s_mov_b32 s{sSPIN}, {spin}")
        A.label("L_cw")
        A("ds_read_b128 v[32:35], v30")
        A("s_waitcnt lgkmcnt(0)")
        A("v_add3_u32 v32, v32, v33, v34"); A("v_add3_u32 v32, v32, v35, 1")
        A(f"v_readfirstlane_b32 s{sT0}, v32")
        A(f"s_cmp_ge_u32 s{sT0}, s{sT2}"); A("s_cbranch_scc1 L_cw_ok")
        spin_tail("L_cw", csleep)
        A.label("L_cw_ok")
        A(f"s_add_u32 s{sT3}, s{sMI}, 1"); A(f"v_mov_b32 v32, s{sT3}")
        A(f"buffer_load_ushort v34, v31, {sr(S_WS)}, s{sLN} offen {lfl}")
        A("s_mov_b64 exec, 1")
        A(f"buffer_store_short v32, v{hZ}, {sr(S_WS)}, s{sOW} offen")
        A("s_mov_b64 exec, -1")
        A("s_waitcnt vmcnt(0)")
        A(f"v_cmp_lt_u32 s[{sE}:{sE+1}], s{sMI}, v34"); A(f"s_bcnt1_i32_b32 s{sT0}, s{sE}")
        A(f"s_mov_b32 s{sT1}, 0")
        for k in range(1, NCMP):
            A(f"v_cmp_lt_u32 s[{sE}:{sE+1}], s{sT3}, v34"); A(f"s_bcnt1_i32_b32 s{sT2}, s{sE}")
            A(f"s_add_u32 s{sT1}, s{sT1}, s{sT2}"); A(f"s_add_u32 s{sT3}, s{sT3}, 1")
        if XB:
            A(f"v_readlane_b32 s{sT2}, v34, 32")
            A(f"s_min_u32 s{sT2}, s{sT2}, 7"); A(f"s_mul_i32 s{sT2}, s{sT2}, {XB}")
            A(f"s_add_u32 s{sT1}, s{sT1}, s{sT2}")
        A(f"s_add_u32 s{sT1}, s{sT0}, s{sT1}")
        A(f"s_mov_b32 s{sT2}, 0")
        for li, t in enumerate(TAU):
            A(f"s_cmp_ge_u32 s{sT1}, {t}"); A(f"s_cselect_b32 s{sT2}, {li+1}, s{sT2}")
        A(f"v_mov_b32 v33, s{sT2}"); A("ds_write_b32 v30, v33 offset:16")
        if XB:
            A(f"s_and_b32 s{sT2}, s{sMI}, {XP - 1}"); A("s_cbranch_scc1 L_nrep")
            A(f"s_add_u32 s{sCA}, s{sCA}, 1280")
            A(f"s_cmp_lg_u32 s{sT0}, 15"); A("s_cbranch_scc1 L_nrep")
            A("v_mov_b32 v32, 1")
            A("s_mov_b64 exec, 1")
            A(f"buffer_atomic_add v32, v{hZ}, {sr(S_WS)}, s{sCA} offen sc0 sc1")
            A("s_waitcnt vmcnt(0)")
            A(f"buffer_store_short v32, v{hZ}, {sr(S_WS)}, s{sLN} offen offset:64")
            A("s_mov_b64 exec, -1")
            A.label("L_nrep")
            assert 128 + 1280 * ((KT + VT - (M0 if KC else KT)) // XP + 1) < 32768
        A(f"s_add_u32 s{sMI}, s{sMI}, 1")
        A(f"s_cmp_lg_u32 s{sMI}, {KT + 2}"); A("s_cbranch_scc1 L_na")
        astats()
        A.label("L_na")
        A(f"s_cmp_lg_u32 s{sMI}, {KT + VT // 2}"); A("s_cbranch_scc1 L_nw")
        weights()
        A.label("L_nw")
        A(f"s_cmp_le_u32 s{sMI}, {KT + VT - LASTD}"); A("s_cbranch_scc1 L_cloop")
    stamp(10); stamp(11)
    A("s_waitcnt vmcnt(0) lgkmcnt(0)")
    A.label("L_end")
    A("s_endpgm")

    nn = A.fix_hazards()
    out = HEADER
    out += f"; @launch grid=(256,1,1) block=(320,1,1) lds={LDS_BYTES}\n"
    out += '.amdgcn_target "amdgcn-amd-amdhsa--gfx950"\n.text\n'
    out += f".globl {NAME}_kernel\n.p2align 8\n.type {NAME}_kernel,@function\n{NAME}_kernel:\n"
    out += A.text()
    out += '.section .rodata,"a"\n.p2align 6\n'
    out += f".amdhsa_kernel {NAME}_kernel\n"
    out += "  .amdhsa_next_free_vgpr 256\n  .amdhsa_next_free_sgpr 102\n  .amdhsa_accum_offset 128\n"
    out += "  .amdhsa_group_segment_fixed_size 0\n  .amdhsa_kernarg_size 104\n  .amdhsa_user_sgpr_count 2\n"
    out += "  .amdhsa_user_sgpr_kernarg_segment_ptr 1\n  .amdhsa_system_sgpr_workgroup_id_x 1\n"
    out += "  .amdhsa_float_denorm_mode_32 3\n"
    out += ".end_amdhsa_kernel\n"
    return out

if __name__ == "__main__":
    import json
    kw = json.loads(sys.argv[2]) if len(sys.argv) > 2 else {}
    open(sys.argv[1], "w").write(gen(**kw))
```

```python
import sys, struct, math
sys.path.insert(0, "dev")
from asmlib import Asm
NAME = "concat_heads__mha_block_cached__sliding_block_cached__decode"

HEADER = """; Kernarg layout for this problem (104 bytes, ptrs only, base s[0:1]):
;   offset  32: d_in[4] A_wo  shape=(4096, 1024) dtype=bfloat16
;   offset  72: d_in[9] B_wo  shape=(4096, 1024) dtype=bfloat16
;   offset  88: d_debug   256 bytes (words 0..7: "flag lines cleared")
;   offset  96: d_ws      workspace
; 256 workgroups x 5 waves: waves 0-3 stream all HBM data, wave 4 does hand-offs and branch B math.
"""

QP_A = 0x000000
QP_B = 0x080000
BP   = 0x100000
FLG  = 0x180000
CNT  = 0x188000
BLK  = 0x200000
BS   = 2944
O_QB2, O_BST, O_AST, O_REC, O_P2 = 0, 128, 256, 384, 896
TS   = 0x400000
WS_BYTES = 0x800000
L_WO  = 0
L_R2  = 0x10000
L_R3  = 0x18000
L_SC  = 0x20000
L_EX  = 0x24000
L_QL  = 0x26000
L_QBL = 0x26100
L_ST  = 0x26200
L_WGT = 0x26220
L_PRG = 0x26240
LDS_BYTES = 0x26300
FULL = "row_mask:0xf bank_mask:0xf"
SCALE = (128 ** -0.5) * math.log2(math.e)
def f32bits(x): return struct.unpack("<I", struct.pack("<f", x))[0]

def gen(DS=4, DT=4, LOCB=1, LOC=1, U=16, KC=0, M0=5, XP=1, NCMP=2, LASTD=2, lfl="sc1", XB=3, GX=0, SAMEL=0, afl="sc0 sc1", qpre=0, l2pre=0, BROT=1, NDEF=8, DW=6, BURST=4, TRN=4, preBP=False, pfl="sc1", sfl="sc1", gsleep=1, s3sleep=1, PIPE=1, ORD="seq", TLB=0, prof3=False, CS=384, MS=(3, 7, 10, 12), TAU=(28, 40), SMPMASK=15, SMPVAL=5, LV=(4, 5, 6), THR=(0.6, 0.85), NG=32, PER=2, csleep=4, LASTM=12, bfl="sc1", qfl="sc1", l2sleep=16, prof2=False, G=1, osc1="", DP0=8, DP=(6,), DK=(4,), DV=(4,), DE=None, NE=0, X=12, prof=False, spin=1 << 16, hsleep=16, psleep=100, tsleep=1, qsleep=4, skip="", gfl="sc1", diag=None):
    tup = lambda x: (x,) if isinstance(x, int) else tuple(x)
    DP, DK, DV = tup(DP), tup(DK), tup(DV)
    DE = DV if DE is None else tup(DE)
    A = Asm()
    in_helper = [False]
    def srd(base, ptr, size):
        A(f"s_mov_b32 s{base}, s{ptr}"); A(f"s_mov_b32 s{base+1}, s{ptr+1}")
        A(f"s_mov_b32 s{base+2}, {hex(size)}"); A(f"s_mov_b32 s{base+3}, 0x00020000")
    def smask(r, val):
        A(f"s_mov_b32 s{r}, {hex(val & 0xffffffff)}"); A(f"s_mov_b32 s{r+1}, {hex(val >> 32)}")
    S_K, S_V, S_X, S_W, S_WS, S_O, S_WO = 32, 36, 40, 44, 48, 52, 56
    sr = lambda b: f"s[{b}:{b+3}]"
    vr = lambda b, n=4: f"v[{b}:{b+n-1}]"
    ar = lambda b, n=4: f"a[{b}:{b+n-1}]"
    sT0, sT1, sT2, sT3, sCNT, sOFFK, sOFFV, sC, sSPIN, sLD = 60, 61, 62, 63, 64, 65, 66, 67, 68, 69
    sM = 70
    sE = 86
    sTS = 88
    sTI = 90
    sH1, sKS, sB, sH, sS = 91, 92, 93, 94, 95
    sKB = 30
    vL, vG, vJ = 1, 2, 3
    def stamp(idx):
        if diag and not in_helper[0]:
            wg, sidx, base, mul = diag
            if idx == sidx:
                A("s_memrealtime s[4:5]"); A("s_waitcnt lgkmcnt(0)"); A("s_sub_u32 s90, s4, s88"); A(f"s_mul_i32 s90, s90, {mul}")
            if idx == 10:
                if sidx < 0: A("s_mov_b32 s90, 0")
                if wg >= 0:
                    A(f"s_cmp_lg_u32 s2, {wg}"); A("s_cbranch_scc1 L_end")
                A(f"s_add_u32 s90, s90, {base*100}")
                A.label("L_diag")
                A("s_memrealtime s[4:5]"); A("s_waitcnt lgkmcnt(0)"); A("s_sub_u32 s4, s4, s88")
                A("s_cmp_lt_u32 s4, s90"); A("s_cbranch_scc1 L_diag")
        if not prof: return
        A(f"s_memrealtime s[{sTS}:{sTS+1}]")
        A("s_waitcnt lgkmcnt(0)")
        A(f"v_mov_b32 v63, s{sTS}")
        A(f"s_mov_b64 exec, 1")
        A(f"buffer_store_dword v63, v62, {sr(S_WS)}, s{sTI} offen offset:{idx*4}")
        A(f"s_mov_b64 exec, -1")
    def lstamp():
        if not prof2: return
        A(f"s_memrealtime s[{sTS}:{sTS+1}]")
        A("s_waitcnt lgkmcnt(0)")
        A(f"s_mov_b32 m0, s31")
        A(f"v_writelane_b32 v63, s{sTS}, m0")
        A("s_add_u32 s31, s31, 1")
    def spin_tail(lab, sl):
        A(f"s_sleep {sl}")
        A(f"s_sub_u32 s{sSPIN}, s{sSPIN}, 1"); A(f"s_cmp_lg_u32 s{sSPIN}, 0"); A(f"s_cbranch_scc1 {lab}")
    def allreduce(v, tmp, op, rors):
        for r in rors: A(f"{op}_dpp v{v}, v{v}, v{v} row_ror:{r} {FULL}")
        A(f"v_mov_b32 v{tmp}, v{v}"); A(f"v_permlane16_swap_b32 v{tmp}, v{v}"); A(f"{op} v{v}, v{v}, v{tmp}")
        A(f"v_mov_b32 v{tmp}, v{v}"); A(f"v_permlane32_swap_b32 v{tmp}, v{v}"); A(f"{op} v{v}, v{v}, v{tmp}")

    A(f"s_cmp_ge_u32 s2, 256")
    A("s_cbranch_scc1 L_end")
    A("s_load_dwordx16 s[4:19], s[0:1], 0")
    A("s_load_dwordx8 s[20:27], s[0:1], 64")
    A("s_load_dwordx2 s[28:29], s[0:1], 96")
    A(f"v_lshrrev_b32 v4, 6, v0")
    A(f"v_and_b32 v{vL}, 63, v0")
    A(f"v_readfirstlane_b32 s3, v4")
    A(f"v_lshrrev_b32 v{vG}, 4, v{vL}")
    A(f"v_and_b32 v{vJ}, 15, v{vL}")
    A(f"s_lshr_b32 s{sH1}, s2, 3")
    A(f"s_and_b32 s{sKS}, s2, 7")
    A(f"s_lshr_b32 s{sB}, s2, 6")
    A(f"s_bfe_u32 s{sH}, s2, 0x50001")
    A(f"s_and_b32 s{sS}, s2, 1")
    A(f"s_mov_b32 s{sC}, {hex(f32bits(SCALE))}")
    if prof:
        A(f"s_mul_i32 s{sTI}, s2, 5"); A(f"s_add_u32 s{sTI}, s{sTI}, s3"); A(f"s_lshl_b32 s{sTI}, s{sTI}, 6")
        A(f"s_add_u32 s{sTI}, s{sTI}, {TS}"); A("v_mov_b32 v62, 0")
    vSEL, vMSK = 8, 16
    def build_sel():
        for rr in range(4): smask(sM + 2 * rr, 0x0303030303030303 << (2 * rr))
        smask(sE, 0xAAAAAAAAAAAAAAAA)
        A("v_mov_b32 v4, 0x0c0c0100"); A("v_mov_b32 v5, 0x01000c0c")
        A(f"v_cndmask_b32 v6, v4, v5, s[{sE}:{sE+1}]")
        A("v_mov_b32 v4, 0x0c0c0302"); A("v_mov_b32 v5, 0x03020c0c")
        A(f"v_cndmask_b32 v7, v4, v5, s[{sE}:{sE+1}]")
        A("v_mov_b32 v4, 0x0c0c0c0c")
        for rr in range(4):
            A(f"v_cndmask_b32 v{vSEL+2*rr}, v4, v6, s[{sM+2*rr}:{sM+2*rr+1}]")
            A(f"v_cndmask_b32 v{vSEL+2*rr+1}, v4, v7, s[{sM+2*rr}:{sM+2*rr+1}]")
        A("v_mov_b32 v4, 0x0000ffff"); A("v_mov_b32 v5, 0xffff0000")
        A(f"v_cndmask_b32 v6, v4, v5, s[{sE}:{sE+1}]")
        for rr in range(4):
            A(f"v_cndmask_b32 v{vMSK+rr}, 0, v6, s[{sM+2*rr}:{sM+2*rr+1}]")
    def rec_producer(dst, t1, t2):
        A(f"s_and_b32 s{sT1}, s{sH1}, 15")
        A(f"v_lshrrev_b32 v{t1}, 2, v{vJ}"); A(f"v_and_b32 v{t2}, 3, v{vJ}")
        A(f"s_cmp_ge_u32 s2, 128"); lb = A.newlabel("L_rpb"); le = A.newlabel("L_rpe")
        A(f"s_cbranch_scc1 {lb}")
        A(f"v_lshl_add_u32 v{dst}, v{t1}, 6, v{t2}"); A(f"s_lshl_b32 s{sT0}, s{sT1}, 2")
        A(f"s_branch {le}")
        A.label(lb)
        A(f"v_lshlrev_b32 v{dst}, 3, v{t2}"); A(f"v_and_b32 v{t2}, 1, v{t1}"); A(f"v_lshl_add_u32 v{dst}, v{t2}, 2, v{dst}")
        A(f"v_lshrrev_b32 v{t1}, 1, v{t1}"); A(f"v_lshl_add_u32 v{dst}, v{t1}, 7, v{dst}")
        A(f"s_and_b32 s{sT0}, s{sT1}, 3"); A(f"s_lshl_b32 s{sT0}, s{sT0}, 5"); A(f"s_lshr_b32 s{sT1}, s{sT1}, 2"); A(f"s_add_u32 s{sT0}, s{sT0}, s{sT1}")
        A.label(le)
        A(f"v_add_u32 v{dst}, s{sT0}, v{dst}")
    A("s_cmp_eq_u32 s3, 4")
    A("s_cbranch_scc1 L_helper")

    vOK, vOV, vAS, vAP, vMAX, vT = 20, 21, 22, 23, 24, 25
    vX = 26
    vBB = 34
    vD = 42
    QB = [8, 12, 26, 30]
    vPP = 58
    vACC = 50
    vSL = 89
    vW0, vW1 = 98, 99
    sWB, sWL = 6, 7
    vDM = 64
    vXB = 90
    A("s_setprio 1")
    if prof2:
        A("s_mov_b32 s31, 0"); A("v_mov_b32 v63, 0"); lstamp()
    if diag: A("s_memrealtime s[88:89]")
    A(f"v_lshrrev_b32 v4, 3, v{vJ}")
    A(f"v_lshlrev_b32 v5, 11, v4")
    A(f"v_lshl_add_u32 v5, v{vG}, 4, v5")
    A(f"v_lshlrev_b32 v{vDM+3}, 16, v{vG}")
    A(f"v_lshl_add_u32 v{vDM+3}, v{vJ}, 4, v{vDM+3}")
    A(f"s_lshl_b32 s{sT0}, s{sKS}, 8"); A(f"s_lshl_b32 s{sT1}, s3, 6"); A(f"s_add_u32 s{sT0}, s{sT0}, s{sT1}")
    A(f"s_add_u32 s{sT1}, s{sT0}, 4096")
    A(f"s_lshl_b32 s{sT2}, s{sT0}, 12")
    A(f"s_lshl_b32 s{sT3}, s{sH1}, 8"); A(f"s_add_u32 s{sT2}, s{sT2}, s{sT3}")
    A("s_waitcnt lgkmcnt(0)")
    srd(S_X, 4, 8192); srd(S_W, 10, 1 << 23); srd(S_K, 14, 8192)
    A(f"buffer_load_dwordx4 {vr(vX)}, v5, {sr(S_X)}, s{sT0} offen")
    A(f"buffer_load_dwordx4 {vr(vX+4)}, v5, {sr(S_X)}, s{sT1} offen")
    A(f"buffer_load_dwordx4 {vr(vXB)}, v5, {sr(S_K)}, s{sT0} offen")
    A(f"buffer_load_dwordx4 {vr(vXB+4)}, v5, {sr(S_K)}, s{sT1} offen")
    for t in range(8):
        A(f"buffer_load_dwordx4 {ar(4*t)}, v{vDM+3}, {sr(S_W)}, s{sT2} offen nt")
        A(f"s_add_u32 s{sT2}, s{sT2}, {8192 if t < 7 else -7 * 8192}")
    srd(S_K, 6, 1 << 28); srd(S_V, 8, 1 << 28); srd(S_WS, 28, WS_BYTES)
    srd(S_W, 20, 1 << 23)
    srd(S_X, 16, 1 << 25)
    srd(S_O, 18, 1 << 25)
    A(f"s_cmp_ge_u32 s2, 128")
    A(f"s_cselect_b32 s{S_WO}, s22, s12"); A(f"s_cselect_b32 s{S_WO+1}, s23, s13")
    A(f"s_mov_b32 s{S_WO+2}, {hex(1 << 23)}"); A(f"s_mov_b32 s{S_WO+3}, 0x00020000")
    stamp(0)
    A(f"v_lshrrev_b32 v7, 2, v{vJ}")
    A(f"v_lshlrev_b32 v{vOK}, 8, v7")
    A(f"v_lshl_add_u32 v{vOK}, v{vG}, 6, v{vOK}")
    A(f"v_and_b32 v5, 3, v{vJ}")
    A(f"v_lshl_add_u32 v{vOK}, v5, 4, v{vOK}")
    A(f"v_lshl_add_u32 v6, v{vG}, 1, v4")
    A(f"v_lshlrev_b32 v{vOV}, 8, v6")
    A(f"v_and_b32 v5, 7, v{vJ}")
    A(f"v_lshl_add_u32 v{vOV}, v5, 4, v{vOV}")
    A(f"s_lshl_b32 s{sT0}, s3, 1"); A(f"v_lshrrev_b32 v{vW0}, 1, v{vG}"); A(f"v_add_u32 v{vW0}, s{sT0}, v{vW0}")
    A(f"v_xor_b32 v{vW0}, v{vW0}, v{vJ}"); A(f"v_lshlrev_b32 v{vW0}, 4, v{vW0}"); A(f"v_lshl_add_u32 v{vW0}, v{vG}, 11, v{vW0}")
    A(f"s_lshl_b32 s{sOFFK}, s2, 20"); A(f"s_lshl_b32 s{sT0}, s3, 12"); A(f"s_add_u32 s{sOFFK}, s{sOFFK}, s{sT0}")
    A(f"s_mov_b32 s{sOFFV}, s{sOFFK}")
    A(f"s_add_u32 s{sT0}, s{sT0}, {L_SC}")
    A(f"v_lshl_add_u32 v{vAS}, v7, 2, v{vG}")
    A(f"v_lshl_add_u32 v{vAS}, v{vAS}, 2, s{sT0}")
    A(f"v_lshl_add_u32 v{vAP}, v6, 2, s{sT0}")
    A(f"v_lshl_add_u32 v{vSL}, v{vL}, 4, s{sT0}")
    A(f"v_mov_b32 v{vMAX}, 0xff800000")
    A(f"v_lshrrev_b32 v4, 1, v{vJ}"); A(f"v_lshlrev_b32 v{vDM+2}, 8, v4")
    A(f"v_lshl_add_u32 v{vDM+2}, v{vG}, 5, v{vDM+2}")
    A(f"v_and_b32 v4, 1, v{vJ}"); A(f"v_lshl_add_u32 v{vDM+2}, v4, 4, v{vDM+2}")
    A(f"v_lshlrev_b32 v{vDM}, 9, v{vG}"); A(f"v_lshl_add_u32 v{vDM}, v{vJ}, 4, v{vDM}")
    A(f"s_lshr_b32 s{sKB}, s2, 7"); A(f"s_lshl_b32 s{sKB}, s{sKB}, 3"); A(f"s_add_u32 s{sKB}, s{sKB}, s{sKS}"); A(f"s_lshl_b32 s{sKB}, s{sKB}, 21")
    A(f"s_and_b32 s{sT0}, s{sH1}, 15"); A(f"s_lshl_b32 s{sT0}, s{sT0}, 15"); A(f"s_add_u32 s{sKB}, s{sKB}, s{sT0}")
    A(f"s_lshl_b32 s{sLD}, s3, 13"); A(f"s_add_u32 s{sKB}, s{sKB}, s{sLD}"); A(f"s_add_u32 s{sKB}, s{sKB}, {6144 * 256}")
    A(f"s_and_b32 s{sT3}, s{sH1}, 15"); A(f"s_lshl_b32 s{sT3}, s{sT3}, 19"); A(f"s_lshl_b32 s{sT0}, s{sKS}, 8")
    A(f"s_add_u32 s{sT3}, s{sT3}, s{sT0}"); A(f"s_add_u32 s{sWB}, s{sT3}, s{sLD}")
    A(f"s_lshl_b32 s{sWL}, s3, 10")
    if BROT: A(f"s_and_b32 s{sT1}, s{sH1}, 3"); A(f"s_lshl_b32 s{sT1}, s{sT1}, 11")
    else: A(f"s_mov_b32 s{sT1}, 0")
    build_sel()

    def ring_reg(n): return ar(4 * (n % 16))
    kcnt = [0]; vcnt = [0]
    def loadK(reg):
        m = kcnt[0] % 4; kcnt[0] += 1
        A(f"buffer_load_dwordx4 {reg}, v{vOK}, {sr(S_K)}, s{sOFFK} offen offset:{m*1024} nt")
        if m == 3: A(f"s_add_u32 s{sOFFK}, s{sOFFK}, 16384")
    def loadV(reg):
        m = vcnt[0] % 4; vcnt[0] += 1
        A(f"buffer_load_dwordx4 {reg}, v{vOV}, {sr(S_V)}, s{sOFFV} offen offset:{(m>>1)*2048+(m&1)*128} nt")
        if m == 3: A(f"s_add_u32 s{sOFFV}, s{sOFFV}, 16384")
    def qk(reg, m, d):
        A(f"v_mfma_f32_16x16x32_bf16 {vr(d)}, {reg}, {vr(QB[m])}, {'0' if m == 0 else vr(d)}")
    def post(d, off):
        A(f"v_mov_b32_dpp v{vT}, v{d} quad_perm:[0,0,0,0] {FULL}")
        for r in range(1, 4):
            A(f"v_add_f32_dpp v{vT}, v{d+r}, v{vT} quad_perm:[{r},{r},{r},{r}] {FULL}")
        A(f"v_max_f32 v{vMAX}, v{vMAX}, v{vT}")
        A(f"ds_write_b32 v{vAS}, v{vT} offset:{off}")
    def qpart(t):
        x0, d0, tt = (vX, vD, t) if t < 8 else (vXB, vACC, t - 8)
        for q in range(2):
            b = vBB + 4 * q
            for rr in range(4):
                A(f"v_perm_b32 v{b+rr}, v{x0+4*q+(tt>>1)}, v{x0+4*q+(tt>>1)}, v{vSEL+2*rr+(tt&1)}")
            A(f"v_mfma_f32_16x16x32_bf16 {vr(d0+4*q)}, {ar(4*t)}, {vr(b)}, {'0' if tt == 0 else vr(d0+4*q)}")
    def dma(voff, srdb, soff, m0base, m0imm, step, tag):
        if m0base is None:
            def issue():
                A(f"buffer_load_dwordx4 {ar(m0imm)}, v{voff}, {sr(srdb)}, s{soff} offen nt")
                A(f"s_add_u32 s{soff}, s{soff}, {step}")
            return issue
        A(f"s_add_u32 m0, s{m0base}, {m0imm}")
        def issue():
            A(f"buffer_load_dwordx4 v{voff}, {sr(srdb)}, s{soff} offen nt lds")
            A(f"s_add_u32 s{soff}, s{soff}, {step}")
        return issue
    p1 = [(vDM + 3, S_W, sT2, None, 32 + 4 * t, 8192, "q") for t in range(8)]
    def b_dma(voff, srdb, lds, second, k):
        if k % 2 == 0:
            A(f"s_add_u32 s{sT3}, s{sKB}, s{sT1}"); A(f"s_add_u32 s{sCNT}, s{sLD}, s{sT1}")
            A(f"s_add_u32 m0, s{sCNT}, {lds}")
        else:
            A(f"s_add_u32 s{sT3}, s{sT3}, {second}"); A(f"s_add_u32 m0, s{sCNT}, {lds + 1024}")
            A(f"s_add_u32 s{sT1}, s{sT1}, 2048"); A(f"s_and_b32 s{sT1}, s{sT1}, 8191")
        return lambda: A(f"buffer_load_dwordx4 v{voff}, {sr(srdb)}, s{sT3} offen nt lds")
    p1 += [("b", vDM + 2, S_X, L_R3, 128, k) for k in range(8)]
    p1 += [("b", vDM, S_O, L_R2, 256, k) for k in range(8)]
    def wo_dma(ip):
        A(f"s_add_u32 m0, s{sWL}, {L_WO + ip * 4096}")
        A(f"s_add_u32 s{sT3}, s{sWB}, {ip * 32768}")
        x = (128 if ip & 1 else 0) ^ (32 if ip >= 8 else 0)
        if x: A(f"v_xor_b32 v{vW1}, {x}, v{vW0}")
        return lambda: A(f"buffer_load_dwordx4 v{vW1 if x else vW0}, {sr(S_WO)}, s{sT3} offen nt lds")
    tdef = list(range(4 - NDEF // 4, 4)); tearly = list(range(4 - NDEF // 4))
    wo_early = sorted(i for t in tearly for i in (2*t, 2*t+1, 8+2*t, 9+2*t))
    wo_late = sorted(i for t in tdef for i in (2*t, 2*t+1, 8+2*t, 9+2*t))
    p1 += [("wo", i) for i in wo_early]
    NPOOL = 16
    tdone = 0
    LAG = max(max(DK), DS, DT) + 1
    if LV and KC: LAG = max(LV) + 1
    n = 0
    def q_progress(landed):
        nonlocal tdone
        while tdone < 16 and 4 + tdone <= landed:
            qpart(tdone); tdone += 1
            if tdone == 16:
                for i, r in enumerate((vD, vD + 4, vACC, vACC + 4)): A(f"ds_write_b128 v{vSL}, {vr(r)} offset:{i*1024}")
                A("s_waitcnt lgkmcnt(0)")
                A("s_barrier")
                stamp(1)
    for p, d in enumerate(p1):
        go = wo_dma(d[1]) if d[0] == "wo" else b_dma(*d[1:]) if d[0] == "b" else dma(*d)
        dd = DP0 if p < 8 else DP[p % len(DP)]
        A(f"s_waitcnt vmcnt({dd})"); go()
        if prof3 and p % 4 == 3: lstamp()
        q_progress(12 + p - 1 - dd)
    assert tdone == 16
    def tickK():
        nonlocal n
        A(f"s_waitcnt vmcnt({DS})"); loadK(ring_reg(n)); n += 1
        if prof3 and n % 4 == 0: lstamp()
    srd(S_O, 24, 16384)
    assert X >= LAG
    for p in range(NPOOL):
        A(f"s_waitcnt vmcnt({DS})"); loadK(ar(64 + 4 * p))
        if prof3 and p % 4 == 3: lstamp()
    for _ in range(X): tickK()
    stamp(2)
    lstamp()
    A("s_barrier")
    lstamp()
    stamp(3)
    A(f"v_and_b32 v4, 3, v{vJ}")
    A(f"v_lshl_add_u32 v4, v{vG}, 2, v4")
    A(f"v_lshlrev_b32 v4, 4, v4")
    A(f"v_add_u32 v4, {L_QL}, v4")
    A(f"ds_read_b128 {vr(vBB)}, v4")
    tickK()
    for m in range(4): smask(sM + 2 * m, 0x000F000F000F000F << (4 * m))
    A("s_waitcnt lgkmcnt(0)")
    for m in range(4):
        for rr in range(4):
            A(f"v_cndmask_b32 v{QB[m]+rr}, 0, v{vBB+rr}, s[{sM+2*m}:{sM+2*m+1}]")
    side = []
    GP = NPOOL // 4
    def mk_pool(pg):
        def f():
            if pg < GP:
                for m in range(4): qk(ar(64 + 16 * pg + 4 * m), m, vACC + 4 * (pg & 1))
            if pg > 0: post(vACC + 4 * ((pg - 1) & 1), (pg - 1) * 64)
        return f
    for pg in range(GP + 1): side.append(mk_pool(pg))
    vTR = 82
    def side_tr_addr():
        A(f"v_bfe_u32 v6, v{vJ}, 1, 1"); A("v_lshlrev_b32 v4, 7, v6")
        A(f"v_lshrrev_b32 v5, 2, v{vJ}"); A("v_lshl_add_u32 v4, v5, 3, v4")
        A(f"v_lshl_add_u32 v4, v{vG}, 1, v4"); A("v_lshlrev_b32 v4, 8, v4")
        A(f"v_lshl_add_u32 v5, v5, 2, v{vG}"); A("v_lshlrev_b32 v6, 1, v6"); A("v_xor_b32 v5, v5, v6")
        A(f"s_lshl_b32 s{sT0}, s3, 2"); A(f"v_xor_b32 v5, s{sT0}, v5"); A("v_lshl_add_u32 v4, v5, 4, v4")
        A(f"v_and_b32 v5, 1, v{vJ}"); A(f"v_lshl_add_u32 v{vTR}, v5, 3, v4")
        for ch in range(1, 4): A(f"v_xor_b32 v{vTR2+ch-1}, {ch*16}, v{vTR}")
    vTR2 = 26
    def traddr(ch): return vTR if ch == 0 else vTR2 + ch - 1
    def wofrag(t, ch): return 64 + 4 * (t * 4 + ch)
    def mk_tr(lst):
        def f():
            for t, ch, a in lst:
                A(f"ds_read_b64_tr_b16 {ar(wofrag(t,ch)+2*a,2)}, v{traddr(ch)} offset:{L_WO + (32*t+a)*256}")
        return f
    rc = 0
    pend = []
    while n < 32 or n % 16 or side:
        assert rc >= n - 15, (rc, n)
        tickK()
        old = list(pend); pend.clear()
        budget = 4
        while budget > 0 and rc <= n - 1 - LAG:
            g = rc // 4
            if rc % 4 == 0 and any(d == vD + 4 * (g & 1) for d, _ in old + pend):
                for po in old + pend: post(*po)
                old = []; pend.clear()
            qk(ring_reg(rc), rc % 4, vD + 4 * (g & 1))
            if rc % 4 == 3: pend.append((vD + 4 * (g & 1), (GP + g) * 64))
            rc += 1; budget -= 1
        for po in old: post(*po)
        if budget >= 3 and side: side.pop(0)()
    assert rc == n - LAG and not side, (rc, n, len(side))
    assert len(pend) == (1 if (n - 1 - LAG) % 4 == 3 else 0)
    def lring(k): return ring_reg(k) if U == 16 else ar(32 + 4 * (k % 8))
    vPG, vDEC = 90, 91
    def ctl_loop(name, levels, upto, tick, step):
        A(f"ds_read_b32 v{vDEC}, v92 offset:16")
        A.label(f"{name}top")
        if U == 16: lstamp()
        elif prof2:
            A(f"s_and_b32 s{sT0}, s{sCNT}, 1"); A(f"s_cbranch_scc1 {name}ns"); lstamp(); A.label(f"{name}ns")
        A("s_waitcnt lgkmcnt(0)")
        A(f"v_readfirstlane_b32 s{sT0}, v{vDEC}")
        A(f"v_mov_b32 v93, s{sCNT}")
        A(f"ds_write_b32 v{vPG}, v93")
        A(f"s_add_u32 s{sCNT}, s{sCNT}, 1")
        for li in range(1, len(levels)):
            A(f"s_cmp_eq_u32 s{sT0}, {li}"); A(f"s_cbranch_scc1 {name}lv{li}")
        for li, dd in enumerate(levels):
            A.label(f"{name}lv{li}")
            for i in range(U):
                A(f"s_waitcnt vmcnt({dd})"); tick(i)
                if i == U - 2: A(f"ds_read_b32 v{vDEC}, v92 offset:16")
            step()
            A(f"s_cmp_lt_u32 s{sCNT}, {upto}"); A(f"s_cbranch_scc1 {name}top")
            if li < len(levels) - 1: A(f"s_branch {name}done")
        A.label(f"{name}done")
    A(f"v_add_u32 v{vAS}, {(GP + n // 4 - 3) * 64}, v{vAS}")
    A(f"s_lshl_b32 s{sT0}, s3, 2"); A(f"s_add_u32 s{sT0}, s{sT0}, {L_PRG}"); A(f"v_mov_b32 v{vPG}, s{sT0}")
    A(f"v_mov_b32 v92, {L_PRG}")
    A(f"s_mov_b32 s{sCNT}, 0")
    KT = (256 - NPOOL - n) // U
    assert LAG <= U - 1 or U == 16
    def ktick(i):
        loadK(lring(i))
        c = i - LAG
        qk(lring(c), c % 4, vD + 4 * ((c // 4) & 1))
        if (c - 1) % 4 == 3: post(vD + 4 * (((c - 1) // 4) & 1), ((c - 1) // 4 + 3) * 64)
    ctl_loop("L_k", LV if KC else DK[:1], KT, ktick, lambda: A(f"v_add_u32 v{vAS}, {16 * U}, v{vAS}"))
    stamp(4)
    LAGV = max(DV) + 1
    if LV: LAGV = max(LV) + 1
    n = 0
    def tickT():
        nonlocal n
        dd = DT
        assert DT < LAG and DT < LAGV
        A(f"s_waitcnt vmcnt({dd})"); loadV(ring_reg(n)); n += 1
    for i in range(LAG + 1):
        tickT()
        c = i - LAG
        if c < 0: qk(ring_reg(c), c % 4, vD + 4 * ((c // 4) & 1))
        if (c - 1) % 4 == 3: post(vD + 4 * (((c - 1) // 4) & 1), ((c - 1) // 4 + 3) * 64)
    vS = 64
    vNM, vLS = 80, 81
    for i in range(4): A(f"ds_read_b128 {vr(vS+4*i)}, v{vSL} offset:{i*1024}")
    allreduce(vMAX, vT, "v_max_f32", [4, 8])
    A(f"v_mul_f32 v{vMAX}, s{sC}, v{vMAX}")
    A(f"v_sub_f32 v{vNM}, 0, v{vMAX}")
    for r in range(8): A(f"v_mov_b32 v{vACC+r}, 0")
    tickT()
    A("s_waitcnt lgkmcnt(0)")
    for i in range(4):
        for r in range(4): A(f"v_fma_f32 v{vS+4*i+r}, v{vS+4*i+r}, s{sC}, v{vNM}")
        for r in range(4): A(f"v_exp_f32 v{vS+4*i+r}, v{vS+4*i+r}")
        A(f"v_add_f32 v5, v{vS+4*i}, v{vS+4*i+1}"); A(f"v_add_f32 v6, v{vS+4*i+2}, v{vS+4*i+3}")
        A(f"v_add_f32 v5, v5, v6")
        A(f"v_mov_b32 v{vLS}, v5" if i == 0 else f"v_add_f32 v{vLS}, v{vLS}, v5")
        for r in range(4): A(f"v_cvt_pk_bf16_f32 v{vS+4*i+r}, v{vS+4*i+r}, v{vS+4*i+r}")
        A(f"ds_write_b128 v{vSL}, {vr(vS+4*i)} offset:{i*1024}")
        if i % 2 == 1: tickT()
    A(f"ds_read2_b32 {vr(vPP,2)}, v{vAP} offset0:0 offset1:8")
    def pv(reg, c, poff):
        beta, u = (c % 4) >> 1, c & 1
        pp = vPP + 2 * ((c // 4) & 1)
        if c % 4 == 0:
            A("s_waitcnt lgkmcnt(0)")
            A(f"ds_read2_b32 {vr(vPP + 2 * ((c // 4 + 1) & 1), 2)}, v{vAP} offset0:{poff//4} offset1:{poff//4+8}")
        if u == 0:
            for rr in range(4): A(f"v_and_b32 v{vBB+4*beta+rr}, v{pp+beta}, v{vMSK+rr}")
        A(f"v_mfma_f32_16x16x32_bf16 {vr(vACC+4*u)}, {reg}, {vr(vBB+4*beta)}, {vr(vACC+4*u)}")
    def side_stats():
        allreduce(vLS, vT, "v_add_f32", [1, 2, 4, 8])
        A(f"v_min_u32 v6, -2, v{vMAX}"); A(f"v_min_u32 v7, -2, v{vLS}")
        A(f"s_lshl_b32 s{sT0}, s3, 3"); A(f"s_add_u32 s{sT0}, s{sT0}, {L_ST}")
        A(f"v_mov_b32 v4, s{sT0}")
        A("ds_write_b64 v4, v[6:7]")
    vFW, vFR, vWA, vRO, vGO, vPO = 83, 84, 85, 86, 87, 88
    sREC, sGA, sGB, sP2, sP3, sOUT = 96, 97, 98, 99, 100, 101
    def side_tail1():
        A(f"s_lshl_b32 s{sT0}, s3, 11"); A(f"s_add_u32 s{sT0}, s{sT0}, {L_EX}")
        A(f"v_lshl_add_u32 v{vFW}, v{vL}, 4, s{sT0}")
        A(f"v_and_b32 v4, 1, v{vL}"); A("v_mul_u32_u24 v4, 40, v4")
        A(f"v_lshrrev_b32 v5, 3, v{vL}"); A("v_add_u32 v4, v4, v5"); A("v_lshlrev_b32 v4, 4, v4")
        A(f"v_bfe_u32 v6, v{vL}, 1, 2"); A("v_lshl_add_u32 v4, v6, 11, v4")
        A(f"s_lshr_b32 s{sT0}, s3, 1"); A(f"s_lshl_b32 s{sT0}, s{sT0}, 10")
        A(f"s_and_b32 s{sT1}, s3, 1"); A(f"s_lshl_b32 s{sT1}, s{sT1}, 8")
        A(f"s_add_u32 s{sT0}, s{sT0}, s{sT1}"); A(f"s_add_u32 s{sT0}, s{sT0}, {L_EX}")
        A(f"v_add_u32 v{vFR}, s{sT0}, v4")
        A(f"v_lshlrev_b32 v{vWA}, 2, v6"); A(f"v_add_u32 v{vWA}, {L_WGT}, v{vWA}")
        A(f"v_lshlrev_b32 v{vRO}, 3, v5")
    def side_tail2():
        A(f"s_mul_i32 s{sP2}, s2, {BS}"); A(f"s_add_u32 s{sP2}, s{sP2}, {BLK}")
        A(f"s_lshl_b32 s{sT0}, s3, 6"); A(f"s_add_u32 s{sREC}, s{sP2}, s{sT0}")
        A(f"s_lshl_b32 s{sT0}, s3, 9"); A(f"s_add_u32 s{sP2}, s{sP2}, s{sT0}")
        rec_producer(4, 5, 6)
        A(f"v_mul_u32_u24 v{vGO}, {BS}, v4"); A(f"v_lshl_add_u32 v{vGO}, v{vG}, 4, v{vGO}")
        A(f"s_lshr_b32 s{sGA}, s2, 7"); A(f"s_lshl_b32 s{sGA}, s{sGA}, 8"); A(f"s_add_u32 s{sGA}, s{sGA}, {BLK + O_REC}")
    def side_tail3():
        A(f"v_lshrrev_b32 v4, 2, v{vJ}"); A(f"v_lshlrev_b32 v{vPO}, 7, v4"); A(f"v_lshl_add_u32 v{vPO}, v{vG}, 5, v{vPO}")
        A(f"v_and_b32 v4, 3, v{vJ}"); A(f"v_lshl_add_u32 v{vPO}, v4, 3, v{vPO}")
        A(f"s_and_b32 s{sT1}, s2, 0x87"); A(f"s_mul_i32 s{sP3}, s{sT1}, {BS}"); A(f"s_add_u32 s{sP3}, s{sP3}, {BLK + O_P2}")
        A(f"s_and_b32 s{sT1}, s{sH1}, 15"); A(f"s_lshl_b32 s{sT0}, s{sT1}, 7"); A(f"s_add_u32 s{sP3}, s{sP3}, s{sT0}")
        A(f"s_lshl_b32 s{sT0}, s3, 4"); A(f"s_add_u32 s{sP3}, s{sP3}, s{sT0}")
        A(f"v_mul_u32_u24 v8, {8 * BS}, v{vJ}"); A(f"v_lshl_add_u32 v8, v{vG}, 5, v8")
        A(f"s_lshr_b32 s{sOUT}, s2, 7"); A(f"s_lshl_b32 s{sOUT}, s{sOUT}, 3"); A(f"s_add_u32 s{sOUT}, s{sOUT}, s{sKS}"); A(f"s_lshl_b32 s{sOUT}, s{sOUT}, 8")
        A(f"s_lshr_b32 s{sT0}, s{sT1}, 2"); A(f"s_lshl_b32 s{sT0}, s{sT0}, 6"); A(f"s_add_u32 s{sOUT}, s{sOUT}, s{sT0}")
        A(f"s_and_b32 s{sT0}, s{sT1}, 3"); A(f"s_lshl_b32 s{sT0}, s{sT0}, 3"); A(f"s_add_u32 s{sOUT}, s{sOUT}, s{sT0}")
        A(f"s_lshl_b32 s{sT0}, s3, 2"); A(f"s_add_u32 s{sOUT}, s{sOUT}, s{sT0}")
        A(f"v_lshlrev_b32 v9, 12, v{vG}"); A(f"v_lshl_add_u32 v9, v{vJ}, 5, v9")
        smask(sM, 0x0101010101010101); smask(sM + 2, 0x0002000200020002); smask(sM + 4, 0x0003000300030003)
    side = [side_stats, side_tail1, side_tail2, side_tail3, side_tr_addr]
    trs = [(t, ch, a) for t in tearly for ch in range(4) for a in range(2)]
    for i in range(0, len(trs), TRN): side.append(mk_tr(trs[i:i + TRN]))
    rc = 0
    while n < 16 or (n % 16) or side or rc != n - LAGV:
        assert rc >= n - 15, (rc, n)
        tickT()
        budget = 4
        while budget > 0 and rc <= n - 1 - LAGV:
            pv(ring_reg(rc), rc, (rc // 4 + 1) * 64); rc += 1; budget -= 1
        if budget >= 3 and side: side.pop(0)()
    stamp(5)
    A(f"v_add_u32 v{vAP}, {(n // 4 - 4) * 64}, v{vAP}")
    VT = (256 - n) // U
    lag = LAGV
    assert LAGV <= U - 1 or U == 16
    def vtick(i):
        loadV(lring(i))
        c = i - LAGV
        pv(lring(c), c, (c // 4 + 1 + 4) * 64)
    ctl_loop("L_v", LV, KT + VT, vtick, lambda: A(f"v_add_u32 v{vAP}, {16 * U}, v{vAP}"))
    rem = list(range(-lag, 0)); late = list(wo_late); k = 0
    while rem:
        if late:
            go = wo_dma(late.pop(0))
            A(f"s_waitcnt vmcnt({DW})"); go()
            while rem and rem[0] <= k - DW - 1:
                c = rem.pop(0); pv(ring_reg(c), c, (c // 4 + 1 + 4) * 64)
            k += 1
        else:
            c = rem.pop(0)
            A(f"s_waitcnt vmcnt({k - 1 - c})")
            pv(ring_reg(c), c, (c // 4 + 1 + 4) * 64)
    for _ in range(min(BURST, len(late))): wo_dma(late.pop(0))()
    stamp(6)
    lstamp()
    A(f"ds_write_b128 v{vFW}, {vr(vACC)}")
    A(f"ds_write_b128 v{vFW}, {vr(vACC+4)} offset:1024")
    A(f"s_mov_b32 s{sSPIN}, {spin}")
    A("s_waitcnt lgkmcnt(0)")
    A("s_barrier")
    A(f"ds_read_b128 v[4:7], v{vFR}")
    A(f"ds_read_b32 v{vT}, v{vWA}")
    A(f"ds_read_b32 v{vDEC}, v92 offset:20")
    vGA = 64
    def gpoll():
        for t in range(4):
            A(f"buffer_load_dwordx4 {vr(vGA+4*t)}, v{vGO}, {sr(S_WS)}, s{sGA} offen offset:{t*64} {pfl}")
    A("s_waitcnt lgkmcnt(0)")
    for r in range(4): A(f"v_mul_f32 v{4+r}, v{4+r}, v{vT}")
    for mode in ("quad_perm:[1,0,3,2]", "quad_perm:[2,3,0,1]", "row_half_mirror"):
        for r in range(4): A(f"v_add_f32_dpp v{4+r}, v{4+r}, v{4+r} {mode} {FULL}")
    A("v_cvt_pk_bf16_f32 v4, v4, v5"); A("v_cvt_pk_bf16_f32 v5, v6, v7")
    A("v_min_u32 v4, -2, v4"); A("v_min_u32 v5, -2, v5")
    A(f"s_mov_b64 exec, s[{sM}:{sM+1}]")
    A(f"buffer_store_dwordx2 v[4:5], v{vRO}, {sr(S_WS)}, s{sREC} offen offset:{O_REC} {sfl}")
    A("s_mov_b64 exec, -1")
    stamp(7)
    while late:
        go = wo_dma(late.pop(0))
        A(f"s_waitcnt vmcnt({DW})"); go()
    gpoll()
    if NDEF:
        A("s_waitcnt vmcnt(4)")
        A("s_barrier")
        for ti, t in enumerate(tdef):
            if ti: A("s_waitcnt lgkmcnt(7)")
            mk_tr([(t, ch, a) for ch in range(4) for a in range(2)])()
        lstamp()
    A("s_branch L_gchk")
    A.label("L_gather")
    if gsleep: A(f"s_sleep {gsleep}")
    gpoll()
    A.label("L_gchk")
    A(f"s_waitcnt vmcnt(0)")
    A(f"v_max3_u32 v4, v{vGA}, v{vGA+1}, v{vGA+2}"); A(f"v_max3_u32 v5, v{vGA+3}, v{vGA+4}, v{vGA+5}")
    for k in range(6, 14, 4):
        A(f"v_max3_u32 v4, v4, v{vGA+k}, v{vGA+k+1}"); A(f"v_max3_u32 v5, v5, v{vGA+k+2}, v{vGA+k+3}")
    A(f"v_max3_u32 v4, v4, v{vGA+14}, v{vGA+15}"); A("v_max_u32 v4, v4, v5")
    A(f"v_cmp_eq_u32 s[{sE}:{sE+1}], -1, v4")
    A(f"s_sub_u32 s{sSPIN}, s{sSPIN}, 1"); A("s_cbranch_scc1 L_gdone")
    A(f"s_and_b64 exec, exec, s[{sE}:{sE+1}]")
    A("s_cbranch_scc1 L_gather")
    A.label("L_gdone")
    A("s_mov_b64 exec, -1")
    stamp(8)
    lstamp()
    vO = 112
    for t in range(4):
        if tdef and t == tdef[0]: A("s_waitcnt lgkmcnt(0)")
        for ch in range(4):
            A(f"v_mfma_f32_16x16x32_bf16 {vr(vO+4*ch)}, {vr(vGA+4*t)}, {ar(wofrag(t,ch))}, {'0' if t == 0 else vr(vO+4*ch)}")
    A(f"s_mov_b32 s{sSPIN}, {spin}")
    A(f"v_readfirstlane_b32 s{sT0}, v{vDEC}")
    A(f"s_cmp_eq_u32 s{sT0}, 1")
    for c2 in range(2):
        o = vO + 8 * c2
        A(f"v_add_f32 v{4+c2}, v{o}, v{o+1}"); A(f"v_add_f32 v{o+2}, v{o+2}, v{o+3}")
        A(f"v_add_f32 v{o+4}, v{o+4}, v{o+5}"); A(f"v_add_f32 v{o+6}, v{o+6}, v{o+7}")
    for c2 in range(2):
        o = vO + 8 * c2
        A(f"v_add_f32_dpp v{4+c2}, v{o+2}, v{4+c2} row_ror:8 row_mask:0xf bank_mask:0x3")
        A(f"v_add_f32_dpp v{4+c2}, v{o+4}, v{o+6} row_ror:8 row_mask:0xf bank_mask:0xc")
    A("v_min_u32 v4, -2, v4"); A("v_min_u32 v5, -2, v5")
    A(f"s_cbranch_scc1 L_p2loc")
    A(f"buffer_store_dwordx2 v[4:5], v{vPO}, {sr(S_WS)}, s{sP2} offen offset:{O_P2} {sfl}")
    A("s_branch L_p2done")
    A.label("L_p2loc")
    A(f"buffer_store_dwordx2 v[4:5], v{vPO}, {sr(S_WS)}, s{sP2} offen offset:{O_P2}")
    A.label("L_p2done")
    stamp(9)
    def dump():
        A(f"s_lshl_b32 s{sT0}, s2, 2"); A(f"s_add_u32 s{sT0}, s{sT0}, s3"); A(f"s_lshl_b32 s{sT0}, s{sT0}, 8"); A(f"s_add_u32 s{sT0}, s{sT0}, {TS}")
        A(f"v_lshlrev_b32 v62, 2, v{vL}")
        A(f"buffer_store_dword v63, v62, {sr(S_WS)}, s{sT0} offen")
    A("s_cmp_ge_u32 s3, 2")
    A("s_cbranch_scc1 L_dump" if prof2 else "s_cbranch_scc1 L_end")
    for _ in range(PIPE - 1):
        A(f"buffer_load_dwordx4 v[12:15], v8, {sr(S_WS)}, s{sP3} offen {pfl}")
        A(f"s_sleep {tsleep}")
    A.label("L_s3")
    if s3sleep: A(f"s_sleep {s3sleep}")
    A(f"buffer_load_dwordx4 v[12:15], v8, {sr(S_WS)}, s{sP3} offen {pfl}")
    A(f"s_waitcnt vmcnt({PIPE - 1})")
    A("v_max3_u32 v10, v12, v13, v14"); A("v_max_u32 v10, v10, v15")
    A(f"v_cmp_eq_u32 s[{sE}:{sE+1}], -1, v10")
    A(f"s_sub_u32 s{sSPIN}, s{sSPIN}, 1"); A("s_cbranch_scc1 L_s3done")
    A(f"s_and_b64 exec, exec, s[{sE}:{sE+1}]")
    A("s_cbranch_scc1 L_s3")
    A.label("L_s3done")
    A("s_mov_b64 exec, -1")
    for r in range(4): A(f"v_add_f32_dpp v{16+r}, v{12+r}, v{12+r} row_ror:8 {FULL}")
    for rot in (4, 2, 1):
        for r in range(4): A(f"v_add_f32_dpp v{16+r}, v{16+r}, v{16+r} row_ror:{rot} {FULL}")
    A("v_cvt_pk_bf16_f32 v4, v16, v18"); A("v_cvt_pk_bf16_f32 v5, v17, v19")
    A(f"v_cndmask_b32 v4, v4, v5, s[{sM+2}:{sM+3}]")
    A(f"s_mov_b64 exec, s[{sM+4}:{sM+5}]")
    A(f"buffer_store_dword v4, v9, {sr(S_O)}, s{sOUT} offen {osc1}")
    A("s_mov_b64 exec, -1")
    stamp(10)
    if prof2:
        A.label("L_dump"); lstamp(); dump()
    A("s_endpgm")

    A.label("L_helper")
    in_helper[0] = True
    S_DBG = S_O
    hO1, hO2, hO3 = 21, 22, 23
    sBLK, sGRP, sFL = 96, 97, 66
    def poll(name, load, reduce_to_v6, cmpop, cmpval, sl, pre_sleep=False):
        A(f"s_mov_b32 s{sSPIN}, {spin}")
        A.label(name)
        if pre_sleep: A(f"s_sleep {sl}")
        load()
        reduce_to_v6()
        A(f"{cmpop} s[{sE}:{sE+1}], {cmpval}, v6")
        A(f"s_cmp_eq_u64 s[{sE}:{sE+1}], 0"); A(f"s_cbranch_scc1 {name}_ok")
        spin_tail(name, sl)
        A.label(name + "_ok")
    A(f"v_lshlrev_b32 v{hO1}, 4, v{vL}")
    A(f"s_mul_i32 s{sBLK}, s2, {BS}"); A(f"s_add_u32 s{sBLK}, s{sBLK}, {BLK}")
    A(f"s_lshr_b32 s{sGRP}, s2, 7"); A(f"s_lshl_b32 s{sGRP}, s{sGRP}, 3"); A(f"s_add_u32 s{sGRP}, s{sGRP}, s{sKS}"); A(f"s_lshl_b32 s{sGRP}, s{sGRP}, 4")
    A("s_waitcnt lgkmcnt(0)")
    srd(S_WS, 28, WS_BYTES); srd(S_DBG, 26, 256)
    stamp(0)
    A("s_cmp_ge_u32 s2, 8"); A("s_cbranch_scc1 L_noinit")
    for r in range(4): A(f"v_mov_b32 v{4+r}, 0")
    A(f"s_lshl_b32 s{sT0}, s2, 12"); A(f"s_add_u32 s{sT0}, s{sT0}, {FLG}"); A(f"s_lshl_b32 s{sT1}, s2, 2")
    for i in range(4):
        A(f"buffer_store_dwordx4 v[4:7], v{hO1}, {sr(S_WS)}, s{sT0} offen offset:{i*1024} sc1")
    if LV:
        A(f"s_add_u32 s{sT0}, s{sT0}, {CNT - FLG}")
        for i in range(4):
            A(f"buffer_store_dwordx4 v[4:7], v{hO1}, {sr(S_WS)}, s{sT0} offen offset:{i*1024} sc1")
    A("v_mov_b32 v5, 1")
    A("s_waitcnt vmcnt(0)")
    A("s_mov_b64 exec, 1")
    A(f"buffer_store_dword v5, v4, {sr(S_DBG)}, s{sT1} offen sc1")
    A("s_mov_b64 exec, -1")
    A.label("L_noinit")
    for r in range(4): A(f"v_mov_b32 v{4+r}, -1")
    if "i" not in skip: A(f"buffer_store_dwordx4 v[4:7], v{hO1}, {sr(S_WS)}, s{sBLK} offen sc1")
    if "i" not in skip: A(f"buffer_store_dwordx4 v[4:7], v{hO1}, {sr(S_WS)}, s{sBLK} offen offset:1024 sc1")
    if preBP:
        A(f"s_lshl_b32 s{sT0}, s2, 11"); A(f"s_add_u32 s{sT0}, s{sT0}, {BP}")
        for i in range(2): A(f"buffer_store_dwordx4 v[4:7], v{hO1}, {sr(S_WS)}, s{sT0} offen offset:{i*1024} sc1")
    smask(sE, (1 << 56) - 1)
    A(f"s_mov_b64 exec, s[{sE}:{sE+1}]")
    if "i" not in skip: A(f"buffer_store_dwordx4 v[4:7], v{hO1}, {sr(S_WS)}, s{sBLK} offen offset:2048 sc1")
    A("s_mov_b64 exec, -1")
    A(f"v_mov_b32 v{hO2}, {L_ST}")
    A(f"ds_write_b128 v{hO2}, v[4:7]"); A(f"ds_write_b128 v{hO2}, v[4:7] offset:16")
    if LV:
        for r in range(4): A(f"v_mov_b32 v{30+r}, 0")
        A(f"ds_write_b128 v{hO2}, v[30:33] offset:{L_PRG - L_ST}"); A(f"ds_write_b32 v{hO2}, v30 offset:{L_PRG - L_ST + 16}")
    build_sel()
    A(f"v_lshrrev_b32 v4, 3, v{vJ}"); A(f"v_lshlrev_b32 v{hO2}, 9, v4")
    A(f"v_lshl_add_u32 v{hO2}, v{vG}, 7, v{hO2}")
    A(f"v_and_b32 v7, 7, v{vJ}"); A(f"v_lshl_add_u32 v{hO2}, v7, 4, v{hO2}")
    A(f"v_add_u32 v{hO3}, {L_SC}, v{hO1}")
    A(f"s_lshl_b32 s{sFL}, s2, 7"); A(f"s_add_u32 s{sFL}, s{sFL}, {FLG}")
    hQW, hQG, hFP, hD8, hQG2, hQW2 = 24, 25, 20, 26, 27, 28
    A(f"v_lshlrev_b32 v{hFP}, 7, v7")
    A(f"v_lshlrev_b32 v{hD8}, 2, v7")
    A(f"v_lshlrev_b32 v{hQW2}, 6, v4"); A(f"v_lshl_add_u32 v{hQW2}, v7, 1, v{hQW2}"); A(f"v_add_u32 v{hQW2}, {L_QBL}, v{hQW2}")
    A(f"v_lshlrev_b32 v{hQG2}, 11, v{vG}"); A(f"v_lshl_add_u32 v{hQG2}, v{vJ}, 4, v{hQG2}")
    A(f"v_lshrrev_b32 v4, 5, v{vL}"); A(f"v_and_b32 v5, 31, v{vL}")
    A(f"v_lshlrev_b32 v{hQG}, 11, v4"); A(f"v_lshl_add_u32 v{hQG}, v5, 4, v{hQG}")
    A("v_lshrrev_b32 v5, 3, v5"); A(f"v_lshlrev_b32 v{hQW}, 6, v5")
    A(f"v_lshl_add_u32 v{hQW}, v7, 1, v{hQW}"); A(f"v_add_u32 v{hQW}, {L_QL}, v{hQW}")
    sXC = 69
    A(f"s_getreg_b32 s{sXC}, hwreg(HW_REG_XCC_ID, 0, 4)"); A(f"s_add_u32 s{sXC}, s{sXC}, 16")
    A(f"v_mov_b32 v4, s{sXC}"); A("v_mov_b32 v5, 0")
    A(f"s_lshl_b32 s{sT0}, s2, 11"); A(f"s_add_u32 s{sT1}, s{sT0}, {QP_B}")
    A(f"s_lshl_b32 s{sT2}, s{sH}, 10"); A(f"s_add_u32 s{sT2}, s{sT2}, {FLG}")
    A(f"s_lshl_b32 s{sT3}, s{sH}, 14"); A(f"s_lshl_b32 s{sCNT}, s{sB}, 9"); A(f"s_add_u32 s{sT3}, s{sT3}, s{sCNT}")
    A(f"s_lshl_b32 s{sCNT}, s{sS}, 8"); A(f"s_add_u32 s{sCNT}, s{sCNT}, s{sT3}"); A(f"s_add_u32 s{sCNT}, s{sCNT}, {QP_B}")
    A("s_waitcnt lgkmcnt(0)")
    A("s_barrier")
    stamp(1)
    for i in range(4):
        for v in range(4): A(f"ds_read_b128 {vr(64+16*i+4*v)}, v{hO3} offset:{v*4096+i*1024}")
        if i == 1: A("s_waitcnt lgkmcnt(4)")
    for i in range(4):
        b = 64 + 16 * i
        A(f"s_waitcnt lgkmcnt({12 - 4 * i})")
        for r in range(4):
            A(f"v_add_f32 v{b+r}, v{b+r}, v{b+4+r}"); A(f"v_add_f32 v{b+8+r}, v{b+8+r}, v{b+12+r}")
        for r in range(4): A(f"v_add_f32 v{b+r}, v{b+r}, v{b+8+r}")
        if "q" not in skip: A(f"buffer_store_dwordx4 {vr(b)}, v{hO2}, {sr(S_WS)}, s{sT1 if i >= 2 else sT0} offen offset:{(i&1)*1024} {qfl}")
    poll("L_pi", lambda: (A(f"buffer_load_dword v6, v{hD8}, {sr(S_DBG)}, 0 offen sc1"), A("s_waitcnt vmcnt(0)")), lambda: None, "v_cmp_ne_u32", 1, qsleep)
    A("s_mov_b64 exec, 1")
    A(f"buffer_store_dword v4, v5, {sr(S_WS)}, s{sFL} offen sc1")
    A("s_mov_b64 exec, -1")
    stamp(2)
    for _ in range(qpre): A("s_sleep 32")
    poll("L_pq", lambda: (A(f"buffer_load_dword v6, v{hFP}, {sr(S_WS)}, s{sT2} offen sc1"), A("s_waitcnt vmcnt(0)")), lambda: None, "v_cmp_eq_u32", 0, qsleep)
    stamp(3)
    for i in range(4):
        if "g" not in skip: A(f"buffer_load_dwordx4 {vr(64+4*i)}, v{hQG}, {sr(S_WS)}, s{sT3} offen sc1")
        if i < 3: A(f"s_add_u32 s{sT3}, s{sT3}, 4096")
    if "g" not in skip: A(f"buffer_load_dwordx4 {vr(80)}, v{hQG2}, {sr(S_WS)}, s{sCNT} offen sc1")
    A(f"s_add_u32 s{sCNT}, s{sCNT}, 8192")
    if "g" not in skip: A(f"buffer_load_dwordx4 {vr(84)}, v{hQG2}, {sr(S_WS)}, s{sCNT} offen sc1")
    A("s_waitcnt vmcnt(2)")
    for r in range(4):
        A(f"v_add_f32 v{64+r}, v{64+r}, v{68+r}"); A(f"v_add_f32 v{72+r}, v{72+r}, v{76+r}")
    for r in range(4): A(f"v_add_f32 v{64+r}, v{64+r}, v{72+r}")
    for r in range(4): A(f"v_mov_b32 v{68+r}, v{64+r}")
    for r in range(4): A(f"v_permlane32_swap_b32 v{68+r}, v{64+r}")
    for r in range(4): A(f"v_add_f32 v{64+r}, v{64+r}, v{68+r}")
    def write_b16(addr, b, off):
        A(f"v_cvt_pk_bf16_f32 v{b}, v{b}, v{b+1}"); A(f"v_cvt_pk_bf16_f32 v{b+2}, v{b+2}, v{b+3}")
        A(f"ds_write_b16 v{addr}, v{b} offset:{off}"); A(f"ds_write_b16_d16_hi v{addr}, v{b} offset:{off+16}")
        A(f"ds_write_b16 v{addr}, v{b+2} offset:{off+32}"); A(f"ds_write_b16_d16_hi v{addr}, v{b+2} offset:{off+48}")
    write_b16(hQW, 64, 0)
    A("s_waitcnt vmcnt(0)")
    for r in range(4): A(f"v_add_f32 v{80+r}, v{80+r}, v{84+r}")
    for r in range(4): allreduce(80 + r, 84 + r, "v_add_f32", [])
    write_b16(hQW2, 80, 0)
    A(f"v_and_b32 v4, 0x70, v{hO1}"); A(f"v_add_u32 v5, {L_QBL}, v4")
    A("ds_read_b128 v[80:83], v5")
    A("s_waitcnt lgkmcnt(0)")
    for r in range(4): A(f"v_min_u32 v{80+r}, -2, v{80+r}")
    A("s_mov_b64 exec, 0xff")
    A(f"buffer_store_dwordx4 v[80:83], v4, {sr(S_WS)}, s{sBLK} offen offset:{O_QB2} sc1")
    A("s_mov_b64 exec, -1")
    hR = 23
    A(f"v_add_u32 v{hR}, {L_R2}, v{hO1}")
    stamp(4)
    A("s_barrier")
    def lds_frags(off):
        for k in range(32):
            A(f"ds_read_b128 {ar(4*k)}, v{hR} offset:{off + k*1024}")
            if k % 8 == 7: A("s_waitcnt lgkmcnt(0)")
    lds_frags(L_R3 - L_R2)
    rec_producer(5, 6, 7)
    A(f"v_add_u32 v4, s{sGRP}, v{vJ}")
    smask(sE, 0x00000000FFFF0000)
    A(f"v_cndmask_b32 v4, v4, v5, s[{sE}:{sE+1}]")
    sLG = 64
    A(f"s_and_b32 s{sLG}, s2, 0x87"); A(f"v_lshl_add_u32 v5, v{vJ}, 3, s{sLG}")
    smask(sE, 0x0000FFFF00000000)
    A(f"v_cndmask_b32 v4, v4, v5, s[{sE}:{sE+1}]")
    A(f"s_xor_b32 s{sT0}, s2, 1"); A(f"v_mov_b32 v5, s{sT0}")
    smask(sE, 0xFFFF000000000000)
    A(f"v_cndmask_b32 v4, v4, v5, s[{sE}:{sE+1}]"); A("v_lshlrev_b32 v4, 7, v4")
    A(f"s_mov_b32 s{sT1}, {FLG}")
    poll("L_pa", lambda: (A(f"buffer_load_dword v6, v4, {sr(S_WS)}, s{sT1} offen sc1"), A("s_waitcnt vmcnt(0)")), lambda: None, "v_cmp_eq_u32", 0, hsleep)
    A(f"v_cmp_ne_u32 s[{sE}:{sE+1}], s{sXC}, v6")
    A(f"s_and_b32 s{sT0}, s{sE+1}, 0xffff")
    A(f"s_cselect_b32 s{sT0}, 0, {LOC}")
    A(f"s_cselect_b32 s{sXC}, 0, {LOCB}")
    A(f"v_mov_b32 v4, {L_PRG}"); A(f"v_mov_b32 v5, s{sT0}"); A("ds_write_b32 v4, v5 offset:20")
    stamp(5)
    hETA = 28
    sGB_ = 98
    A(f"s_mul_i32 s{sGB_}, s{sGRP}, {BS}"); A(f"s_add_u32 s{sGB_}, s{sGB_}, {BLK}")
    A(f"v_bfe_u32 v4, v{vJ}, 1, 2"); A(f"v_lshrrev_b32 v5, 3, v{vJ}"); A(f"v_lshl_add_u32 v{hETA}, v4, 1, v5")
    A(f"v_mul_u32_u24 v4, {2 * BS}, v{hETA}"); A(f"v_lshl_add_u32 v4, v{vG}, 5, v4")
    A(f"v_and_b32 v5, 1, v{vJ}"); A("v_lshl_add_u32 v4, v5, 4, v4")
    hQ = 30
    def ldq():
        A(f"buffer_load_dwordx4 {vr(hQ)}, v4, {sr(S_WS)}, s{sGB_} offen offset:{O_QB2} sc1")
        A(f"buffer_load_dwordx4 {vr(hQ+4)}, v4, {sr(S_WS)}, s{sGB_} offen offset:{O_QB2 + BS} sc1")
        A("s_waitcnt vmcnt(0)")
    def redq():
        A(f"v_max3_u32 v6, v{hQ}, v{hQ+1}, v{hQ+2}"); A(f"v_max3_u32 v6, v6, v{hQ+3}, v{hQ+4}")
        A(f"v_max3_u32 v6, v6, v{hQ+5}, v{hQ+6}"); A(f"v_max_u32 v6, v6, v{hQ+7}")
    poll("L_q2", ldq, redq, "v_cmp_eq_u32", -1, hsleep)
    stamp(6)
    hS = 64
    hDD = 38
    def postB(g8):
        d = hDD + 4 * (g8 & 1)
        for r2 in range(2):
            A(f"v_mov_b32_dpp v{hS+2*g8+r2}, v{d+2*r2} quad_perm:[0,0,2,2] {FULL}")
            A(f"v_add_f32_dpp v{hS+2*g8+r2}, v{d+2*r2+1}, v{hS+2*g8+r2} quad_perm:[1,1,3,3] {FULL}")
    for g8 in range(16):
        d = hDD + 4 * (g8 & 1)
        A(f"v_mfma_f32_16x16x32_bf16 {vr(d)}, {ar(8*g8)}, {vr(hQ)}, 0")
        A(f"v_mfma_f32_16x16x32_bf16 {vr(d)}, {ar(8*g8+4)}, {vr(hQ+4)}, {vr(d)}")
        if g8 > 0: postB(g8 - 1)
    postB(15)
    lds_frags(0)
    hM, hL, hNM = 46, 47, 48
    A(f"v_max_f32 v{hM}, v{hS}, v{hS+1}")
    for k in range(2, 32, 2): A(f"v_max3_f32 v{hM}, v{hM}, v{hS+k}, v{hS+k+1}")
    allreduce(hM, 4, "v_max_f32", [])
    A(f"v_mul_f32 v{hM}, s{sC}, v{hM}"); A(f"v_sub_f32 v{hNM}, 0, v{hM}")
    for k in range(32): A(f"v_fma_f32 v{hS+k}, v{hS+k}, s{sC}, v{hNM}")
    for k in range(32): A(f"v_exp_f32 v{hS+k}, v{hS+k}")
    A(f"v_add_f32 v{hL}, v{hS}, v{hS+1}")
    for k in range(2, 32): A(f"v_add_f32 v{hL}, v{hL}, v{hS+k}")
    allreduce(hL, 4, "v_add_f32", [])
    for k in range(32): A(f"v_cvt_pk_bf16_f32 v{hS+k}, v{hS+k}, v{hS+k}")
    hOB = 96
    hBB = 50
    cnt = 0
    for k in range(32):
        for q in range(4):
            b = hBB + 4 * (cnt & 1); cnt += 1
            for rr in range(4):
                if q == rr: A(f"v_and_b32 v{b+rr}, v{hS+k}, v{vMSK+rr}")
                elif q > rr: A(f"v_and_b32_dpp v{b+rr}, v{hS+k}, v{vMSK+rr} row_shl:{2*(q-rr)} {FULL} bound_ctrl:0")
                else: A(f"v_and_b32_dpp v{b+rr}, v{hS+k}, v{vMSK+rr} row_shr:{2*(rr-q)} {FULL} bound_ctrl:0")
            A(f"v_mfma_f32_16x16x32_bf16 {vr(hOB+4*q)}, {ar(4*k)}, {vr(b)}, {'0' if k == 0 else vr(hOB+4*q)}")
    A(f"v_rcp_f32 v7, v{hL}"); A(f"v_log_f32 v{hL}, v{hL}"); A(f"v_add_f32 v{hM}, v{hM}, v{hL}"); A(f"v_min_u32 v{hM}, -2, v{hM}")
    A(f"v_lshrrev_b32 v4, 1, v{hO2}")
    A(f"s_lshl_b32 s{sT0}, s2, 11"); A(f"s_add_u32 s{sT0}, s{sT0}, {BP}")
    for q in range(4):
        o = hOB + 4 * q
        A(f"v_mov_b32_dpp v5, v7 row_newbcast:{2*q} row_mask:0xf bank_mask:0x3")
        A(f"v_mov_b32_dpp v5, v7 row_newbcast:{8+2*q} row_mask:0xf bank_mask:0xc")
        for r in range(4): A(f"v_mul_f32 v{o+r}, v{o+r}, v5")
        A(f"v_cvt_pk_bf16_f32 v{o}, v{o}, v{o+1}"); A(f"v_cvt_pk_bf16_f32 v{o+1}, v{o+2}, v{o+3}")
    A(f"v_lshlrev_b32 v5, 2, v{hETA}")
    A(f"s_cmp_eq_u32 s{sXC}, 1"); A("s_cbranch_scc1 L_bploc")
    for fl in ("sc1", ""):
        for q in range(4):
            A(f"buffer_store_dwordx2 {vr(hOB+4*q,2)}, v4, {sr(S_WS)}, s{sT0} offen offset:{q*512} {fl}")
        A("s_waitcnt vmcnt(0)")
        A("s_mov_b64 exec, 0x5555")
        A(f"buffer_store_dword v{hM}, v5, {sr(S_WS)}, s{sBLK} offen offset:{O_BST} {fl}")
        A("s_mov_b64 exec, -1")
        if fl: A("s_branch L_bpdone"); A.label("L_bploc")
    A.label("L_bpdone")
    stamp(7)
    A(f"v_mul_u32_u24 v4, {8 * BS}, v{vJ}")
    A(f"s_and_b32 s{sT2}, s{sH1}, 15")
    A(f"s_lshr_b32 s{sT1}, s{sT2}, 1"); A(f"s_lshl_b32 s{sT1}, s{sT1}, 2")
    A(f"s_mul_i32 s{sT0}, s{sLG}, {BS}"); A(f"s_add_u32 s{sT0}, s{sT0}, s{sT1}"); A(f"s_add_u32 s{sT0}, s{sT0}, {BLK}")
    for _ in range(l2pre): A("s_sleep 32")
    if "s" not in skip: poll("L_l2", lambda: (A(f"buffer_load_dword v6, v4, {sr(S_WS)}, s{sT0} offen offset:{O_BST} sc1"), A("s_waitcnt vmcnt(0)")), lambda: None, "v_cmp_eq_u32", -1, l2sleep, pre_sleep=True)
    A(f"v_lshlrev_b32 v5, 14, v{vJ}"); A(f"v_lshl_add_u32 v5, v{vG}, 4, v5")
    A(f"s_lshl_b32 s{sT0}, s{sLG}, 11"); A(f"s_lshl_b32 s{sT1}, s{sT2}, 7")
    A(f"s_add_u32 s{sT0}, s{sT0}, s{sT1}"); A(f"s_add_u32 s{sT0}, s{sT0}, {BP}")
    for i in range(2):
        if "l" not in skip: A(f"buffer_load_dwordx4 {vr(80+4*i)}, v5, {sr(S_WS)}, s{sT0} offen offset:{i*64} sc1")
    A("v_mov_b32 v7, v6")
    for r in (8, 4, 2, 1): A(f"v_max_f32_dpp v7, v7, v7 row_ror:{r} {FULL}")
    A("v_sub_f32 v6, v6, v7"); A("v_exp_f32 v6, v6"); A("v_mov_b32 v7, v6")
    for r in (8, 4, 2, 1): A(f"v_add_f32_dpp v7, v7, v7 row_ror:{r} {FULL}")
    A("v_rcp_f32 v7, v7"); A("v_mul_f32 v6, v6, v7")
    A("s_waitcnt vmcnt(0)")
    for r in range(8):
        A(f"v_lshlrev_b32 v{64+2*r}, 16, v{80+r}"); A(f"v_and_b32 v{65+2*r}, 0xffff0000, v{80+r}")
    for r in range(16): A(f"v_mul_f32 v{64+r}, v{64+r}, v6")
    for rot in (8, 4, 2, 1):
        for r in range(16): A(f"v_add_f32_dpp v{64+r}, v{64+r}, v{64+r} row_ror:{rot} {FULL}")
    smask(sE, 0x0001000100010001)
    for r in range(8):
        A(f"v_cvt_pk_bf16_f32 v{80+r}, v{64+2*r}, v{65+2*r}")
        A(f"v_min_u32 v{80+r}, -2, v{80+r}"); A(f"v_cndmask_b32 v{80+r}, 0, v{80+r}, s[{sE}:{sE+1}]")
    A(f"v_xor_b32 v4, s{sT2}, v{vJ}"); A(f"v_and_b32 v4, 1, v4"); A("v_lshlrev_b32 v4, 7, v4"); A(f"v_lshl_add_u32 v4, v{vG}, 4, v4")
    smask(sE, 0x0003000300030003)
    A(f"s_mov_b64 exec, s[{sE}:{sE+1}]")
    for i in range(2):
        if "r" not in skip: A(f"buffer_store_dwordx4 {vr(80+4*i)}, v4, {sr(S_WS)}, s{sBLK} offen offset:{O_REC + 256 + i*64} sc1")
    A("s_mov_b64 exec, -1")
    stamp(8)
    hm, hl = 58, 59
    hMW, hLW, hZ = 60, 61, 20
    A(f"v_mov_b32 v{hZ}, 0")
    def astats():
        A(f"v_and_b32 v4, 3, v{vL}"); A("v_lshlrev_b32 v5, 3, v4"); A(f"v_add_u32 v5, {L_ST}, v5")
        poll("L_st", lambda: (A(f"ds_read_b64 {vr(hm,2)}, v5"), A("s_waitcnt lgkmcnt(0)")), lambda: A(f"v_max_u32 v6, v{hm}, v{hl}"), "v_cmp_eq_u32", -1, hsleep)
        A(f"v_mov_b32 v{hMW}, v{hm}")
        for mode in ("quad_perm:[1,0,3,2]", "quad_perm:[2,3,0,1]"): A(f"v_max_f32_dpp v{hMW}, v{hMW}, v{hMW} {mode} {FULL}")
        A(f"v_sub_f32 v6, v{hm}, v{hMW}"); A("v_exp_f32 v6, v6"); A(f"v_mul_f32 v{hLW}, v6, v{hl}")
        for mode in ("quad_perm:[1,0,3,2]", "quad_perm:[2,3,0,1]"): A(f"v_add_f32_dpp v{hLW}, v{hLW}, v{hLW} {mode} {FULL}")
        A(f"v_min_u32 v6, -2, v{hMW}"); A(f"v_min_u32 v7, -2, v{hLW}")
        A("s_mov_b64 exec, 1")
        A(f"buffer_store_dwordx2 v[6:7], v{hZ}, {sr(S_WS)}, s{sBLK} offen offset:{O_AST} sc1")
        A("s_mov_b64 exec, -1")

    def weights():
        A(f"s_xor_b32 s{sT0}, s2, 1"); A(f"s_mul_i32 s{sT0}, s{sT0}, {BS}"); A(f"s_add_u32 s{sT0}, s{sT0}, {BLK}")
        poll("L_ps", lambda: (A(f"buffer_load_dwordx2 v[36:37], v{hZ}, {sr(S_WS)}, s{sT0} offen offset:{O_AST} sc1"), A("s_waitcnt vmcnt(0)")), lambda: A("v_max_u32 v6, v36, v37"), "v_cmp_eq_u32", -1, psleep if not LV else 16, pre_sleep=not LV)
        A(f"v_max_f32 v4, v{hMW}, v36")
        A(f"v_sub_f32 v5, v{hMW}, v4"); A("v_sub_f32 v6, v36, v4"); A(f"v_sub_f32 v7, v{hm}, v4")
        A("v_exp_f32 v5, v5"); A("v_exp_f32 v6, v6"); A("v_exp_f32 v7, v7")
        A(f"v_mul_f32 v5, v5, v{hLW}"); A("v_fmac_f32 v5, v6, v37")
        A("v_rcp_f32 v5, v5"); A("v_mul_f32 v7, v7, v5")
        A(f"v_and_b32 v4, 3, v{vL}"); A("v_lshlrev_b32 v4, 2, v4"); A(f"v_add_u32 v4, {L_WGT}, v4")
        A("ds_write_b32 v4, v7")

    if True:
        sCA, sMI, sLN, sOW = 99, 100, 101, 65
        A(f"s_mul_i32 s{sLN}, s{sKS}, 3840"); A(f"s_add_u32 s{sLN}, s{sLN}, {CNT}")
        A(f"s_lshl_b32 s{sOW}, s{sH1}, 1"); A(f"s_add_u32 s{sOW}, s{sOW}, s{sLN}")
        A(f"s_mov_b32 s{sCA}, {CNT + 128}")
        A(f"v_mov_b32 v30, {L_PRG}"); A(f"v_lshlrev_b32 v31, 1, v{vL}")
        A(f"s_mov_b32 s{sMI}, {M0 if KC else KT}")
        A.label("L_cloop")
        A(f"s_lshl_b32 s{sT2}, s{sMI}, 2")
        A(f"s_mov_b32 s{sSPIN}, {spin}")
        A.label("L_cw")
        A("ds_read_b128 v[32:35], v30")
        A("s_waitcnt lgkmcnt(0)")
        A("v_add3_u32 v32, v32, v33, v34"); A("v_add3_u32 v32, v32, v35, 1")
        A(f"v_readfirstlane_b32 s{sT0}, v32")
        A(f"s_cmp_ge_u32 s{sT0}, s{sT2}"); A("s_cbranch_scc1 L_cw_ok")
        spin_tail("L_cw", csleep)
        A.label("L_cw_ok")
        A(f"s_add_u32 s{sT3}, s{sMI}, 1"); A(f"v_mov_b32 v32, s{sT3}")
        A(f"buffer_load_ushort v34, v31, {sr(S_WS)}, s{sLN} offen {lfl}")
        A("s_mov_b64 exec, 1")
        A(f"buffer_store_short v32, v{hZ}, {sr(S_WS)}, s{sOW} offen")
        A("s_mov_b64 exec, -1")
        A("s_waitcnt vmcnt(0)")
        A(f"v_cmp_lt_u32 s[{sE}:{sE+1}], s{sMI}, v34"); A(f"s_bcnt1_i32_b32 s{sT0}, s{sE}")
        A(f"s_mov_b32 s{sT1}, 0")
        for k in range(1, NCMP):
            A(f"v_cmp_lt_u32 s[{sE}:{sE+1}], s{sT3}, v34"); A(f"s_bcnt1_i32_b32 s{sT2}, s{sE}")
            A(f"s_add_u32 s{sT1}, s{sT1}, s{sT2}"); A(f"s_add_u32 s{sT3}, s{sT3}, 1")
        if XB:
            A(f"v_readlane_b32 s{sT2}, v34, 32")
            A(f"s_min_u32 s{sT2}, s{sT2}, 7"); A(f"s_mul_i32 s{sT2}, s{sT2}, {XB}")
            A(f"s_add_u32 s{sT1}, s{sT1}, s{sT2}")
        A(f"s_add_u32 s{sT1}, s{sT0}, s{sT1}")
        A(f"s_mov_b32 s{sT2}, 0")
        for li, t in enumerate(TAU):
            A(f"s_cmp_ge_u32 s{sT1}, {t}"); A(f"s_cselect_b32 s{sT2}, {li+1}, s{sT2}")
        A(f"v_mov_b32 v33, s{sT2}"); A("ds_write_b32 v30, v33 offset:16")
        if XB:
            A(f"s_and_b32 s{sT2}, s{sMI}, {XP - 1}"); A("s_cbranch_scc1 L_nrep")
            A(f"s_add_u32 s{sCA}, s{sCA}, 1280")
            A(f"s_cmp_lg_u32 s{sT0}, 15"); A("s_cbranch_scc1 L_nrep")
            A("v_mov_b32 v32, 1")
            A("s_mov_b64 exec, 1")
            A(f"buffer_atomic_add v32, v{hZ}, {sr(S_WS)}, s{sCA} offen sc0 sc1")
            A("s_waitcnt vmcnt(0)")
            A(f"buffer_store_short v32, v{hZ}, {sr(S_WS)}, s{sLN} offen offset:64")
            A("s_mov_b64 exec, -1")
            A.label("L_nrep")
            assert 128 + 1280 * ((KT + VT - (M0 if KC else KT)) // XP + 1) < 32768
        A(f"s_add_u32 s{sMI}, s{sMI}, 1")
        A(f"s_cmp_lg_u32 s{sMI}, {KT + 2}"); A("s_cbranch_scc1 L_na")
        astats()
        A.label("L_na")
        A(f"s_cmp_lg_u32 s{sMI}, {KT + VT // 2}"); A("s_cbranch_scc1 L_nw")
        weights()
        A.label("L_nw")
        A(f"s_cmp_le_u32 s{sMI}, {KT + VT - LASTD}"); A("s_cbranch_scc1 L_cloop")
    stamp(10); stamp(11)
    A("s_waitcnt vmcnt(0) lgkmcnt(0)")
    A.label("L_end")
    A("s_endpgm")

    nn = A.fix_hazards()
    out = HEADER
    out += f"; @launch grid=(256,1,1) block=(320,1,1) lds={LDS_BYTES}\n"
    out += '.amdgcn_target "amdgcn-amd-amdhsa--gfx950"\n.text\n'
    out += f".globl {NAME}_kernel\n.p2align 8\n.type {NAME}_kernel,@function\n{NAME}_kernel:\n"
    out += A.text()
    out += '.section .rodata,"a"\n.p2align 6\n'
    out += f".amdhsa_kernel {NAME}_kernel\n"
    out += "  .amdhsa_next_free_vgpr 256\n  .amdhsa_next_free_sgpr 102\n  .amdhsa_accum_offset 128\n"
    out += "  .amdhsa_group_segment_fixed_size 0\n  .amdhsa_kernarg_size 104\n  .amdhsa_user_sgpr_count 2\n"
    out += "  .amdhsa_user_sgpr_kernarg_segment_ptr 1\n  .amdhsa_system_sgpr_workgroup_id_x 1\n"
    out += "  .amdhsa_float_denorm_mode_32 3\n"
    out += ".end_amdhsa_kernel\n"
    return out

if __name__ == "__main__":
    import json
    kw = json.loads(sys.argv[2]) if len(sys.argv) > 2 else {}
    open(sys.argv[1], "w").write(gen(**kw))
```

```python
import sys, struct, math
sys.path.insert(0, "dev")
from asmlib import Asm
NAME = "concat_heads__mha_block_cached__sliding_block_cached__decode"

HEADER = """; Kernarg layout for this problem (104 bytes, ptrs only, base s[0:1]):
;   offset  32: d_in[4] A_wo  shape=(4096, 1024) dtype=bfloat16
;   offset  72: d_in[9] B_wo  shape=(4096, 1024) dtype=bfloat16
;   offset  88: d_debug   256 bytes (words 0..7: "flag lines cleared")
;   offset  96: d_ws      workspace
; One launch, 256 workgroups (one per CU) x 5 waves.
;     load).  Order: wq slice -> B K/V tile + half of the wo tile (LDS-DMA) -> K pass (scores to LDS, true row max)
;     -> exp pass -> V pass -> rest of the wo tile -> output projection (two hand-offs through d_ws).
;     exchange between the two workgroups of one (batch, head), and the choice of the window depth D.
;  Hand-offs: flag lines are cleared by workgroups 0-7 (signalled in d_debug), every other slot is set to
;     0xFFFFFFFF by its owner before that owner raises its flag; data words are clamped so they never equal it.
;  Window depth: workgroups that are behind their neighbours use a deeper window (speed only).
"""

QP   = 0x000000
BP   = 0x100000
FLG  = 0x180000
CNT  = 0x188000
BLK  = 0x200000
BS   = 2944
O_QB2, O_BST, O_AST, O_REC, O_P2 = 0, 128, 256, 384, 896
TS   = 0x400000
WS_BYTES = 0x800000
L_WO  = 0
L_R2  = 0x10000
L_R3  = 0x18000
L_SC  = 0x20000
L_EX  = 0x24000
L_QL  = 0x26000
L_QBL = 0x26100
L_ST  = 0x26200
L_WGT = 0x26220
L_PRG = 0x26240
LDS_BYTES = 0x26300
FULL = "row_mask:0xf bank_mask:0xf"
SCALE = (128 ** -0.5) * math.log2(math.e)
def f32bits(x): return struct.unpack("<I", struct.pack("<f", x))[0]

def gen(XPOS=8, xfl="", MX=1, CST=0, L0=0, DS=4, DT=4, LOCB=1, LOC=1, U=16, KC=1, M0=5, XP=1, NCMP=2, LASTD=2, lfl="sc1", XB=3, GX=0, SAMEL=0, afl="sc0 sc1", qpre=0, l2pre=0, BROT=1, NDEF=8, DW=6, BURST=4, TRN=4, preBP=False, pfl="sc1", sfl="sc1", gsleep=1, s3sleep=1, PIPE=1, ORD="seq", TLB=0, prof3=False, CS=384, MS=(3, 7, 10, 12), TAU=(28, 40), SMPMASK=15, SMPVAL=5, LV=(4, 5, 6), THR=(0.6, 0.85), NG=32, PER=2, csleep=4, LASTM=12, bfl="sc1", qfl="sc1", l2sleep=16, prof2=False, G=1, osc1="", DP0=8, DP=(6,), DK=(4,), DV=(4,), DE=None, NE=0, X=12, prof=False, spin=1 << 16, hsleep=16, psleep=100, tsleep=1, qsleep=4, skip="", gfl="sc1", diag=None):
    tup = lambda x: (x,) if isinstance(x, int) else tuple(x)
    DP, DK, DV = tup(DP), tup(DK), tup(DV)
    DE = DV if DE is None else tup(DE)
    A = Asm()
    in_helper = [False]
    def srd(base, ptr, size):
        A(f"s_mov_b32 s{base}, s{ptr}"); A(f"s_mov_b32 s{base+1}, s{ptr+1}")
        A(f"s_mov_b32 s{base+2}, {hex(size)}"); A(f"s_mov_b32 s{base+3}, 0x00020000")
    def smask(r, val):
        A(f"s_mov_b32 s{r}, {hex(val & 0xffffffff)}"); A(f"s_mov_b32 s{r+1}, {hex(val >> 32)}")
    S_K, S_V, S_X, S_W, S_WS, S_O, S_WO = 32, 36, 40, 44, 48, 52, 56
    sr = lambda b: f"s[{b}:{b+3}]"
    vr = lambda b, n=4: f"v[{b}:{b+n-1}]"
    ar = lambda b, n=4: f"a[{b}:{b+n-1}]"
    sT0, sT1, sT2, sT3, sCNT, sOFFK, sOFFV, sC, sSPIN, sLD = 60, 61, 62, 63, 64, 65, 66, 67, 68, 69
    sM = 70
    sE = 86
    sTS = 88
    sTI = 90
    sH1, sKS, sB, sH, sS = 91, 92, 93, 94, 95
    sKB = 30
    vL, vG, vJ = 1, 2, 3
    def stamp(idx):
        if diag and not in_helper[0]:
            wg, sidx, base, mul = diag
            if idx == sidx:
                A("s_memrealtime s[4:5]"); A("s_waitcnt lgkmcnt(0)"); A("s_sub_u32 s90, s4, s88"); A(f"s_mul_i32 s90, s90, {mul}")
            if idx == 10:
                if sidx < 0: A("s_mov_b32 s90, 0")
                if wg >= 0:
                    A(f"s_cmp_lg_u32 s2, {wg}"); A("s_cbranch_scc1 L_end")
                A(f"s_add_u32 s90, s90, {base*100}")
                A.label("L_diag")
                A("s_memrealtime s[4:5]"); A("s_waitcnt lgkmcnt(0)"); A("s_sub_u32 s4, s4, s88")
                A("s_cmp_lt_u32 s4, s90"); A("s_cbranch_scc1 L_diag")
        if not prof: return
        A(f"s_memrealtime s[{sTS}:{sTS+1}]")
        A("s_waitcnt lgkmcnt(0)")
        A(f"v_mov_b32 v63, s{sTS}")
        A(f"s_mov_b64 exec, 1")
        A(f"buffer_store_dword v63, v62, {sr(S_WS)}, s{sTI} offen offset:{idx*4}")
        A(f"s_mov_b64 exec, -1")
    def lstamp():
        if not prof2: return
        A(f"s_memrealtime s[{sTS}:{sTS+1}]")
        A("s_waitcnt lgkmcnt(0)")
        A(f"s_mov_b32 m0, s31")
        A(f"v_writelane_b32 v63, s{sTS}, m0")
        A("s_add_u32 s31, s31, 1")
    def spin_tail(lab, sl):
        A(f"s_sleep {sl}")
        A(f"s_sub_u32 s{sSPIN}, s{sSPIN}, 1"); A(f"s_cmp_lg_u32 s{sSPIN}, 0"); A(f"s_cbranch_scc1 {lab}")
    def allreduce(v, tmp, op, rors):
        for r in rors: A(f"{op}_dpp v{v}, v{v}, v{v} row_ror:{r} {FULL}")
        A(f"v_mov_b32 v{tmp}, v{v}"); A(f"v_permlane16_swap_b32 v{tmp}, v{v}"); A(f"{op} v{v}, v{v}, v{tmp}")
        A(f"v_mov_b32 v{tmp}, v{v}"); A(f"v_permlane32_swap_b32 v{tmp}, v{v}"); A(f"{op} v{v}, v{v}, v{tmp}")

    A(f"s_cmp_ge_u32 s2, 256")
    A("s_cbranch_scc1 L_end")
    A("s_load_dwordx16 s[4:19], s[0:1], 0")
    A("s_load_dwordx8 s[20:27], s[0:1], 64")
    A("s_load_dwordx2 s[28:29], s[0:1], 96")
    A(f"v_lshrrev_b32 v4, 6, v0")
    A(f"v_and_b32 v{vL}, 63, v0")
    A(f"v_readfirstlane_b32 s3, v4")
    A(f"v_lshrrev_b32 v{vG}, 4, v{vL}")
    A(f"v_and_b32 v{vJ}, 15, v{vL}")
    A(f"s_lshr_b32 s{sH1}, s2, 3")
    A(f"s_and_b32 s{sKS}, s2, 7")
    A(f"s_lshr_b32 s{sB}, s2, 6")
    A(f"s_bfe_u32 s{sH}, s2, 0x50001")
    A(f"s_and_b32 s{sS}, s2, 1")
    A(f"s_mov_b32 s{sC}, {hex(f32bits(SCALE))}")
    if prof:
        A(f"s_mul_i32 s{sTI}, s2, 5"); A(f"s_add_u32 s{sTI}, s{sTI}, s3"); A(f"s_lshl_b32 s{sTI}, s{sTI}, 6")
        A(f"s_add_u32 s{sTI}, s{sTI}, {TS}"); A("v_mov_b32 v62, 0")
    vSEL, vMSK = 8, 16
    def build_sel():
        for rr in range(4): smask(sM + 2 * rr, 0x0303030303030303 << (2 * rr))
        smask(sE, 0xAAAAAAAAAAAAAAAA)
        A("v_mov_b32 v4, 0x0c0c0100"); A("v_mov_b32 v5, 0x01000c0c")
        A(f"v_cndmask_b32 v6, v4, v5, s[{sE}:{sE+1}]")
        A("v_mov_b32 v4, 0x0c0c0302"); A("v_mov_b32 v5, 0x03020c0c")
        A(f"v_cndmask_b32 v7, v4, v5, s[{sE}:{sE+1}]")
        A("v_mov_b32 v4, 0x0c0c0c0c")
        for rr in range(4):
            A(f"v_cndmask_b32 v{vSEL+2*rr}, v4, v6, s[{sM+2*rr}:{sM+2*rr+1}]")
            A(f"v_cndmask_b32 v{vSEL+2*rr+1}, v4, v7, s[{sM+2*rr}:{sM+2*rr+1}]")
        A("v_mov_b32 v4, 0x0000ffff"); A("v_mov_b32 v5, 0xffff0000")
        A(f"v_cndmask_b32 v6, v4, v5, s[{sE}:{sE+1}]")
        for rr in range(4):
            A(f"v_cndmask_b32 v{vMSK+rr}, 0, v6, s[{sM+2*rr}:{sM+2*rr+1}]")
    def rec_producer(dst, t1, t2):
        A(f"s_and_b32 s{sT1}, s{sH1}, 15")
        A(f"v_lshrrev_b32 v{t1}, 2, v{vJ}"); A(f"v_and_b32 v{t2}, 3, v{vJ}")
        A(f"s_cmp_ge_u32 s2, 128"); lb = A.newlabel("L_rpb"); le = A.newlabel("L_rpe")
        A(f"s_cbranch_scc1 {lb}")
        A(f"v_lshl_add_u32 v{dst}, v{t1}, 6, v{t2}"); A(f"s_lshl_b32 s{sT0}, s{sT1}, 2")
        A(f"s_branch {le}")
        A.label(lb)
        A(f"v_lshlrev_b32 v{dst}, 3, v{t2}"); A(f"v_and_b32 v{t2}, 1, v{t1}"); A(f"v_lshl_add_u32 v{dst}, v{t2}, 2, v{dst}")
        A(f"v_lshrrev_b32 v{t1}, 1, v{t1}"); A(f"v_lshl_add_u32 v{dst}, v{t1}, 7, v{dst}")
        A(f"s_and_b32 s{sT0}, s{sT1}, 3"); A(f"s_lshl_b32 s{sT0}, s{sT0}, 5"); A(f"s_lshr_b32 s{sT1}, s{sT1}, 2"); A(f"s_add_u32 s{sT0}, s{sT0}, s{sT1}")
        A.label(le)
        A(f"v_add_u32 v{dst}, s{sT0}, v{dst}")
    A("s_cmp_eq_u32 s3, 4")
    A("s_cbranch_scc1 L_helper")

    vOK, vOV, vAS, vAP, vMAX, vT = 20, 21, 22, 23, 24, 25
    vX = 26
    vBB = 34
    vD = 42
    QB = [8, 12, 26, 30]
    vPP = 58
    vACC = 50
    vSL = 89
    vW0, vW1 = 98, 99
    sWB, sWL = 6, 7
    vDM = 64
    vXB = 90
    A("s_setprio 1")
    if prof2:
        A("s_mov_b32 s31, 0"); A("v_mov_b32 v63, 0"); lstamp()
    if diag: A("s_memrealtime s[88:89]")
    A(f"v_lshrrev_b32 v4, 3, v{vJ}")
    A(f"v_lshlrev_b32 v5, 11, v4")
    A(f"v_lshl_add_u32 v5, v{vG}, 5, v5")
    A(f"v_lshlrev_b32 v{vDM+3}, 17, v{vG}")
    A(f"v_lshl_add_u32 v{vDM+3}, v{vJ}, 4, v{vDM+3}")
    A(f"s_and_b32 s{sT0}, s2, 3"); A(f"s_lshl_b32 s{sT0}, s{sT0}, 9"); A(f"s_lshl_b32 s{sT1}, s3, 7"); A(f"s_add_u32 s{sT0}, s{sT0}, s{sT1}")
    A(f"s_add_u32 s{sT1}, s{sT0}, 4096")
    A(f"s_lshl_b32 s{sT2}, s{sT0}, 12")
    A(f"s_lshl_b32 s{sT3}, s{sH1}, 8"); A(f"s_add_u32 s{sT2}, s{sT2}, s{sT3}")
    A(f"s_mov_b32 s{S_X+2}, 8192"); A(f"s_mov_b32 s{S_X+3}, 0x00020000")
    A(f"s_mov_b32 s{S_W+2}, {hex(1 << 23)}"); A(f"s_mov_b32 s{S_W+3}, 0x00020000")
    A(f"s_lshr_b32 s{sT3}, s2, 1"); A(f"s_xor_b32 s{sT3}, s{sT3}, s2")
    A(f"s_bitcmp1_b32 s{sT3 if MX else 2}, 2")
    A("s_waitcnt lgkmcnt(0)")
    A(f"s_cselect_b32 s{S_W}, s20, s10"); A(f"s_cselect_b32 s{S_W+1}, s21, s11")
    A(f"s_cselect_b32 s{S_X}, s14, s4"); A(f"s_cselect_b32 s{S_X+1}, s15, s5")
    for t in range(9):
        if t == XPOS:
            A(f"buffer_load_dwordx4 {vr(vX)}, v5, {sr(S_X)}, s{sT0} offen {xfl}")
            A(f"buffer_load_dwordx4 {vr(vX+4)}, v5, {sr(S_X)}, s{sT1} offen {xfl}")
            A(f"buffer_load_dwordx4 {vr(vXB)}, v5, {sr(S_X)}, s{sT0} offen offset:16 {xfl}")
            A(f"buffer_load_dwordx4 {vr(vXB+4)}, v5, {sr(S_X)}, s{sT1} offen offset:16 {xfl}")
        if t < 8:
            A(f"buffer_load_dwordx4 {ar(4*t)}, v{vDM+3}, {sr(S_W)}, s{sT2} offen nt")
            A(f"s_add_u32 s{sT2}, s{sT2}, 8192")
    srd(S_K, 6, 1 << 28); srd(S_V, 8, 1 << 28); srd(S_WS, 28, WS_BYTES)
    srd(S_X, 16, 1 << 25)
    srd(S_O, 18, 1 << 25)
    A(f"s_cmp_ge_u32 s2, 128")
    A(f"s_cselect_b32 s{S_WO}, s22, s12"); A(f"s_cselect_b32 s{S_WO+1}, s23, s13")
    A(f"s_mov_b32 s{S_WO+2}, {hex(1 << 23)}"); A(f"s_mov_b32 s{S_WO+3}, 0x00020000")
    stamp(0)
    A(f"v_lshrrev_b32 v7, 2, v{vJ}")
    A(f"v_lshlrev_b32 v{vOK}, 8, v7")
    A(f"v_lshl_add_u32 v{vOK}, v{vG}, 6, v{vOK}")
    A(f"v_and_b32 v5, 3, v{vJ}")
    A(f"v_lshl_add_u32 v{vOK}, v5, 4, v{vOK}")
    A(f"v_lshl_add_u32 v6, v{vG}, 1, v4")
    A(f"v_lshlrev_b32 v{vOV}, 8, v6")
    A(f"v_and_b32 v5, 7, v{vJ}")
    A(f"v_lshl_add_u32 v{vOV}, v5, 4, v{vOV}")
    A(f"s_lshl_b32 s{sT0}, s3, 1"); A(f"v_lshrrev_b32 v{vW0}, 1, v{vG}"); A(f"v_add_u32 v{vW0}, s{sT0}, v{vW0}")
    A(f"v_xor_b32 v{vW0}, v{vW0}, v{vJ}"); A(f"v_lshlrev_b32 v{vW0}, 4, v{vW0}"); A(f"v_lshl_add_u32 v{vW0}, v{vG}, 11, v{vW0}")
    A(f"s_lshl_b32 s{sOFFK}, s2, 20"); A(f"s_lshl_b32 s{sT0}, s3, 12"); A(f"s_add_u32 s{sOFFK}, s{sOFFK}, s{sT0}")
    A(f"s_mov_b32 s{sOFFV}, s{sOFFK}")
    A(f"s_add_u32 s{sT0}, s{sT0}, {L_SC}")
    A(f"v_lshl_add_u32 v{vAS}, v7, 2, v{vG}")
    A(f"v_lshl_add_u32 v{vAS}, v{vAS}, 2, s{sT0}")
    A(f"v_lshl_add_u32 v{vAP}, v6, 2, s{sT0}")
    A(f"v_lshl_add_u32 v{vSL}, v{vL}, 4, s{sT0}")
    A(f"v_mov_b32 v{vMAX}, 0xff800000")
    A(f"v_lshrrev_b32 v4, 1, v{vJ}"); A(f"v_lshlrev_b32 v{vDM+2}, 8, v4")
    A(f"v_lshl_add_u32 v{vDM+2}, v{vG}, 5, v{vDM+2}")
    A(f"v_and_b32 v4, 1, v{vJ}"); A(f"v_lshl_add_u32 v{vDM+2}, v4, 4, v{vDM+2}")
    A(f"v_lshlrev_b32 v{vDM}, 9, v{vG}"); A(f"v_lshl_add_u32 v{vDM}, v{vJ}, 4, v{vDM}")
    A(f"s_lshr_b32 s{sKB}, s2, 7"); A(f"s_lshl_b32 s{sKB}, s{sKB}, 3"); A(f"s_add_u32 s{sKB}, s{sKB}, s{sKS}"); A(f"s_lshl_b32 s{sKB}, s{sKB}, 21")
    A(f"s_and_b32 s{sT0}, s{sH1}, 15"); A(f"s_lshl_b32 s{sT0}, s{sT0}, 15"); A(f"s_add_u32 s{sKB}, s{sKB}, s{sT0}")
    A(f"s_lshl_b32 s{sLD}, s3, 13"); A(f"s_add_u32 s{sKB}, s{sKB}, s{sLD}"); A(f"s_add_u32 s{sKB}, s{sKB}, {6144 * 256}")
    A(f"s_and_b32 s{sT3}, s{sH1}, 15"); A(f"s_lshl_b32 s{sT3}, s{sT3}, 19"); A(f"s_lshl_b32 s{sT0}, s{sKS}, 8")
    A(f"s_add_u32 s{sT3}, s{sT3}, s{sT0}"); A(f"s_add_u32 s{sWB}, s{sT3}, s{sLD}")
    A(f"s_lshl_b32 s{sWL}, s3, 10")
    if BROT: A(f"s_and_b32 s{sT1}, s{sH1}, 3"); A(f"s_lshl_b32 s{sT1}, s{sT1}, 11")
    else: A(f"s_mov_b32 s{sT1}, 0")
    build_sel()

    def ring_reg(n): return ar(4 * (n % 16))
    kcnt = [0]; vcnt = [0]
    def loadK(reg):
        m = kcnt[0] % 4; kcnt[0] += 1
        A(f"buffer_load_dwordx4 {reg}, v{vOK}, {sr(S_K)}, s{sOFFK} offen offset:{m*1024} nt")
        if m == 3: A(f"s_add_u32 s{sOFFK}, s{sOFFK}, 16384")
    def loadV(reg):
        m = vcnt[0] % 4; vcnt[0] += 1
        A(f"buffer_load_dwordx4 {reg}, v{vOV}, {sr(S_V)}, s{sOFFV} offen offset:{(m>>1)*2048+(m&1)*128} nt")
        if m == 3: A(f"s_add_u32 s{sOFFV}, s{sOFFV}, 16384")
    def qk(reg, m, d):
        A(f"v_mfma_f32_16x16x32_bf16 {vr(d)}, {reg}, {vr(QB[m])}, {'0' if m == 0 else vr(d)}")
    def post(d, off):
        A(f"v_mov_b32_dpp v{vT}, v{d} quad_perm:[0,0,0,0] {FULL}")
        for r in range(1, 4):
            A(f"v_add_f32_dpp v{vT}, v{d+r}, v{vT} quad_perm:[{r},{r},{r},{r}] {FULL}")
        A(f"v_max_f32 v{vMAX}, v{vMAX}, v{vT}")
        A(f"ds_write_b32 v{vAS}, v{vT} offset:{off}")
    def qpart(t):
        x0, d0, tt = (vX, vD, t) if t < 8 else (vXB, vD, t - 8)
        for q in range(2):
            b = vBB + 4 * q
            for rr in range(4):
                A(f"v_perm_b32 v{b+rr}, v{x0+4*q+(tt>>1)}, v{x0+4*q+(tt>>1)}, v{vSEL+2*rr+(tt&1)}")
            A(f"v_mfma_f32_16x16x32_bf16 {vr(d0+4*q)}, {ar(4*t)}, {vr(b)}, {'0' if t == 0 else vr(d0+4*q)}")
    def dma(voff, srdb, soff, m0base, m0imm, step, tag):
        if m0base is None:
            def issue():
                A(f"buffer_load_dwordx4 {ar(m0imm)}, v{voff}, {sr(srdb)}, s{soff} offen nt")
                A(f"s_add_u32 s{soff}, s{soff}, {step}")
            return issue
        A(f"s_add_u32 m0, s{m0base}, {m0imm}")
        def issue():
            A(f"buffer_load_dwordx4 v{voff}, {sr(srdb)}, s{soff} offen nt lds")
            A(f"s_add_u32 s{soff}, s{soff}, {step}")
        return issue
    p1 = [(vDM + 3, S_W, sT2, None, 32 + 4 * t, 8192, "q") for t in range(8)]
    def b_dma(voff, srdb, lds, second, k):
        if k % 2 == 0:
            A(f"s_add_u32 s{sT3}, s{sKB}, s{sT1}"); A(f"s_add_u32 s{sCNT}, s{sLD}, s{sT1}")
            A(f"s_add_u32 m0, s{sCNT}, {lds}")
        else:
            A(f"s_add_u32 s{sT3}, s{sT3}, {second}"); A(f"s_add_u32 m0, s{sCNT}, {lds + 1024}")
            A(f"s_add_u32 s{sT1}, s{sT1}, 2048"); A(f"s_and_b32 s{sT1}, s{sT1}, 8191")
        return lambda: A(f"buffer_load_dwordx4 v{voff}, {sr(srdb)}, s{sT3} offen nt lds")
    p1 += [("b", vDM + 2, S_X, L_R3, 128, k) for k in range(8)]
    p1 += [("b", vDM, S_O, L_R2, 256, k) for k in range(8)]
    def wo_dma(ip):
        A(f"s_add_u32 m0, s{sWL}, {L_WO + ip * 4096}")
        A(f"s_add_u32 s{sT3}, s{sWB}, {ip * 32768}")
        x = (128 if ip & 1 else 0) ^ (32 if ip >= 8 else 0)
        if x: A(f"v_xor_b32 v{vW1}, {x}, v{vW0}")
        return lambda: A(f"buffer_load_dwordx4 v{vW1 if x else vW0}, {sr(S_WO)}, s{sT3} offen nt lds")
    tdef = list(range(4 - NDEF // 4, 4)); tearly = list(range(4 - NDEF // 4))
    wo_early = sorted(i for t in tearly for i in (2*t, 2*t+1, 8+2*t, 9+2*t))
    wo_late = sorted(i for t in tdef for i in (2*t, 2*t+1, 8+2*t, 9+2*t))
    p1 += [("wo", i) for i in wo_early]
    NPOOL = 16
    tdone = 0
    LAG = max(max(DK), DS, DT) + 1
    if LV and KC: LAG = max(LV) + 1
    n = 0
    def q_progress(landed):
        nonlocal tdone
        while tdone < 16 and max(4 + tdone, XPOS + 3) <= landed:
            qpart(tdone); tdone += 1
            if tdone == 16:
                for i, r in enumerate((vD, vD + 4)): A(f"ds_write_b128 v{vSL}, {vr(r)} offset:{i*1024}")
                A("s_waitcnt lgkmcnt(0)")
                A("s_barrier")
                stamp(1)
    A("; ---- phase 1: rest of wq, B tiles and wo (LDS-DMA); q partial via diagonal-B MFMA")
    for p, d in enumerate(p1):
        go = wo_dma(d[1]) if d[0] == "wo" else b_dma(*d[1:]) if d[0] == "b" else dma(*d)
        dd = DP0 if p < 8 else DP[p % len(DP)]
        A(f"s_waitcnt vmcnt({dd})"); go()
        if prof3 and p % 4 == 3: lstamp()
        q_progress(12 + p - 1 - dd)
    assert tdone == 16
    def tickK():
        nonlocal n
        A(f"s_waitcnt vmcnt({DS})"); loadK(ring_reg(n)); n += 1
        if prof3 and n % 4 == 0: lstamp()
    srd(S_O, 24, 16384)
    assert X >= LAG
    for p in range(NPOOL):
        A(f"s_waitcnt vmcnt({DS})"); loadK(ar(64 + 4 * p))
        if prof3 and p % 4 == 3: lstamp()
    for _ in range(X): tickK()
    stamp(2)
    lstamp()
    A("s_barrier")
    lstamp()
    stamp(3)
    A(f"v_and_b32 v4, 3, v{vJ}")
    A(f"v_lshl_add_u32 v4, v{vG}, 2, v4")
    A(f"v_lshlrev_b32 v4, 4, v4")
    A(f"v_add_u32 v4, {L_QL}, v4")
    A(f"ds_read_b128 {vr(vBB)}, v4")
    tickK()
    for m in range(4): smask(sM + 2 * m, 0x000F000F000F000F << (4 * m))
    A("s_waitcnt lgkmcnt(0)")
    for m in range(4):
        for rr in range(4):
            A(f"v_cndmask_b32 v{QB[m]+rr}, 0, v{vBB+rr}, s[{sM+2*m}:{sM+2*m+1}]")
    side = []
    GP = NPOOL // 4
    def mk_pool(pg):
        def f():
            if pg < GP:
                for m in range(4): qk(ar(64 + 16 * pg + 4 * m), m, vACC + 4 * (pg & 1))
            if pg > 0: post(vACC + 4 * ((pg - 1) & 1), (pg - 1) * 64)
        return f
    for pg in range(GP + 1): side.append(mk_pool(pg))
    vTR = 82
    def side_tr_addr():
        A(f"v_bfe_u32 v6, v{vJ}, 1, 1"); A("v_lshlrev_b32 v4, 7, v6")
        A(f"v_lshrrev_b32 v5, 2, v{vJ}"); A("v_lshl_add_u32 v4, v5, 3, v4")
        A(f"v_lshl_add_u32 v4, v{vG}, 1, v4"); A("v_lshlrev_b32 v4, 8, v4")
        A(f"v_lshl_add_u32 v5, v5, 2, v{vG}"); A("v_lshlrev_b32 v6, 1, v6"); A("v_xor_b32 v5, v5, v6")
        A(f"s_lshl_b32 s{sT0}, s3, 2"); A(f"v_xor_b32 v5, s{sT0}, v5"); A("v_lshl_add_u32 v4, v5, 4, v4")
        A(f"v_and_b32 v5, 1, v{vJ}"); A(f"v_lshl_add_u32 v{vTR}, v5, 3, v4")
        for ch in range(1, 4): A(f"v_xor_b32 v{vTR2+ch-1}, {ch*16}, v{vTR}")
    vTR2 = 26
    def traddr(ch): return vTR if ch == 0 else vTR2 + ch - 1
    def wofrag(t, ch): return 64 + 4 * (t * 4 + ch)
    def mk_tr(lst):
        def f():
            for t, ch, a in lst:
                A(f"ds_read_b64_tr_b16 {ar(wofrag(t,ch)+2*a,2)}, v{traddr(ch)} offset:{L_WO + (32*t+a)*256}")
        return f
    rc = 0
    pend = []
    while n < 32 or n % 16 or side:
        assert rc >= n - 15, (rc, n)
        tickK()
        old = list(pend); pend.clear()
        budget = 4
        while budget > 0 and rc <= n - 1 - LAG:
            g = rc // 4
            if rc % 4 == 0 and any(d == vD + 4 * (g & 1) for d, _ in old + pend):
                for po in old + pend: post(*po)
                old = []; pend.clear()
            qk(ring_reg(rc), rc % 4, vD + 4 * (g & 1))
            if rc % 4 == 3: pend.append((vD + 4 * (g & 1), (GP + g) * 64))
            rc += 1; budget -= 1
        for po in old: post(*po)
        if budget >= 3 and side: side.pop(0)()
    assert rc == n - LAG and not side, (rc, n, len(side))
    assert len(pend) == (1 if (n - 1 - LAG) % 4 == 3 else 0)
    def lring(k): return ring_reg(k) if U == 16 else ar(32 + 4 * (k % 8))
    vPG, vDEC = 90, 91
    def ctl_loop(name, levels, upto, tick, step):
        A(f"ds_read_b32 v{vDEC}, v92 offset:16")
        A.label(f"{name}top")
        if U == 16: lstamp()
        elif prof2:
            A(f"s_and_b32 s{sT0}, s{sCNT}, 1"); A(f"s_cbranch_scc1 {name}ns"); lstamp(); A.label(f"{name}ns")
        A("s_waitcnt lgkmcnt(0)")
        A(f"v_readfirstlane_b32 s{sT0}, v{vDEC}")
        A(f"v_mov_b32 v93, s{sCNT}")
        A(f"ds_write_b32 v{vPG}, v93")
        A(f"s_add_u32 s{sCNT}, s{sCNT}, 1")
        for li in range(1, len(levels)):
            A(f"s_cmp_eq_u32 s{sT0}, {li}"); A(f"s_cbranch_scc1 {name}lv{li}")
        for li, dd in enumerate(levels):
            A.label(f"{name}lv{li}")
            for i in range(U):
                A(f"s_waitcnt vmcnt({dd})"); tick(i)
                if i == U - 2: A(f"ds_read_b32 v{vDEC}, v92 offset:16")
            step()
            A(f"s_cmp_lt_u32 s{sCNT}, {upto}"); A(f"s_cbranch_scc1 {name}top")
            if li < len(levels) - 1: A(f"s_branch {name}done")
        A.label(f"{name}done")
    A("; ---- K loop")
    A(f"v_add_u32 v{vAS}, {(GP + n // 4 - 3) * 64}, v{vAS}")
    A(f"s_lshl_b32 s{sT0}, s3, 2"); A(f"s_add_u32 s{sT0}, s{sT0}, {L_PRG}"); A(f"v_mov_b32 v{vPG}, s{sT0}")
    A(f"v_mov_b32 v92, {L_PRG}")
    A(f"s_mov_b32 s{sCNT}, 0")
    KT = (256 - NPOOL - n) // U
    assert LAG <= U - 1 or U == 16
    def ktick(i):
        loadK(lring(i))
        c = i - LAG
        qk(lring(c), c % 4, vD + 4 * ((c // 4) & 1))
        if (c - 1) % 4 == 3: post(vD + 4 * (((c - 1) // 4) & 1), ((c - 1) // 4 + 3) * 64)
    ctl_loop("L_k", LV if KC else DK[:1], KT, ktick, lambda: A(f"v_add_u32 v{vAS}, {16 * U}, v{vAS}"))
    stamp(4)
    LAGV = max(DV) + 1
    if LV: LAGV = max(LV) + 1
    n = 0
    def tickT():
        nonlocal n
        dd = DT
        assert DT < LAG and DT < LAGV
        A(f"s_waitcnt vmcnt({dd})"); loadV(ring_reg(n)); n += 1
    for i in range(LAG + 1):
        tickT()
        c = i - LAG
        if c < 0: qk(ring_reg(c), c % 4, vD + 4 * ((c // 4) & 1))
        if (c - 1) % 4 == 3: post(vD + 4 * (((c - 1) // 4) & 1), ((c - 1) // 4 + 3) * 64)
    vS = 64
    vNM, vLS = 80, 81
    for i in range(4): A(f"ds_read_b128 {vr(vS+4*i)}, v{vSL} offset:{i*1024}")
    allreduce(vMAX, vT, "v_max_f32", [4, 8])
    A(f"v_mul_f32 v{vMAX}, s{sC}, v{vMAX}")
    A(f"v_sub_f32 v{vNM}, 0, v{vMAX}")
    for r in range(8): A(f"v_mov_b32 v{vACC+r}, 0")
    tickT()
    A("s_waitcnt lgkmcnt(0)")
    for i in range(4):
        for r in range(4): A(f"v_fma_f32 v{vS+4*i+r}, v{vS+4*i+r}, s{sC}, v{vNM}")
        for r in range(4): A(f"v_exp_f32 v{vS+4*i+r}, v{vS+4*i+r}")
        A(f"v_add_f32 v5, v{vS+4*i}, v{vS+4*i+1}"); A(f"v_add_f32 v6, v{vS+4*i+2}, v{vS+4*i+3}")
        A(f"v_add_f32 v5, v5, v6")
        A(f"v_mov_b32 v{vLS}, v5" if i == 0 else f"v_add_f32 v{vLS}, v{vLS}, v5")
        for r in range(4): A(f"v_cvt_pk_bf16_f32 v{vS+4*i+r}, v{vS+4*i+r}, v{vS+4*i+r}")
        A(f"ds_write_b128 v{vSL}, {vr(vS+4*i)} offset:{i*1024}")
        if i % 2 == 1: tickT()
    A(f"ds_read2_b32 {vr(vPP,2)}, v{vAP} offset0:0 offset1:8")
    def pv(reg, c, poff):
        beta, u = (c % 4) >> 1, c & 1
        pp = vPP + 2 * ((c // 4) & 1)
        if c % 4 == 0:
            A("s_waitcnt lgkmcnt(0)")
            A(f"ds_read2_b32 {vr(vPP + 2 * ((c // 4 + 1) & 1), 2)}, v{vAP} offset0:{poff//4} offset1:{poff//4+8}")
        if u == 0:
            for rr in range(4): A(f"v_and_b32 v{vBB+4*beta+rr}, v{pp+beta}, v{vMSK+rr}")
        A(f"v_mfma_f32_16x16x32_bf16 {vr(vACC+4*u)}, {reg}, {vr(vBB+4*beta)}, {vr(vACC+4*u)}")
    def side_stats():
        allreduce(vLS, vT, "v_add_f32", [1, 2, 4, 8])
        A(f"v_min_u32 v6, -2, v{vMAX}"); A(f"v_min_u32 v7, -2, v{vLS}")
        A(f"s_lshl_b32 s{sT0}, s3, 3"); A(f"s_add_u32 s{sT0}, s{sT0}, {L_ST}")
        A(f"v_mov_b32 v4, s{sT0}")
        A("ds_write_b64 v4, v[6:7]")
    vFW, vFR, vWA, vRO, vGO, vPO = 83, 84, 85, 86, 87, 88
    sREC, sGA, sGB, sP2, sP3, sOUT = 96, 97, 98, 99, 100, 101
    def side_tail1():
        A(f"s_lshl_b32 s{sT0}, s3, 11"); A(f"s_add_u32 s{sT0}, s{sT0}, {L_EX}")
        A(f"v_lshl_add_u32 v{vFW}, v{vL}, 4, s{sT0}")
        A(f"v_and_b32 v4, 1, v{vL}"); A("v_mul_u32_u24 v4, 40, v4")
        A(f"v_lshrrev_b32 v5, 3, v{vL}"); A("v_add_u32 v4, v4, v5"); A("v_lshlrev_b32 v4, 4, v4")
        A(f"v_bfe_u32 v6, v{vL}, 1, 2"); A("v_lshl_add_u32 v4, v6, 11, v4")
        A(f"s_lshr_b32 s{sT0}, s3, 1"); A(f"s_lshl_b32 s{sT0}, s{sT0}, 10")
        A(f"s_and_b32 s{sT1}, s3, 1"); A(f"s_lshl_b32 s{sT1}, s{sT1}, 8")
        A(f"s_add_u32 s{sT0}, s{sT0}, s{sT1}"); A(f"s_add_u32 s{sT0}, s{sT0}, {L_EX}")
        A(f"v_add_u32 v{vFR}, s{sT0}, v4")
        A(f"v_lshlrev_b32 v{vWA}, 2, v6"); A(f"v_add_u32 v{vWA}, {L_WGT}, v{vWA}")
        A(f"v_lshlrev_b32 v{vRO}, 3, v5")
    def side_tail2():
        A(f"s_mul_i32 s{sP2}, s2, {BS}"); A(f"s_add_u32 s{sP2}, s{sP2}, {BLK}")
        A(f"s_lshl_b32 s{sT0}, s3, 6"); A(f"s_add_u32 s{sREC}, s{sP2}, s{sT0}")
        A(f"s_lshl_b32 s{sT0}, s3, 9"); A(f"s_add_u32 s{sP2}, s{sP2}, s{sT0}")
        rec_producer(4, 5, 6)
        A(f"v_mul_u32_u24 v{vGO}, {BS}, v4"); A(f"v_lshl_add_u32 v{vGO}, v{vG}, 4, v{vGO}")
        A(f"s_lshr_b32 s{sGA}, s2, 7"); A(f"s_lshl_b32 s{sGA}, s{sGA}, 8"); A(f"s_add_u32 s{sGA}, s{sGA}, {BLK + O_REC}")
    def side_tail3():
        A(f"v_lshrrev_b32 v4, 2, v{vJ}"); A(f"v_lshlrev_b32 v{vPO}, 7, v4"); A(f"v_lshl_add_u32 v{vPO}, v{vG}, 5, v{vPO}")
        A(f"v_and_b32 v4, 3, v{vJ}"); A(f"v_lshl_add_u32 v{vPO}, v4, 3, v{vPO}")
        A(f"s_and_b32 s{sT1}, s2, 0x87"); A(f"s_mul_i32 s{sP3}, s{sT1}, {BS}"); A(f"s_add_u32 s{sP3}, s{sP3}, {BLK + O_P2}")
        A(f"s_and_b32 s{sT1}, s{sH1}, 15"); A(f"s_lshl_b32 s{sT0}, s{sT1}, 7"); A(f"s_add_u32 s{sP3}, s{sP3}, s{sT0}")
        A(f"s_lshl_b32 s{sT0}, s3, 4"); A(f"s_add_u32 s{sP3}, s{sP3}, s{sT0}")
        A(f"v_mul_u32_u24 v8, {8 * BS}, v{vJ}"); A(f"v_lshl_add_u32 v8, v{vG}, 5, v8")
        A(f"s_lshr_b32 s{sOUT}, s2, 7"); A(f"s_lshl_b32 s{sOUT}, s{sOUT}, 3"); A(f"s_add_u32 s{sOUT}, s{sOUT}, s{sKS}"); A(f"s_lshl_b32 s{sOUT}, s{sOUT}, 8")
        A(f"s_lshr_b32 s{sT0}, s{sT1}, 2"); A(f"s_lshl_b32 s{sT0}, s{sT0}, 6"); A(f"s_add_u32 s{sOUT}, s{sOUT}, s{sT0}")
        A(f"s_and_b32 s{sT0}, s{sT1}, 3"); A(f"s_lshl_b32 s{sT0}, s{sT0}, 3"); A(f"s_add_u32 s{sOUT}, s{sOUT}, s{sT0}")
        A(f"s_lshl_b32 s{sT0}, s3, 2"); A(f"s_add_u32 s{sOUT}, s{sOUT}, s{sT0}")
        A(f"v_lshlrev_b32 v9, 12, v{vG}"); A(f"v_lshl_add_u32 v9, v{vJ}, 5, v9")
        smask(sM, 0x0101010101010101); smask(sM + 2, 0x0002000200020002); smask(sM + 4, 0x0003000300030003)
    side = [side_stats, side_tail1, side_tail2, side_tail3, side_tr_addr]
    trs = [(t, ch, a) for t in tearly for ch in range(4) for a in range(2)]
    for i in range(0, len(trs), TRN): side.append(mk_tr(trs[i:i + TRN]))
    rc = 0
    while n < 16 or (n % 16) or side or rc != n - LAGV:
        assert rc >= n - 15, (rc, n)
        tickT()
        budget = 4
        while budget > 0 and rc <= n - 1 - LAGV:
            pv(ring_reg(rc), rc, (rc // 4 + 1) * 64); rc += 1; budget -= 1
        if budget >= 3 and side: side.pop(0)()
    stamp(5)
    A("; ---- V loop")
    A(f"v_add_u32 v{vAP}, {(n // 4 - 4) * 64}, v{vAP}")
    VT = (256 - n) // U
    lag = LAGV
    assert LAGV <= U - 1 or U == 16
    def vtick(i):
        loadV(lring(i))
        c = i - LAGV
        pv(lring(c), c, (c // 4 + 1 + 4) * 64)
    ctl_loop("L_v", LV, KT + VT, vtick, lambda: A(f"v_add_u32 v{vAP}, {16 * U}, v{vAP}"))
    A("; ---- V drain + deferred wo rows, in-workgroup combine, publish normalised o (bf16)")
    rem = list(range(-lag, 0)); late = list(wo_late); k = 0
    while rem:
        if late:
            go = wo_dma(late.pop(0))
            A(f"s_waitcnt vmcnt({DW})"); go()
            while rem and rem[0] <= k - DW - 1:
                c = rem.pop(0); pv(ring_reg(c), c, (c // 4 + 1 + 4) * 64)
            k += 1
        else:
            c = rem.pop(0)
            A(f"s_waitcnt vmcnt({k - 1 - c})")
            pv(ring_reg(c), c, (c // 4 + 1 + 4) * 64)
    for _ in range(min(BURST, len(late))): wo_dma(late.pop(0))()
    stamp(6)
    lstamp()
    A(f"ds_write_b128 v{vFW}, {vr(vACC)}")
    A(f"ds_write_b128 v{vFW}, {vr(vACC+4)} offset:1024")
    A(f"s_mov_b32 s{sSPIN}, {spin}")
    A("s_waitcnt lgkmcnt(0)")
    A("s_barrier")
    A(f"ds_read_b128 v[4:7], v{vFR}")
    A(f"ds_read_b32 v{vT}, v{vWA}")
    A(f"ds_read_b32 v{vDEC}, v92 offset:20")
    vGA = 64
    def gpoll():
        for t in range(4):
            A(f"buffer_load_dwordx4 {vr(vGA+4*t)}, v{vGO}, {sr(S_WS)}, s{sGA} offen offset:{t*64} {pfl}")
    A("s_waitcnt lgkmcnt(0)")
    for r in range(4): A(f"v_mul_f32 v{4+r}, v{4+r}, v{vT}")
    for mode in ("quad_perm:[1,0,3,2]", "quad_perm:[2,3,0,1]", "row_half_mirror"):
        for r in range(4): A(f"v_add_f32_dpp v{4+r}, v{4+r}, v{4+r} {mode} {FULL}")
    A("v_cvt_pk_bf16_f32 v4, v4, v5"); A("v_cvt_pk_bf16_f32 v5, v6, v7")
    A("v_min_u32 v4, -2, v4"); A("v_min_u32 v5, -2, v5")
    A(f"s_mov_b64 exec, s[{sM}:{sM+1}]")
    A(f"buffer_store_dwordx2 v[4:5], v{vRO}, {sr(S_WS)}, s{sREC} offen offset:{O_REC} {sfl}")
    A("s_mov_b64 exec, -1")
    stamp(7)
    while late:
        go = wo_dma(late.pop(0))
        A(f"s_waitcnt vmcnt({DW})"); go()
    A("; ---- output projection: gather 16 records, MFMA with wo fragments, publish partial sums")
    gpoll()
    if NDEF:
        A("s_waitcnt vmcnt(4)")
        A("s_barrier")
        for ti, t in enumerate(tdef):
            if ti: A("s_waitcnt lgkmcnt(7)")
            mk_tr([(t, ch, a) for ch in range(4) for a in range(2)])()
        lstamp()
    A("s_branch L_gchk")
    A.label("L_gather")
    if gsleep: A(f"s_sleep {gsleep}")
    gpoll()
    A.label("L_gchk")
    A(f"s_waitcnt vmcnt(0)")
    A(f"v_max3_u32 v4, v{vGA}, v{vGA+1}, v{vGA+2}"); A(f"v_max3_u32 v5, v{vGA+3}, v{vGA+4}, v{vGA+5}")
    for k in range(6, 14, 4):
        A(f"v_max3_u32 v4, v4, v{vGA+k}, v{vGA+k+1}"); A(f"v_max3_u32 v5, v5, v{vGA+k+2}, v{vGA+k+3}")
    A(f"v_max3_u32 v4, v4, v{vGA+14}, v{vGA+15}"); A("v_max_u32 v4, v4, v5")
    A(f"v_cmp_eq_u32 s[{sE}:{sE+1}], -1, v4")
    A(f"s_sub_u32 s{sSPIN}, s{sSPIN}, 1"); A("s_cbranch_scc1 L_gdone")
    A(f"s_and_b64 exec, exec, s[{sE}:{sE+1}]")
    A("s_cbranch_scc1 L_gather")
    A.label("L_gdone")
    A("s_mov_b64 exec, -1")
    stamp(8)
    lstamp()
    vO = 112
    for t in range(4):
        if tdef and t == tdef[0]: A("s_waitcnt lgkmcnt(0)")
        for ch in range(4):
            A(f"v_mfma_f32_16x16x32_bf16 {vr(vO+4*ch)}, {vr(vGA+4*t)}, {ar(wofrag(t,ch))}, {'0' if t == 0 else vr(vO+4*ch)}")
    A(f"s_mov_b32 s{sSPIN}, {spin}")
    A(f"v_readfirstlane_b32 s{sT0}, v{vDEC}")
    A(f"s_cmp_eq_u32 s{sT0}, 1")
    for c2 in range(2):
        o = vO + 8 * c2
        A(f"v_add_f32 v{4+c2}, v{o}, v{o+1}"); A(f"v_add_f32 v{o+2}, v{o+2}, v{o+3}")
        A(f"v_add_f32 v{o+4}, v{o+4}, v{o+5}"); A(f"v_add_f32 v{o+6}, v{o+6}, v{o+7}")
    for c2 in range(2):
        o = vO + 8 * c2
        A(f"v_add_f32_dpp v{4+c2}, v{o+2}, v{4+c2} row_ror:8 row_mask:0xf bank_mask:0x3")
        A(f"v_add_f32_dpp v{4+c2}, v{o+4}, v{o+6} row_ror:8 row_mask:0xf bank_mask:0xc")
    A("v_min_u32 v4, -2, v4"); A("v_min_u32 v5, -2, v5")
    A(f"s_cbranch_scc1 L_p2loc")
    A(f"buffer_store_dwordx2 v[4:5], v{vPO}, {sr(S_WS)}, s{sP2} offen offset:{O_P2} {sfl}")
    A("s_branch L_p2done")
    A.label("L_p2loc")
    A(f"buffer_store_dwordx2 v[4:5], v{vPO}, {sr(S_WS)}, s{sP2} offen offset:{O_P2}")
    A.label("L_p2done")
    stamp(9)
    def dump():
        A(f"s_lshl_b32 s{sT0}, s2, 2"); A(f"s_add_u32 s{sT0}, s{sT0}, s3"); A(f"s_lshl_b32 s{sT0}, s{sT0}, 8"); A(f"s_add_u32 s{sT0}, s{sT0}, {TS}")
        A(f"v_lshlrev_b32 v62, 2, v{vL}")
        A(f"buffer_store_dword v63, v62, {sr(S_WS)}, s{sT0} offen")
    A("s_cmp_ge_u32 s3, 2")
    A("s_cbranch_scc1 L_dump" if prof2 else "s_cbranch_scc1 L_end")
    for _ in range(PIPE - 1):
        A(f"buffer_load_dwordx4 v[12:15], v8, {sr(S_WS)}, s{sP3} offen {pfl}")
        A(f"s_sleep {tsleep}")
    A.label("L_s3")
    if s3sleep: A(f"s_sleep {s3sleep}")
    A(f"buffer_load_dwordx4 v[12:15], v8, {sr(S_WS)}, s{sP3} offen {pfl}")
    A(f"s_waitcnt vmcnt({PIPE - 1})")
    A("v_max3_u32 v10, v12, v13, v14"); A("v_max_u32 v10, v10, v15")
    A(f"v_cmp_eq_u32 s[{sE}:{sE+1}], -1, v10")
    A(f"s_sub_u32 s{sSPIN}, s{sSPIN}, 1"); A("s_cbranch_scc1 L_s3done")
    A(f"s_and_b64 exec, exec, s[{sE}:{sE+1}]")
    A("s_cbranch_scc1 L_s3")
    A.label("L_s3done")
    A("s_mov_b64 exec, -1")
    for r in range(4): A(f"v_add_f32_dpp v{16+r}, v{12+r}, v{12+r} row_ror:8 {FULL}")
    for rot in (4, 2, 1):
        for r in range(4): A(f"v_add_f32_dpp v{16+r}, v{16+r}, v{16+r} row_ror:{rot} {FULL}")
    A("v_cvt_pk_bf16_f32 v4, v16, v18"); A("v_cvt_pk_bf16_f32 v5, v17, v19")
    A(f"v_cndmask_b32 v4, v4, v5, s[{sM+2}:{sM+3}]")
    A(f"s_mov_b64 exec, s[{sM+4}:{sM+5}]")
    A(f"buffer_store_dword v4, v9, {sr(S_O)}, s{sOUT} offen {osc1}")
    A("s_mov_b64 exec, -1")
    stamp(10)
    if prof2:
        A.label("L_dump"); lstamp(); dump()
    A("s_endpgm")

    A.label("L_helper")
    in_helper[0] = True
    S_DBG = S_O
    hO1, hO2, hO3 = 21, 22, 23
    sBLK, sGRP, sFL = 96, 97, 66
    def poll(name, load, reduce_to_v6, cmpop, cmpval, sl, pre_sleep=False):
        A(f"s_mov_b32 s{sSPIN}, {spin}")
        A.label(name)
        if pre_sleep: A(f"s_sleep {sl}")
        load()
        reduce_to_v6()
        A(f"{cmpop} s[{sE}:{sE+1}], {cmpval}, v6")
        A(f"s_cmp_eq_u64 s[{sE}:{sE+1}], 0"); A(f"s_cbranch_scc1 {name}_ok")
        spin_tail(name, sl)
        A.label(name + "_ok")
    A(f"v_lshlrev_b32 v{hO1}, 4, v{vL}")
    A(f"s_mul_i32 s{sBLK}, s2, {BS}"); A(f"s_add_u32 s{sBLK}, s{sBLK}, {BLK}")
    A(f"s_lshr_b32 s{sGRP}, s2, 7"); A(f"s_lshl_b32 s{sGRP}, s{sGRP}, 3"); A(f"s_add_u32 s{sGRP}, s{sGRP}, s{sKS}"); A(f"s_lshl_b32 s{sGRP}, s{sGRP}, 4")
    A("s_waitcnt lgkmcnt(0)")
    srd(S_WS, 28, WS_BYTES); srd(S_DBG, 26, 256)
    stamp(0)
    A("s_cmp_ge_u32 s2, 8"); A("s_cbranch_scc1 L_noinit")
    for r in range(4): A(f"v_mov_b32 v{4+r}, 0")
    A(f"s_lshl_b32 s{sT0}, s2, 12"); A(f"s_add_u32 s{sT0}, s{sT0}, {FLG}"); A(f"s_lshl_b32 s{sT1}, s2, 2")
    for i in range(4):
        A(f"buffer_store_dwordx4 v[4:7], v{hO1}, {sr(S_WS)}, s{sT0} offen offset:{i*1024} sc1")
    if LV:
        A(f"s_add_u32 s{sT0}, s{sT0}, {CNT - FLG}")
        for i in range(4):
            A(f"buffer_store_dwordx4 v[4:7], v{hO1}, {sr(S_WS)}, s{sT0} offen offset:{i*1024} sc1")
    A("v_mov_b32 v5, 1")
    A("s_waitcnt vmcnt(0)")
    A("s_mov_b64 exec, 1")
    A(f"buffer_store_dword v5, v4, {sr(S_DBG)}, s{sT1} offen sc1")
    A("s_mov_b64 exec, -1")
    A.label("L_noinit")
    for r in range(4): A(f"v_mov_b32 v{4+r}, -1")
    if "i" not in skip: A(f"buffer_store_dwordx4 v[4:7], v{hO1}, {sr(S_WS)}, s{sBLK} offen sc1")
    if "i" not in skip: A(f"buffer_store_dwordx4 v[4:7], v{hO1}, {sr(S_WS)}, s{sBLK} offen offset:1024 sc1")
    if preBP:
        A(f"s_lshl_b32 s{sT0}, s2, 11"); A(f"s_add_u32 s{sT0}, s{sT0}, {BP}")
        for i in range(2): A(f"buffer_store_dwordx4 v[4:7], v{hO1}, {sr(S_WS)}, s{sT0} offen offset:{i*1024} sc1")
    smask(sE, (1 << 56) - 1)
    A(f"s_mov_b64 exec, s[{sE}:{sE+1}]")
    if "i" not in skip: A(f"buffer_store_dwordx4 v[4:7], v{hO1}, {sr(S_WS)}, s{sBLK} offen offset:2048 sc1")
    A("s_mov_b64 exec, -1")
    A(f"v_mov_b32 v{hO2}, {L_ST}")
    A(f"ds_write_b128 v{hO2}, v[4:7]"); A(f"ds_write_b128 v{hO2}, v[4:7] offset:16")
    if LV:
        for r in range(4): A(f"v_mov_b32 v{30+r}, 0")
        A(f"ds_write_b128 v{hO2}, v[30:33] offset:{L_PRG - L_ST}"); A(f"v_mov_b32 v34, {L0}"); A(f"ds_write_b32 v{hO2}, v34 offset:{L_PRG - L_ST + 16}")
    build_sel()
    A(f"v_lshrrev_b32 v4, 3, v{vJ}"); A(f"v_lshlrev_b32 v{hO2}, 9, v4")
    A(f"v_lshl_add_u32 v{hO2}, v{vG}, 7, v{hO2}")
    A(f"v_and_b32 v7, 7, v{vJ}"); A(f"v_lshl_add_u32 v{hO2}, v7, 4, v{hO2}")
    A(f"v_add_u32 v{hO3}, {L_SC}, v{hO1}")
    A(f"s_lshl_b32 s{sFL}, s2, 7"); A(f"s_add_u32 s{sFL}, s{sFL}, {FLG}")
    hQW, hQG, hFP, hD8, hQG2, hQW2 = 24, 25, 20, 26, 27, 28
    A(f"v_lshlrev_b32 v{hFP}, 7, v7")
    A(f"v_lshlrev_b32 v{hD8}, 2, v7")
    A(f"v_lshlrev_b32 v{hQW2}, 6, v4"); A(f"v_lshl_add_u32 v{hQW2}, v7, 1, v{hQW2}"); A(f"v_add_u32 v{hQW2}, {L_QBL}, v{hQW2}")
    A(f"v_lshlrev_b32 v{hQG2}, 11, v{vG}"); A(f"v_lshl_add_u32 v{hQG2}, v{vJ}, 4, v{hQG2}")
    A(f"v_lshrrev_b32 v4, 5, v{vL}"); A(f"v_and_b32 v5, 31, v{vL}")
    A(f"v_lshlrev_b32 v{hQG}, 11, v4"); A(f"v_lshl_add_u32 v{hQG}, v5, 4, v{hQG}")
    A("v_lshrrev_b32 v5, 3, v5"); A(f"v_lshlrev_b32 v{hQW}, 6, v5")
    A(f"v_lshl_add_u32 v{hQW}, v7, 1, v{hQW}"); A(f"v_add_u32 v{hQW}, {L_QL}, v{hQW}")
    sXC = 69
    A(f"s_getreg_b32 s{sXC}, hwreg(HW_REG_XCC_ID, 0, 4)"); A(f"s_add_u32 s{sXC}, s{sXC}, 16")
    A(f"v_mov_b32 v4, s{sXC}"); A("v_mov_b32 v5, 0")
    A(f"s_lshl_b32 s{sT0}, s2, 11")
    A(f"s_lshl_b32 s{sT2}, s{sH}, 10"); A(f"s_add_u32 s{sT2}, s{sT2}, {FLG}")
    A(f"s_lshl_b32 s{sT3}, s{sH}, 14"); A(f"s_lshl_b32 s{sCNT}, s{sB}, 9"); A(f"s_add_u32 s{sT3}, s{sT3}, s{sCNT}")
    if MX:
        A(f"s_and_b32 s{sCNT}, s{sH}, 1"); A(f"s_lshl_b32 s{sCNT}, s{sCNT}, 13"); A(f"s_add_u32 s{sT3}, s{sT3}, s{sCNT}")
    A(f"s_lshl_b32 s{sCNT}, s{sS}, 8"); A(f"s_add_u32 s{sCNT}, s{sCNT}, s{sT3}"); A(f"s_xor_b32 s{sCNT}, s{sCNT}, 8192")
    A("s_waitcnt lgkmcnt(0)")
    A("s_barrier")
    stamp(1)
    for i in range(2):
        for v in range(4): A(f"ds_read_b128 {vr(64+16*i+4*v)}, v{hO3} offset:{v*4096+i*1024}")
    for i in range(2):
        b = 64 + 16 * i
        A(f"s_waitcnt lgkmcnt({4 - 4 * i})")
        for r in range(4):
            A(f"v_add_f32 v{b+r}, v{b+r}, v{b+4+r}"); A(f"v_add_f32 v{b+8+r}, v{b+8+r}, v{b+12+r}")
        for r in range(4): A(f"v_add_f32 v{b+r}, v{b+r}, v{b+8+r}")
        A(f"buffer_store_dwordx4 {vr(b)}, v{hO2}, {sr(S_WS)}, s{sT0} offen offset:{i*1024} sc1")
    poll("L_pi", lambda: (A(f"buffer_load_dword v6, v{hD8}, {sr(S_DBG)}, 0 offen sc1"), A("s_waitcnt vmcnt(0)")), lambda: None, "v_cmp_ne_u32", 1, qsleep)
    A("s_mov_b64 exec, 1")
    A(f"buffer_store_dword v4, v5, {sr(S_WS)}, s{sFL} offen sc1")
    A("s_mov_b64 exec, -1")
    stamp(2)
    for _ in range(qpre): A("s_sleep 32")
    poll("L_pq", lambda: (A(f"buffer_load_dword v6, v{hFP}, {sr(S_WS)}, s{sT2} offen sc1"), A("s_waitcnt vmcnt(0)")), lambda: None, "v_cmp_eq_u32", 0, qsleep)
    stamp(3)
    A(f"buffer_load_dwordx4 {vr(64)}, v{hQG}, {sr(S_WS)}, s{sT3} offen sc1")
    A(f"s_add_u32 s{sT3}, s{sT3}, 4096")
    A(f"buffer_load_dwordx4 {vr(68)}, v{hQG}, {sr(S_WS)}, s{sT3} offen sc1")
    A(f"buffer_load_dwordx4 {vr(80)}, v{hQG2}, {sr(S_WS)}, s{sCNT} offen sc1")
    A("s_waitcnt vmcnt(1)")
    for r in range(4): A(f"v_add_f32 v{64+r}, v{64+r}, v{68+r}")
    for r in range(4): A(f"v_mov_b32 v{68+r}, v{64+r}")
    for r in range(4): A(f"v_permlane32_swap_b32 v{68+r}, v{64+r}")
    for r in range(4): A(f"v_add_f32 v{64+r}, v{64+r}, v{68+r}")
    def write_b16(addr, b, off):
        A(f"v_cvt_pk_bf16_f32 v{b}, v{b}, v{b+1}"); A(f"v_cvt_pk_bf16_f32 v{b+2}, v{b+2}, v{b+3}")
        A(f"ds_write_b16 v{addr}, v{b} offset:{off}"); A(f"ds_write_b16_d16_hi v{addr}, v{b} offset:{off+16}")
        A(f"ds_write_b16 v{addr}, v{b+2} offset:{off+32}"); A(f"ds_write_b16_d16_hi v{addr}, v{b+2} offset:{off+48}")
    write_b16(hQW, 64, 0)
    A("s_waitcnt vmcnt(0)")
    for r in range(4): allreduce(80 + r, 84 + r, "v_add_f32", [])
    write_b16(hQW2, 80, 0)
    A(f"v_and_b32 v4, 0x70, v{hO1}"); A(f"v_add_u32 v5, {L_QBL}, v4")
    A("ds_read_b128 v[80:83], v5")
    A("s_waitcnt lgkmcnt(0)")
    for r in range(4): A(f"v_min_u32 v{80+r}, -2, v{80+r}")
    A("s_mov_b64 exec, 0xff")
    A(f"buffer_store_dwordx4 v[80:83], v4, {sr(S_WS)}, s{sBLK} offen offset:{O_QB2} sc1")
    A("s_mov_b64 exec, -1")
    hR = 23
    A(f"v_add_u32 v{hR}, {L_R2}, v{hO1}")
    stamp(4)
    A("s_barrier")
    def lds_frags(off):
        for k in range(32):
            A(f"ds_read_b128 {ar(4*k)}, v{hR} offset:{off + k*1024}")
            if k % 8 == 7: A("s_waitcnt lgkmcnt(0)")
    A("; ---- branch B attention on this workgroup 128 keys x 8 heads")
    lds_frags(L_R3 - L_R2)
    rec_producer(5, 6, 7)
    A(f"v_add_u32 v4, s{sGRP}, v{vJ}")
    smask(sE, 0x00000000FFFF0000)
    A(f"v_cndmask_b32 v4, v4, v5, s[{sE}:{sE+1}]")
    sLG = 64
    A(f"s_and_b32 s{sLG}, s2, 0x87"); A(f"v_lshl_add_u32 v5, v{vJ}, 3, s{sLG}")
    smask(sE, 0x0000FFFF00000000)
    A(f"v_cndmask_b32 v4, v4, v5, s[{sE}:{sE+1}]")
    A(f"s_xor_b32 s{sT0}, s2, 1"); A(f"v_mov_b32 v5, s{sT0}")
    smask(sE, 0xFFFF000000000000)
    A(f"v_cndmask_b32 v4, v4, v5, s[{sE}:{sE+1}]"); A("v_lshlrev_b32 v4, 7, v4")
    A(f"s_mov_b32 s{sT1}, {FLG}")
    poll("L_pa", lambda: (A(f"buffer_load_dword v6, v4, {sr(S_WS)}, s{sT1} offen sc1"), A("s_waitcnt vmcnt(0)")), lambda: None, "v_cmp_eq_u32", 0, hsleep)
    A(f"v_cmp_ne_u32 s[{sE}:{sE+1}], s{sXC}, v6")
    A(f"s_and_b32 s{sT0}, s{sE+1}, 0xffff")
    A(f"s_cselect_b32 s{sT0}, 0, {LOC}")
    A(f"s_cselect_b32 s{sXC}, 0, {LOCB}")
    A(f"v_mov_b32 v4, {L_PRG}"); A(f"v_mov_b32 v5, s{sT0}"); A("ds_write_b32 v4, v5 offset:20")
    stamp(5)
    hETA = 28
    sGB_ = 98
    A(f"s_mul_i32 s{sGB_}, s{sGRP}, {BS}"); A(f"s_add_u32 s{sGB_}, s{sGB_}, {BLK}")
    A(f"v_bfe_u32 v4, v{vJ}, 1, 2"); A(f"v_lshrrev_b32 v5, 3, v{vJ}"); A(f"v_lshl_add_u32 v{hETA}, v4, 1, v5")
    A(f"v_mul_u32_u24 v4, {2 * BS}, v{hETA}"); A(f"v_lshl_add_u32 v4, v{vG}, 5, v4")
    A(f"v_and_b32 v5, 1, v{vJ}"); A("v_lshl_add_u32 v4, v5, 4, v4")
    hQ = 30
    def ldq():
        A(f"buffer_load_dwordx4 {vr(hQ)}, v4, {sr(S_WS)}, s{sGB_} offen offset:{O_QB2} sc1")
        A(f"buffer_load_dwordx4 {vr(hQ+4)}, v4, {sr(S_WS)}, s{sGB_} offen offset:{O_QB2 + BS} sc1")
        A("s_waitcnt vmcnt(0)")
    def redq():
        A(f"v_max3_u32 v6, v{hQ}, v{hQ+1}, v{hQ+2}"); A(f"v_max3_u32 v6, v6, v{hQ+3}, v{hQ+4}")
        A(f"v_max3_u32 v6, v6, v{hQ+5}, v{hQ+6}"); A(f"v_max_u32 v6, v6, v{hQ+7}")
    poll("L_q2", ldq, redq, "v_cmp_eq_u32", -1, hsleep)
    stamp(6)
    hS = 64
    hDD = 38
    def postB(g8):
        d = hDD + 4 * (g8 & 1)
        for r2 in range(2):
            A(f"v_mov_b32_dpp v{hS+2*g8+r2}, v{d+2*r2} quad_perm:[0,0,2,2] {FULL}")
            A(f"v_add_f32_dpp v{hS+2*g8+r2}, v{d+2*r2+1}, v{hS+2*g8+r2} quad_perm:[1,1,3,3] {FULL}")
    for g8 in range(16):
        d = hDD + 4 * (g8 & 1)
        A(f"v_mfma_f32_16x16x32_bf16 {vr(d)}, {ar(8*g8)}, {vr(hQ)}, 0")
        A(f"v_mfma_f32_16x16x32_bf16 {vr(d)}, {ar(8*g8+4)}, {vr(hQ+4)}, {vr(d)}")
        if g8 > 0: postB(g8 - 1)
    postB(15)
    lds_frags(0)
    hM, hL, hNM = 46, 47, 48
    A(f"v_max_f32 v{hM}, v{hS}, v{hS+1}")
    for k in range(2, 32, 2): A(f"v_max3_f32 v{hM}, v{hM}, v{hS+k}, v{hS+k+1}")
    allreduce(hM, 4, "v_max_f32", [])
    A(f"v_mul_f32 v{hM}, s{sC}, v{hM}"); A(f"v_sub_f32 v{hNM}, 0, v{hM}")
    for k in range(32): A(f"v_fma_f32 v{hS+k}, v{hS+k}, s{sC}, v{hNM}")
    for k in range(32): A(f"v_exp_f32 v{hS+k}, v{hS+k}")
    A(f"v_add_f32 v{hL}, v{hS}, v{hS+1}")
    for k in range(2, 32): A(f"v_add_f32 v{hL}, v{hL}, v{hS+k}")
    allreduce(hL, 4, "v_add_f32", [])
    for k in range(32): A(f"v_cvt_pk_bf16_f32 v{hS+k}, v{hS+k}, v{hS+k}")
    hOB = 96
    hBB = 50
    cnt = 0
    for k in range(32):
        for q in range(4):
            b = hBB + 4 * (cnt & 1); cnt += 1
            for rr in range(4):
                if q == rr: A(f"v_and_b32 v{b+rr}, v{hS+k}, v{vMSK+rr}")
                elif q > rr: A(f"v_and_b32_dpp v{b+rr}, v{hS+k}, v{vMSK+rr} row_shl:{2*(q-rr)} {FULL} bound_ctrl:0")
                else: A(f"v_and_b32_dpp v{b+rr}, v{hS+k}, v{vMSK+rr} row_shr:{2*(rr-q)} {FULL} bound_ctrl:0")
            A(f"v_mfma_f32_16x16x32_bf16 {vr(hOB+4*q)}, {ar(4*k)}, {vr(b)}, {'0' if k == 0 else vr(hOB+4*q)}")
    A(f"v_rcp_f32 v7, v{hL}"); A(f"v_log_f32 v{hL}, v{hL}"); A(f"v_add_f32 v{hM}, v{hM}, v{hL}"); A(f"v_min_u32 v{hM}, -2, v{hM}")
    A(f"v_lshrrev_b32 v4, 1, v{hO2}")
    A(f"s_lshl_b32 s{sT0}, s2, 11"); A(f"s_add_u32 s{sT0}, s{sT0}, {BP}")
    for q in range(4):
        o = hOB + 4 * q
        A(f"v_mov_b32_dpp v5, v7 row_newbcast:{2*q} row_mask:0xf bank_mask:0x3")
        A(f"v_mov_b32_dpp v5, v7 row_newbcast:{8+2*q} row_mask:0xf bank_mask:0xc")
        for r in range(4): A(f"v_mul_f32 v{o+r}, v{o+r}, v5")
        A(f"v_cvt_pk_bf16_f32 v{o}, v{o}, v{o+1}"); A(f"v_cvt_pk_bf16_f32 v{o+1}, v{o+2}, v{o+3}")
    A(f"v_lshlrev_b32 v5, 2, v{hETA}")
    A(f"s_cmp_eq_u32 s{sXC}, 1"); A("s_cbranch_scc1 L_bploc")
    for fl in ("sc1", ""):
        for q in range(4):
            A(f"buffer_store_dwordx2 {vr(hOB+4*q,2)}, v4, {sr(S_WS)}, s{sT0} offen offset:{q*512} {fl}")
        A("s_waitcnt vmcnt(0)")
        A("s_mov_b64 exec, 0x5555")
        A(f"buffer_store_dword v{hM}, v5, {sr(S_WS)}, s{sBLK} offen offset:{O_BST} {fl}")
        A("s_mov_b64 exec, -1")
        if fl: A("s_branch L_bpdone"); A.label("L_bploc")
    A.label("L_bpdone")
    stamp(7)
    A(f"v_mul_u32_u24 v4, {8 * BS}, v{vJ}")
    A(f"s_and_b32 s{sT2}, s{sH1}, 15")
    A(f"s_lshr_b32 s{sT1}, s{sT2}, 1"); A(f"s_lshl_b32 s{sT1}, s{sT1}, 2")
    A(f"s_mul_i32 s{sT0}, s{sLG}, {BS}"); A(f"s_add_u32 s{sT0}, s{sT0}, s{sT1}"); A(f"s_add_u32 s{sT0}, s{sT0}, {BLK}")
    for _ in range(l2pre): A("s_sleep 32")
    if "s" not in skip: poll("L_l2", lambda: (A(f"buffer_load_dword v6, v4, {sr(S_WS)}, s{sT0} offen offset:{O_BST} sc1"), A("s_waitcnt vmcnt(0)")), lambda: None, "v_cmp_eq_u32", -1, l2sleep, pre_sleep=True)
    A(f"v_lshlrev_b32 v5, 14, v{vJ}"); A(f"v_lshl_add_u32 v5, v{vG}, 4, v5")
    A(f"s_lshl_b32 s{sT0}, s{sLG}, 11"); A(f"s_lshl_b32 s{sT1}, s{sT2}, 7")
    A(f"s_add_u32 s{sT0}, s{sT0}, s{sT1}"); A(f"s_add_u32 s{sT0}, s{sT0}, {BP}")
    for i in range(2):
        if "l" not in skip: A(f"buffer_load_dwordx4 {vr(80+4*i)}, v5, {sr(S_WS)}, s{sT0} offen offset:{i*64} sc1")
    A("v_mov_b32 v7, v6")
    for r in (8, 4, 2, 1): A(f"v_max_f32_dpp v7, v7, v7 row_ror:{r} {FULL}")
    A("v_sub_f32 v6, v6, v7"); A("v_exp_f32 v6, v6"); A("v_mov_b32 v7, v6")
    for r in (8, 4, 2, 1): A(f"v_add_f32_dpp v7, v7, v7 row_ror:{r} {FULL}")
    A("v_rcp_f32 v7, v7"); A("v_mul_f32 v6, v6, v7")
    A("s_waitcnt vmcnt(0)")
    for r in range(8):
        A(f"v_lshlrev_b32 v{64+2*r}, 16, v{80+r}"); A(f"v_and_b32 v{65+2*r}, 0xffff0000, v{80+r}")
    for r in range(16): A(f"v_mul_f32 v{64+r}, v{64+r}, v6")
    for rot in (8, 4, 2, 1):
        for r in range(16): A(f"v_add_f32_dpp v{64+r}, v{64+r}, v{64+r} row_ror:{rot} {FULL}")
    smask(sE, 0x0001000100010001)
    for r in range(8):
        A(f"v_cvt_pk_bf16_f32 v{80+r}, v{64+2*r}, v{65+2*r}")
        A(f"v_min_u32 v{80+r}, -2, v{80+r}"); A(f"v_cndmask_b32 v{80+r}, 0, v{80+r}, s[{sE}:{sE+1}]")
    A(f"v_xor_b32 v4, s{sT2}, v{vJ}"); A(f"v_and_b32 v4, 1, v4"); A("v_lshlrev_b32 v4, 7, v4"); A(f"v_lshl_add_u32 v4, v{vG}, 4, v4")
    smask(sE, 0x0003000300030003)
    A(f"s_mov_b64 exec, s[{sE}:{sE+1}]")
    for i in range(2):
        if "r" not in skip: A(f"buffer_store_dwordx4 {vr(80+4*i)}, v4, {sr(S_WS)}, s{sBLK} offen offset:{O_REC + 256 + i*64} sc1")
    A("s_mov_b64 exec, -1")
    stamp(8)
    hm, hl = 58, 59
    hMW, hLW, hZ = 60, 61, 20
    A(f"v_mov_b32 v{hZ}, 0")
    def astats():
        A(f"v_and_b32 v4, 3, v{vL}"); A("v_lshlrev_b32 v5, 3, v4"); A(f"v_add_u32 v5, {L_ST}, v5")
        poll("L_st", lambda: (A(f"ds_read_b64 {vr(hm,2)}, v5"), A("s_waitcnt lgkmcnt(0)")), lambda: A(f"v_max_u32 v6, v{hm}, v{hl}"), "v_cmp_eq_u32", -1, hsleep)
        A(f"v_mov_b32 v{hMW}, v{hm}")
        for mode in ("quad_perm:[1,0,3,2]", "quad_perm:[2,3,0,1]"): A(f"v_max_f32_dpp v{hMW}, v{hMW}, v{hMW} {mode} {FULL}")
        A(f"v_sub_f32 v6, v{hm}, v{hMW}"); A("v_exp_f32 v6, v6"); A(f"v_mul_f32 v{hLW}, v6, v{hl}")
        for mode in ("quad_perm:[1,0,3,2]", "quad_perm:[2,3,0,1]"): A(f"v_add_f32_dpp v{hLW}, v{hLW}, v{hLW} {mode} {FULL}")
        A(f"v_min_u32 v6, -2, v{hMW}"); A(f"v_min_u32 v7, -2, v{hLW}")
        A("s_mov_b64 exec, 1")
        A(f"buffer_store_dwordx2 v[6:7], v{hZ}, {sr(S_WS)}, s{sBLK} offen offset:{O_AST} sc1")
        A("s_mov_b64 exec, -1")

    def weights():
        A(f"s_xor_b32 s{sT0}, s2, 1"); A(f"s_mul_i32 s{sT0}, s{sT0}, {BS}"); A(f"s_add_u32 s{sT0}, s{sT0}, {BLK}")
        poll("L_ps", lambda: (A(f"buffer_load_dwordx2 v[36:37], v{hZ}, {sr(S_WS)}, s{sT0} offen offset:{O_AST} sc1"), A("s_waitcnt vmcnt(0)")), lambda: A("v_max_u32 v6, v36, v37"), "v_cmp_eq_u32", -1, psleep if not LV else 16, pre_sleep=not LV)
        A(f"v_max_f32 v4, v{hMW}, v36")
        A(f"v_sub_f32 v5, v{hMW}, v4"); A("v_sub_f32 v6, v36, v4"); A(f"v_sub_f32 v7, v{hm}, v4")
        A("v_exp_f32 v5, v5"); A("v_exp_f32 v6, v6"); A("v_exp_f32 v7, v7")
        A(f"v_mul_f32 v5, v5, v{hLW}"); A("v_fmac_f32 v5, v6, v37")
        A("v_rcp_f32 v5, v5"); A("v_mul_f32 v7, v7, v5")
        A(f"v_and_b32 v4, 3, v{vL}"); A("v_lshlrev_b32 v4, 2, v4"); A(f"v_add_u32 v4, {L_WGT}, v4")
        A("ds_write_b32 v4, v7")

    if True:
        sCA, sMI, sLN, sOW = 99, 100, 101, 65
        A(f"s_mul_i32 s{sLN}, s{sKS}, 3840"); A(f"s_add_u32 s{sLN}, s{sLN}, {CNT}")
        A(f"s_lshl_b32 s{sOW}, s{sH1}, 1"); A(f"s_add_u32 s{sOW}, s{sOW}, s{sLN}")
        A(f"s_mov_b32 s{sCA}, {CNT + 128}")
        A(f"v_mov_b32 v30, {L_PRG}"); A(f"v_lshlrev_b32 v31, 1, v{vL}")
        if CST >= 2: astats()
        A(f"s_mov_b32 s{sMI}, {M0 if KC else KT + CST}")
        A.label("L_cloop")
        A(f"s_lshl_b32 s{sT2}, s{sMI}, 2")
        A(f"s_mov_b32 s{sSPIN}, {spin}")
        A.label("L_cw")
        A("ds_read_b128 v[32:35], v30")
        A("s_waitcnt lgkmcnt(0)")
        A("v_add3_u32 v32, v32, v33, v34"); A("v_add3_u32 v32, v32, v35, 1")
        A(f"v_readfirstlane_b32 s{sT0}, v32")
        A(f"s_cmp_ge_u32 s{sT0}, s{sT2}"); A("s_cbranch_scc1 L_cw_ok")
        spin_tail("L_cw", csleep)
        A.label("L_cw_ok")
        A(f"s_add_u32 s{sT3}, s{sMI}, 1"); A(f"v_mov_b32 v32, s{sT3}")
        A(f"buffer_load_ushort v34, v31, {sr(S_WS)}, s{sLN} offen {lfl}")
        A("s_mov_b64 exec, 1")
        A(f"buffer_store_short v32, v{hZ}, {sr(S_WS)}, s{sOW} offen")
        A("s_mov_b64 exec, -1")
        A("s_waitcnt vmcnt(0)")
        A(f"v_cmp_lt_u32 s[{sE}:{sE+1}], s{sMI}, v34"); A(f"s_bcnt1_i32_b32 s{sT0}, s{sE}")
        A(f"s_mov_b32 s{sT1}, 0")
        for k in range(1, NCMP):
            A(f"v_cmp_lt_u32 s[{sE}:{sE+1}], s{sT3}, v34"); A(f"s_bcnt1_i32_b32 s{sT2}, s{sE}")
            A(f"s_add_u32 s{sT1}, s{sT1}, s{sT2}"); A(f"s_add_u32 s{sT3}, s{sT3}, 1")
        if XB:
            A(f"v_readlane_b32 s{sT2}, v34, 32")
            A(f"s_min_u32 s{sT2}, s{sT2}, 7"); A(f"s_mul_i32 s{sT2}, s{sT2}, {XB}")
            A(f"s_add_u32 s{sT1}, s{sT1}, s{sT2}")
        A(f"s_add_u32 s{sT1}, s{sT0}, s{sT1}")
        A(f"s_mov_b32 s{sT2}, 0")
        for li, t in enumerate(TAU):
            A(f"s_cmp_ge_u32 s{sT1}, {t}"); A(f"s_cselect_b32 s{sT2}, {li+1}, s{sT2}")
        A(f"v_mov_b32 v33, s{sT2}"); A("ds_write_b32 v30, v33 offset:16")
        if XB:
            A(f"s_and_b32 s{sT2}, s{sMI}, {XP - 1}"); A("s_cbranch_scc1 L_nrep")
            A(f"s_add_u32 s{sCA}, s{sCA}, 1280")
            A(f"s_cmp_lg_u32 s{sT0}, 15"); A("s_cbranch_scc1 L_nrep")
            A("v_mov_b32 v32, 1")
            A("s_mov_b64 exec, 1")
            A(f"buffer_atomic_add v32, v{hZ}, {sr(S_WS)}, s{sCA} offen sc0 sc1")
            A("s_waitcnt vmcnt(0)")
            A(f"buffer_store_short v32, v{hZ}, {sr(S_WS)}, s{sLN} offen offset:64")
            A("s_mov_b64 exec, -1")
            A.label("L_nrep")
            assert 128 + 1280 * ((KT + VT - (M0 if KC else KT)) // XP + 1) < 32768
        A(f"s_add_u32 s{sMI}, s{sMI}, 1")
        if CST < 2:
            A(f"s_cmp_lg_u32 s{sMI}, {KT + 2}"); A("s_cbranch_scc1 L_na")
            astats()
            A.label("L_na")
        A(f"s_cmp_lg_u32 s{sMI}, {KT + max(VT // 2, CST + 1)}"); A("s_cbranch_scc1 L_nw")
        weights()
        A.label("L_nw")
        A(f"s_cmp_le_u32 s{sMI}, {KT + VT - LASTD}"); A("s_cbranch_scc1 L_cloop")
    stamp(10); stamp(11)
    A("s_waitcnt vmcnt(0) lgkmcnt(0)")
    A.label("L_end")
    A("s_endpgm")

    nn = A.fix_hazards()
    out = HEADER
    out += f"; @launch grid=(256,1,1) block=(320,1,1) lds={LDS_BYTES}\n"
    out += '.amdgcn_target "amdgcn-amd-amdhsa--gfx950"\n.text\n'
    out += f".globl {NAME}_kernel\n.p2align 8\n.type {NAME}_kernel,@function\n{NAME}_kernel:\n"
    out += A.text()
    out += '.section .rodata,"a"\n.p2align 6\n'
    out += f".amdhsa_kernel {NAME}_kernel\n"
    out += "  .amdhsa_next_free_vgpr 256\n  .amdhsa_next_free_sgpr 102\n  .amdhsa_accum_offset 128\n"
    out += "  .amdhsa_group_segment_fixed_size 0\n  .amdhsa_kernarg_size 104\n  .amdhsa_user_sgpr_count 2\n"
    out += "  .amdhsa_user_sgpr_kernarg_segment_ptr 1\n  .amdhsa_system_sgpr_workgroup_id_x 1\n"
    out += "  .amdhsa_float_denorm_mode_32 3\n"
    out += ".end_amdhsa_kernel\n"
    return out

if __name__ == "__main__":
    import json
    kw = json.loads(sys.argv[2]) if len(sys.argv) > 2 else {}
    open(sys.argv[1], "w").write(gen(**kw))
```

```python
import sys, struct, math
sys.path.insert(0, "dev")
from asmlib import Asm
NAME = "concat_heads__mha_block_cached__sliding_block_cached__decode"

HEADER = """; Kernarg layout for this problem (104 bytes, ptrs only, base s[0:1]):
;   offset  32: d_in[4] A_wo  shape=(4096, 1024) dtype=bfloat16
;   offset  72: d_in[9] B_wo  shape=(4096, 1024) dtype=bfloat16
;   offset  88: d_debug   256 bytes (words 0..7: "flag lines cleared")
;   offset  96: d_ws      workspace
; One launch, 256 workgroups (one per CU) x 5 waves.
;     load).  Order: wq slice -> B K/V tile + half of the wo tile (LDS-DMA) -> K pass (scores to LDS, true row max)
;     -> exp pass -> V pass -> rest of the wo tile -> output projection (two hand-offs through d_ws).
;     exchange between the two workgroups of one (batch, head), and the choice of the window depth D.
;  Hand-offs: flag lines are cleared by workgroups 0-7 (signalled in d_debug), every other slot is set to
;     0xFFFFFFFF by its owner before that owner raises its flag; data words are clamped so they never equal it.
;  Window depth: workgroups that are behind their neighbours use a deeper window (speed only).
"""

QP   = 0x000000
BP   = 0x100000
FLG  = 0x180000
CNT  = 0x188000
BLK  = 0x200000
BS   = 2944
O_QB2, O_BST, O_AST, O_REC, O_P2 = 0, 128, 256, 384, 896
TS   = 0x400000
WS_BYTES = 0x800000
L_WO  = 0
L_R2  = 0x10000
L_R3  = 0x18000
L_SC  = 0x20000
L_EX  = 0x24000
L_QL  = 0x26000
L_QBL = 0x26100
L_ST  = 0x26200
L_WGT = 0x26220
L_PRG = 0x26240
LDS_BYTES = 0x26300
FULL = "row_mask:0xf bank_mask:0xf"
SCALE = (128 ** -0.5) * math.log2(math.e)
def f32bits(x): return struct.unpack("<I", struct.pack("<f", x))[0]

def gen(ILV=1, GP1=0, TRIG=0, HALF=8, PREW=1, LATEB=0, XPOS=8, xfl="", MX=1, CST=0, L0=0, DS=4, DT=4, LOCB=1, LOC=1, U=16, KC=1, M0=5, XP=1, NCMP=2, LASTD=2, lfl="sc1", XB=3, GX=0, SAMEL=0, afl="sc0 sc1", qpre=0, l2pre=0, BROT=3, NDEF=8, DW=6, BURST=4, TRN=4, preBP=False, pfl="sc1", sfl="sc1", gsleep=1, s3sleep=1, PIPE=1, ORD="seq", TLB=0, prof3=False, CS=384, MS=(3, 7, 10, 12), TAU=(28, 40), SMPMASK=15, SMPVAL=5, LV=(4, 5, 6), THR=(0.6, 0.85), NG=32, PER=2, csleep=4, LASTM=12, bfl="sc1", qfl="sc1", l2sleep=16, prof2=False, G=1, osc1="", DP0=8, DP=(6,), DK=(4,), DV=(4,), DE=None, NE=0, X=12, prof=False, spin=1 << 16, hsleep=16, psleep=100, tsleep=1, qsleep=4, skip="", gfl="sc1", diag=None):
    tup = lambda x: (x,) if isinstance(x, int) else tuple(x)
    DP, DK, DV = tup(DP), tup(DK), tup(DV)
    DE = DV if DE is None else tup(DE)
    A = Asm()
    in_helper = [False]
    def srd(base, ptr, size):
        A(f"s_mov_b32 s{base}, s{ptr}"); A(f"s_mov_b32 s{base+1}, s{ptr+1}")
        A(f"s_mov_b32 s{base+2}, {hex(size)}"); A(f"s_mov_b32 s{base+3}, 0x00020000")
    def smask(r, val):
        A(f"s_mov_b32 s{r}, {hex(val & 0xffffffff)}"); A(f"s_mov_b32 s{r+1}, {hex(val >> 32)}")
    S_K, S_V, S_X, S_W, S_WS, S_O, S_WO = 32, 36, 40, 44, 48, 52, 56
    sr = lambda b: f"s[{b}:{b+3}]"
    vr = lambda b, n=4: f"v[{b}:{b+n-1}]"
    ar = lambda b, n=4: f"a[{b}:{b+n-1}]"
    sT0, sT1, sT2, sT3, sCNT, sOFFK, sOFFV, sC, sSPIN, sLD = 60, 61, 62, 63, 64, 65, 66, 67, 68, 69
    sM = 70
    sE = 86
    sTS = 88
    sTI = 90
    sH1, sKS, sB, sH, sS = 91, 92, 93, 94, 95
    sKB = 30
    vL, vG, vJ = 1, 2, 3
    def stamp(idx):
        if diag and not in_helper[0]:
            wg, sidx, base, mul = diag
            if idx == sidx:
                A("s_memrealtime s[4:5]"); A("s_waitcnt lgkmcnt(0)"); A("s_sub_u32 s90, s4, s88"); A(f"s_mul_i32 s90, s90, {mul}")
            if idx == 10:
                if sidx < 0: A("s_mov_b32 s90, 0")
                if wg >= 0:
                    A(f"s_cmp_lg_u32 s2, {wg}"); A("s_cbranch_scc1 L_end")
                A(f"s_add_u32 s90, s90, {base*100}")
                A.label("L_diag")
                A("s_memrealtime s[4:5]"); A("s_waitcnt lgkmcnt(0)"); A("s_sub_u32 s4, s4, s88")
                A("s_cmp_lt_u32 s4, s90"); A("s_cbranch_scc1 L_diag")
        if not prof: return
        A(f"s_memrealtime s[{sTS}:{sTS+1}]")
        A("s_waitcnt lgkmcnt(0)")
        A(f"v_mov_b32 v63, s{sTS}")
        A(f"s_mov_b64 exec, 1")
        A(f"buffer_store_dword v63, v62, {sr(S_WS)}, s{sTI} offen offset:{idx*4}")
        A(f"s_mov_b64 exec, -1")
    def lstamp():
        if not prof2: return
        A(f"s_memrealtime s[{sTS}:{sTS+1}]")
        A("s_waitcnt lgkmcnt(0)")
        A(f"s_mov_b32 m0, s31")
        A(f"v_writelane_b32 v63, s{sTS}, m0")
        A("s_add_u32 s31, s31, 1")
    def spin_tail(lab, sl):
        A(f"s_sleep {sl}")
        A(f"s_sub_u32 s{sSPIN}, s{sSPIN}, 1"); A(f"s_cmp_lg_u32 s{sSPIN}, 0"); A(f"s_cbranch_scc1 {lab}")
    def allreduce(v, tmp, op, rors):
        for r in rors: A(f"{op}_dpp v{v}, v{v}, v{v} row_ror:{r} {FULL}")
        A(f"v_mov_b32 v{tmp}, v{v}"); A(f"v_permlane16_swap_b32 v{tmp}, v{v}"); A(f"{op} v{v}, v{v}, v{tmp}")
        A(f"v_mov_b32 v{tmp}, v{v}"); A(f"v_permlane32_swap_b32 v{tmp}, v{v}"); A(f"{op} v{v}, v{v}, v{tmp}")

    A(f"s_cmp_ge_u32 s2, 256")
    A("s_cbranch_scc1 L_end")
    A("s_load_dwordx16 s[4:19], s[0:1], 0")
    A("s_load_dwordx8 s[20:27], s[0:1], 64")
    A("s_load_dwordx2 s[28:29], s[0:1], 96")
    A(f"v_lshrrev_b32 v4, 6, v0")
    A(f"v_and_b32 v{vL}, 63, v0")
    A(f"v_readfirstlane_b32 s3, v4")
    A(f"v_lshrrev_b32 v{vG}, 4, v{vL}")
    A(f"v_and_b32 v{vJ}, 15, v{vL}")
    A(f"s_lshr_b32 s{sH1}, s2, 3")
    A(f"s_and_b32 s{sKS}, s2, 7")
    A(f"s_lshr_b32 s{sB}, s2, 6")
    A(f"s_bfe_u32 s{sH}, s2, 0x50001")
    A(f"s_and_b32 s{sS}, s2, 1")
    A(f"s_mov_b32 s{sC}, {hex(f32bits(SCALE))}")
    if prof:
        A(f"s_mul_i32 s{sTI}, s2, 5"); A(f"s_add_u32 s{sTI}, s{sTI}, s3"); A(f"s_lshl_b32 s{sTI}, s{sTI}, 6")
        A(f"s_add_u32 s{sTI}, s{sTI}, {TS}"); A("v_mov_b32 v62, 0")
    vSEL, vMSK = 8, 16
    def build_sel():
        for rr in range(4): smask(sM + 2 * rr, 0x0303030303030303 << (2 * rr))
        smask(sE, 0xAAAAAAAAAAAAAAAA)
        A("v_mov_b32 v4, 0x0c0c0100"); A("v_mov_b32 v5, 0x01000c0c")
        A(f"v_cndmask_b32 v6, v4, v5, s[{sE}:{sE+1}]")
        A("v_mov_b32 v4, 0x0c0c0302"); A("v_mov_b32 v5, 0x03020c0c")
        A(f"v_cndmask_b32 v7, v4, v5, s[{sE}:{sE+1}]")
        A("v_mov_b32 v4, 0x0c0c0c0c")
        for rr in range(4):
            A(f"v_cndmask_b32 v{vSEL+2*rr}, v4, v6, s[{sM+2*rr}:{sM+2*rr+1}]")
            A(f"v_cndmask_b32 v{vSEL+2*rr+1}, v4, v7, s[{sM+2*rr}:{sM+2*rr+1}]")
        A("v_mov_b32 v4, 0x0000ffff"); A("v_mov_b32 v5, 0xffff0000")
        A(f"v_cndmask_b32 v6, v4, v5, s[{sE}:{sE+1}]")
        for rr in range(4):
            A(f"v_cndmask_b32 v{vMSK+rr}, 0, v6, s[{sM+2*rr}:{sM+2*rr+1}]")
    def rec_producer(dst, t1, t2):
        A(f"s_and_b32 s{sT1}, s{sH1}, 15")
        A(f"v_lshrrev_b32 v{t1}, 2, v{vJ}"); A(f"v_and_b32 v{t2}, 3, v{vJ}")
        A(f"s_cmp_ge_u32 s2, 128"); lb = A.newlabel("L_rpb"); le = A.newlabel("L_rpe")
        A(f"s_cbranch_scc1 {lb}")
        A(f"v_lshl_add_u32 v{dst}, v{t1}, 6, v{t2}"); A(f"s_lshl_b32 s{sT0}, s{sT1}, 2")
        A(f"s_branch {le}")
        A.label(lb)
        A(f"v_lshlrev_b32 v{dst}, 3, v{t2}"); A(f"v_and_b32 v{t2}, 1, v{t1}"); A(f"v_lshl_add_u32 v{dst}, v{t2}, 2, v{dst}")
        A(f"v_lshrrev_b32 v{t1}, 1, v{t1}"); A(f"v_lshl_add_u32 v{dst}, v{t1}, 7, v{dst}")
        A(f"s_and_b32 s{sT0}, s{sT1}, 3"); A(f"s_lshl_b32 s{sT0}, s{sT0}, 5"); A(f"s_lshr_b32 s{sT1}, s{sT1}, 2"); A(f"s_add_u32 s{sT0}, s{sT0}, s{sT1}")
        A.label(le)
        A(f"v_add_u32 v{dst}, s{sT0}, v{dst}")
    A("s_cmp_eq_u32 s3, 4")
    A("s_cbranch_scc1 L_helper")

    vOK, vOV, vAS, vAP, vMAX, vT = 20, 21, 22, 23, 24, 25
    vX = 26
    vBB = 34
    vD = 42
    QB = [8, 12, 26, 30]
    vPP = 58
    vACC = 50
    vSL = 89
    vW0, vW1 = 98, 99
    sWB, sWL = 6, 7
    vDM = 64
    vXB = 90
    A("s_setprio 1")
    if prof2:
        A("s_mov_b32 s31, 0"); A("v_mov_b32 v63, 0"); lstamp()
    if diag: A("s_memrealtime s[88:89]")
    A(f"v_lshrrev_b32 v4, 3, v{vJ}")
    A(f"v_lshlrev_b32 v5, 11, v4")
    A(f"v_lshl_add_u32 v5, v{vG}, 5, v5")
    A(f"v_lshlrev_b32 v{vDM+3}, 17, v{vG}")
    A(f"v_lshl_add_u32 v{vDM+3}, v{vJ}, 4, v{vDM+3}")
    A(f"s_and_b32 s{sT0}, s2, 3"); A(f"s_lshl_b32 s{sT0}, s{sT0}, 9"); A(f"s_lshl_b32 s{sT1}, s3, 7"); A(f"s_add_u32 s{sT0}, s{sT0}, s{sT1}")
    A(f"s_add_u32 s{sT1}, s{sT0}, 4096")
    A(f"s_lshl_b32 s{sT2}, s{sT0}, 12")
    A(f"s_lshl_b32 s{sT3}, s{sH1}, 8"); A(f"s_add_u32 s{sT2}, s{sT2}, s{sT3}")
    A(f"s_mov_b32 s{S_X+2}, 8192"); A(f"s_mov_b32 s{S_X+3}, 0x00020000")
    A(f"s_mov_b32 s{S_W+2}, {hex(1 << 23)}"); A(f"s_mov_b32 s{S_W+3}, 0x00020000")
    A(f"s_lshr_b32 s{sT3}, s2, 1"); A(f"s_xor_b32 s{sT3}, s{sT3}, s2")
    A(f"s_bitcmp1_b32 s{sT3 if MX else 2}, 2")
    A("s_waitcnt lgkmcnt(0)")
    A(f"s_cselect_b32 s{S_W}, s20, s10"); A(f"s_cselect_b32 s{S_W+1}, s21, s11")
    A(f"s_cselect_b32 s{S_X}, s14, s4"); A(f"s_cselect_b32 s{S_X+1}, s15, s5")
    for t in range(9):
        if t == XPOS:
            A(f"buffer_load_dwordx4 {vr(vX)}, v5, {sr(S_X)}, s{sT0} offen {xfl}")
            A(f"buffer_load_dwordx4 {vr(vX+4)}, v5, {sr(S_X)}, s{sT1} offen {xfl}")
            A(f"buffer_load_dwordx4 {vr(vXB)}, v5, {sr(S_X)}, s{sT0} offen offset:16 {xfl}")
            A(f"buffer_load_dwordx4 {vr(vXB+4)}, v5, {sr(S_X)}, s{sT1} offen offset:16 {xfl}")
        if t < 8:
            A(f"buffer_load_dwordx4 {ar(4*t)}, v{vDM+3}, {sr(S_W)}, s{sT2} offen nt")
            A(f"s_add_u32 s{sT2}, s{sT2}, 8192")
    srd(S_K, 6, 1 << 28); srd(S_V, 8, 1 << 28); srd(S_WS, 28, WS_BYTES)
    srd(S_X, 16, 1 << 25)
    srd(S_O, 18, 1 << 25)
    A(f"s_cmp_ge_u32 s2, 128")
    A(f"s_cselect_b32 s{S_WO}, s22, s12"); A(f"s_cselect_b32 s{S_WO+1}, s23, s13")
    A(f"s_mov_b32 s{S_WO+2}, {hex(1 << 23)}"); A(f"s_mov_b32 s{S_WO+3}, 0x00020000")
    stamp(0)
    A(f"v_lshrrev_b32 v7, 2, v{vJ}")
    A(f"v_lshlrev_b32 v{vOK}, 8, v7")
    A(f"v_lshl_add_u32 v{vOK}, v{vG}, 6, v{vOK}")
    A(f"v_and_b32 v5, 3, v{vJ}")
    A(f"v_lshl_add_u32 v{vOK}, v5, 4, v{vOK}")
    A(f"v_lshl_add_u32 v6, v{vG}, 1, v4")
    A(f"v_lshlrev_b32 v{vOV}, 8, v6")
    A(f"v_and_b32 v5, 7, v{vJ}")
    A(f"v_lshl_add_u32 v{vOV}, v5, 4, v{vOV}")
    A(f"s_lshl_b32 s{sT0}, s3, 1"); A(f"v_lshrrev_b32 v{vW0}, 1, v{vG}"); A(f"v_add_u32 v{vW0}, s{sT0}, v{vW0}")
    A(f"v_xor_b32 v{vW0}, v{vW0}, v{vJ}"); A(f"v_lshlrev_b32 v{vW0}, 4, v{vW0}"); A(f"v_lshl_add_u32 v{vW0}, v{vG}, 11, v{vW0}")
    if ILV:
        A(f"s_lshr_b32 s{sOFFK}, s2, 1"); A(f"s_lshl_b32 s{sOFFK}, s{sOFFK}, 21")
        A(f"s_lshl_b32 s{sT0}, s{sS}, 14"); A(f"s_add_u32 s{sOFFK}, s{sOFFK}, s{sT0}")
    else: A(f"s_lshl_b32 s{sOFFK}, s2, 20")
    A(f"s_lshl_b32 s{sT0}, s3, 12"); A(f"s_add_u32 s{sOFFK}, s{sOFFK}, s{sT0}")
    A(f"s_mov_b32 s{sOFFV}, s{sOFFK}")
    A(f"s_add_u32 s{sT0}, s{sT0}, {L_SC}")
    A(f"v_lshl_add_u32 v{vAS}, v7, 2, v{vG}")
    A(f"v_lshl_add_u32 v{vAS}, v{vAS}, 2, s{sT0}")
    A(f"v_lshl_add_u32 v{vAP}, v6, 2, s{sT0}")
    A(f"v_lshl_add_u32 v{vSL}, v{vL}, 4, s{sT0}")
    A(f"v_mov_b32 v{vMAX}, 0xff800000")
    A(f"v_lshrrev_b32 v4, 1, v{vJ}"); A(f"v_lshlrev_b32 v{vDM+2}, 8, v4")
    A(f"v_lshl_add_u32 v{vDM+2}, v{vG}, 5, v{vDM+2}")
    A(f"v_and_b32 v4, 1, v{vJ}"); A(f"v_lshl_add_u32 v{vDM+2}, v4, 4, v{vDM+2}")
    A(f"v_lshlrev_b32 v{vDM}, 9, v{vG}"); A(f"v_lshl_add_u32 v{vDM}, v{vJ}, 4, v{vDM}")
    A(f"s_lshr_b32 s{sKB}, s2, 7"); A(f"s_lshl_b32 s{sKB}, s{sKB}, 3"); A(f"s_add_u32 s{sKB}, s{sKB}, s{sKS}"); A(f"s_lshl_b32 s{sKB}, s{sKB}, 21")
    A(f"s_and_b32 s{sT0}, s{sH1}, 15"); A(f"s_lshl_b32 s{sT0}, s{sT0}, 15"); A(f"s_add_u32 s{sKB}, s{sKB}, s{sT0}")
    A(f"s_lshl_b32 s{sLD}, s3, 13"); A(f"s_add_u32 s{sKB}, s{sKB}, s{sLD}"); A(f"s_add_u32 s{sKB}, s{sKB}, {6144 * 256}")
    A(f"s_and_b32 s{sT3}, s{sH1}, 15"); A(f"s_lshl_b32 s{sT3}, s{sT3}, 19"); A(f"s_lshl_b32 s{sT0}, s{sKS}, 8")
    A(f"s_add_u32 s{sT3}, s{sT3}, s{sT0}"); A(f"s_add_u32 s{sWB}, s{sT3}, s{sLD}")
    A(f"s_lshl_b32 s{sWL}, s3, 10")
    if BROT: A(f"s_bfe_u32 s{sT1}, s2, {hex(0x20000 + BROT)}"); A(f"s_lshl_b32 s{sT1}, s{sT1}, 11")
    else: A(f"s_mov_b32 s{sT1}, 0")
    build_sel()

    def ring_reg(n): return ar(4 * (n % 16))
    kcnt = [0]; vcnt = [0]
    def loadK(reg):
        m = kcnt[0] % 4; kcnt[0] += 1
        A(f"buffer_load_dwordx4 {reg}, v{vOK}, {sr(S_K)}, s{sOFFK} offen offset:{m*1024} nt")
        if m == 3: A(f"s_add_u32 s{sOFFK}, s{sOFFK}, {32768 if ILV else 16384}")
    def loadV(reg):
        m = vcnt[0] % 4; vcnt[0] += 1
        A(f"buffer_load_dwordx4 {reg}, v{vOV}, {sr(S_V)}, s{sOFFV} offen offset:{(m>>1)*2048+(m&1)*128} nt")
        if m == 3: A(f"s_add_u32 s{sOFFV}, s{sOFFV}, {32768 if ILV else 16384}")
    def qk(reg, m, d):
        A(f"v_mfma_f32_16x16x32_bf16 {vr(d)}, {reg}, {vr(QB[m])}, {'0' if m == 0 else vr(d)}")
    def post(d, off):
        A(f"v_mov_b32_dpp v{vT}, v{d} quad_perm:[0,0,0,0] {FULL}")
        for r in range(1, 4):
            A(f"v_add_f32_dpp v{vT}, v{d+r}, v{vT} quad_perm:[{r},{r},{r},{r}] {FULL}")
        A(f"v_max_f32 v{vMAX}, v{vMAX}, v{vT}")
        A(f"ds_write_b32 v{vAS}, v{vT} offset:{off}")
    def qpart(t):
        x0, d0, tt = (vX, vD, t) if t < 8 else (vXB, vD, t - 8)
        for q in range(2):
            b = vBB + 4 * q
            for rr in range(4):
                A(f"v_perm_b32 v{b+rr}, v{x0+4*q+(tt>>1)}, v{x0+4*q+(tt>>1)}, v{vSEL+2*rr+(tt&1)}")
            A(f"v_mfma_f32_16x16x32_bf16 {vr(d0+4*q)}, {ar(4*t)}, {vr(b)}, {'0' if t == 0 else vr(d0+4*q)}")
    def dma(voff, srdb, soff, m0base, m0imm, step, tag):
        if m0base is None:
            def issue():
                A(f"buffer_load_dwordx4 {ar(m0imm)}, v{voff}, {sr(srdb)}, s{soff} offen nt")
                A(f"s_add_u32 s{soff}, s{soff}, {step}")
            return issue
        A(f"s_add_u32 m0, s{m0base}, {m0imm}")
        def issue():
            A(f"buffer_load_dwordx4 v{voff}, {sr(srdb)}, s{soff} offen nt lds")
            A(f"s_add_u32 s{soff}, s{soff}, {step}")
        return issue
    p1 = [(vDM + 3, S_W, sT2, None, 32 + 4 * t, 8192, "q") for t in range(8)]
    def b_dma(voff, srdb, lds, second, k):
        if k % 2 == 0:
            A(f"s_add_u32 s{sT3}, s{sKB}, s{sT1}"); A(f"s_add_u32 s{sCNT}, s{sLD}, s{sT1}")
            A(f"s_add_u32 m0, s{sCNT}, {lds}")
        else:
            A(f"s_add_u32 s{sT3}, s{sT3}, {second}"); A(f"s_add_u32 m0, s{sCNT}, {lds + 1024}")
            A(f"s_add_u32 s{sT1}, s{sT1}, 2048"); A(f"s_and_b32 s{sT1}, s{sT1}, 8191")
        return lambda: A(f"buffer_load_dwordx4 v{voff}, {sr(srdb)}, s{sT3} offen nt lds")
    p1 += [("b", vDM + 2, S_X, L_R3, 128, k) for k in range(8)]
    p1 += [("b", vDM, S_O, L_R2, 256, k) for k in range(8)]
    def wo_dma(ip):
        A(f"s_add_u32 m0, s{sWL}, {L_WO + ip * 4096}")
        A(f"s_add_u32 s{sT3}, s{sWB}, {ip * 32768}")
        x = (128 if ip & 1 else 0) ^ (32 if ip >= 8 else 0)
        if x: A(f"v_xor_b32 v{vW1}, {x}, v{vW0}")
        return lambda: A(f"buffer_load_dwordx4 v{vW1 if x else vW0}, {sr(S_WO)}, s{sT3} offen nt lds")
    tdef = list(range(4 - NDEF // 4, 4)); tearly = list(range(4 - NDEF // 4))
    wo_early = sorted(i for t in tearly for i in (2*t, 2*t+1, 8+2*t, 9+2*t))
    wo_late = sorted(i for t in tdef for i in (2*t, 2*t+1, 8+2*t, 9+2*t))
    p1 += [("wo", i) for i in wo_early]
    NPOOL = 16
    tdone = 0
    LAG = max(max(DK), DS, DT) + 1
    if LV and KC: LAG = max(LV) + 1
    n = 0
    def q_progress(landed):
        nonlocal tdone
        while tdone < 16 and max(4 + tdone, XPOS + 3) <= landed:
            qpart(tdone); tdone += 1
            if tdone == 16:
                for i, r in enumerate((vD, vD + 4)): A(f"ds_write_b128 v{vSL}, {vr(r)} offset:{i*1024}")
                A("s_waitcnt lgkmcnt(0)")
                A("s_barrier")
                stamp(1)
    A("; ---- phase 1: rest of wq, B tiles and wo (LDS-DMA); q partial via diagonal-B MFMA")
    for p, d in enumerate(p1):
        go = wo_dma(d[1]) if d[0] == "wo" else b_dma(*d[1:]) if d[0] == "b" else dma(*d)
        dd = DP0 if p < 8 else DP[p % len(DP)]
        A(f"s_waitcnt vmcnt({dd})"); go()
        if prof3 and p % 4 == 3: lstamp()
        q_progress(12 + p - 1 - dd)
    assert tdone == 16
    def tickK():
        nonlocal n
        A(f"s_waitcnt vmcnt({DS})"); loadK(ring_reg(n)); n += 1
        if prof3 and n % 4 == 0: lstamp()
    srd(S_O, 24, 16384)
    assert X >= LAG
    for p in range(NPOOL):
        A(f"s_waitcnt vmcnt({DS})"); loadK(ar(64 + 4 * p))
        if prof3 and p % 4 == 3: lstamp()
    for _ in range(X): tickK()
    stamp(2)
    lstamp()
    A("s_barrier")
    lstamp()
    stamp(3)
    A(f"v_and_b32 v4, 3, v{vJ}")
    A(f"v_lshl_add_u32 v4, v{vG}, 2, v4")
    A(f"v_lshlrev_b32 v4, 4, v4")
    A(f"v_add_u32 v4, {L_QL}, v4")
    A(f"ds_read_b128 {vr(vBB)}, v4")
    tickK()
    for m in range(4): smask(sM + 2 * m, 0x000F000F000F000F << (4 * m))
    A("s_waitcnt lgkmcnt(0)")
    for m in range(4):
        for rr in range(4):
            A(f"v_cndmask_b32 v{QB[m]+rr}, 0, v{vBB+rr}, s[{sM+2*m}:{sM+2*m+1}]")
    side = []
    GP = NPOOL // 4
    def mk_pool(pg):
        def f():
            if pg < GP:
                for m in range(4): qk(ar(64 + 16 * pg + 4 * m), m, vACC + 4 * (pg & 1))
            if pg > 0: post(vACC + 4 * ((pg - 1) & 1), (pg - 1) * 64)
        return f
    for pg in range(GP + 1): side.append(mk_pool(pg))
    vTR = 82
    def side_tr_addr():
        A(f"v_bfe_u32 v6, v{vJ}, 1, 1"); A("v_lshlrev_b32 v4, 7, v6")
        A(f"v_lshrrev_b32 v5, 2, v{vJ}"); A("v_lshl_add_u32 v4, v5, 3, v4")
        A(f"v_lshl_add_u32 v4, v{vG}, 1, v4"); A("v_lshlrev_b32 v4, 8, v4")
        A(f"v_lshl_add_u32 v5, v5, 2, v{vG}"); A("v_lshlrev_b32 v6, 1, v6"); A("v_xor_b32 v5, v5, v6")
        A(f"s_lshl_b32 s{sT0}, s3, 2"); A(f"v_xor_b32 v5, s{sT0}, v5"); A("v_lshl_add_u32 v4, v5, 4, v4")
        A(f"v_and_b32 v5, 1, v{vJ}"); A(f"v_lshl_add_u32 v{vTR}, v5, 3, v4")
        for ch in range(1, 4): A(f"v_xor_b32 v{vTR2+ch-1}, {ch*16}, v{vTR}")
    vTR2 = 26
    def traddr(ch): return vTR if ch == 0 else vTR2 + ch - 1
    def wofrag(t, ch): return 64 + 4 * (t * 4 + ch)
    def mk_tr(lst):
        def f():
            for t, ch, a in lst:
                A(f"ds_read_b64_tr_b16 {ar(wofrag(t,ch)+2*a,2)}, v{traddr(ch)} offset:{L_WO + (32*t+a)*256}")
        return f
    rc = 0
    pend = []
    while n < 32 or n % 16 or side:
        assert rc >= n - 15, (rc, n)
        tickK()
        old = list(pend); pend.clear()
        budget = 4
        while budget > 0 and rc <= n - 1 - LAG:
            g = rc // 4
            if rc % 4 == 0 and any(d == vD + 4 * (g & 1) for d, _ in old + pend):
                for po in old + pend: post(*po)
                old = []; pend.clear()
            qk(ring_reg(rc), rc % 4, vD + 4 * (g & 1))
            if rc % 4 == 3: pend.append((vD + 4 * (g & 1), (GP + g) * 64))
            rc += 1; budget -= 1
        for po in old: post(*po)
        if budget >= 3 and side: side.pop(0)()
    assert rc == n - LAG and not side, (rc, n, len(side))
    assert len(pend) == (1 if (n - 1 - LAG) % 4 == 3 else 0)
    def lring(k): return ring_reg(k) if U == 16 else ar(32 + 4 * (k % 8))
    vPG, vDEC = 90, 91
    def ctl_loop(name, levels, upto, tick, step):
        A(f"ds_read_b32 v{vDEC}, v92 offset:16")
        A.label(f"{name}top")
        if U == 16: lstamp()
        elif prof2:
            A(f"s_and_b32 s{sT0}, s{sCNT}, 1"); A(f"s_cbranch_scc1 {name}ns"); lstamp(); A.label(f"{name}ns")
        A("s_waitcnt lgkmcnt(0)")
        A(f"v_readfirstlane_b32 s{sT0}, v{vDEC}")
        A(f"v_mov_b32 v93, s{sCNT}")
        A(f"ds_write_b32 v{vPG}, v93")
        A(f"s_add_u32 s{sCNT}, s{sCNT}, 1")
        for li in range(1, len(levels)):
            A(f"s_cmp_eq_u32 s{sT0}, {li}"); A(f"s_cbranch_scc1 {name}lv{li}")
        for li, dd in enumerate(levels):
            A.label(f"{name}lv{li}")
            for i in range(U):
                A(f"s_waitcnt vmcnt({dd})"); tick(i)
                if i == U - 2: A(f"ds_read_b32 v{vDEC}, v92 offset:16")
                if LATEB and TRIG and name == "L_v" and i == HALF: A(f"ds_write_b32 v{vPG}, v93 offset:32")
            step()
            A(f"s_cmp_lt_u32 s{sCNT}, {upto}"); A(f"s_cbranch_scc1 {name}top")
            if li < len(levels) - 1: A(f"s_branch {name}done")
        A.label(f"{name}done")
    A("; ---- K loop")
    A(f"v_add_u32 v{vAS}, {(GP + n // 4 - 3) * 64}, v{vAS}")
    A(f"s_lshl_b32 s{sT0}, s3, 2"); A(f"s_add_u32 s{sT0}, s{sT0}, {L_PRG}"); A(f"v_mov_b32 v{vPG}, s{sT0}")
    A(f"v_mov_b32 v92, {L_PRG}")
    A(f"s_mov_b32 s{sCNT}, 0")
    KT = (256 - NPOOL - n) // U
    assert LAG <= U - 1 or U == 16
    def ktick(i):
        loadK(lring(i))
        c = i - LAG
        qk(lring(c), c % 4, vD + 4 * ((c // 4) & 1))
        if (c - 1) % 4 == 3: post(vD + 4 * (((c - 1) // 4) & 1), ((c - 1) // 4 + 3) * 64)
    ctl_loop("L_k", LV if KC else DK[:1], KT, ktick, lambda: A(f"v_add_u32 v{vAS}, {16 * U}, v{vAS}"))
    stamp(4)
    LAGV = max(DV) + 1
    if LV: LAGV = max(LV) + 1
    n = 0
    def tickT():
        nonlocal n
        dd = DT
        assert DT < LAG and DT < LAGV
        A(f"s_waitcnt vmcnt({dd})"); loadV(ring_reg(n)); n += 1
    for i in range(LAG + 1):
        tickT()
        c = i - LAG
        if c < 0: qk(ring_reg(c), c % 4, vD + 4 * ((c // 4) & 1))
        if (c - 1) % 4 == 3: post(vD + 4 * (((c - 1) // 4) & 1), ((c - 1) // 4 + 3) * 64)
    vS = 64
    vNM, vLS = 80, 81
    for i in range(4): A(f"ds_read_b128 {vr(vS+4*i)}, v{vSL} offset:{i*1024}")
    allreduce(vMAX, vT, "v_max_f32", [4, 8])
    A(f"v_mul_f32 v{vMAX}, s{sC}, v{vMAX}")
    A(f"v_sub_f32 v{vNM}, 0, v{vMAX}")
    for r in range(8): A(f"v_mov_b32 v{vACC+r}, 0")
    tickT()
    A("s_waitcnt lgkmcnt(0)")
    for i in range(4):
        for r in range(4): A(f"v_fma_f32 v{vS+4*i+r}, v{vS+4*i+r}, s{sC}, v{vNM}")
        for r in range(4): A(f"v_exp_f32 v{vS+4*i+r}, v{vS+4*i+r}")
        A(f"v_add_f32 v5, v{vS+4*i}, v{vS+4*i+1}"); A(f"v_add_f32 v6, v{vS+4*i+2}, v{vS+4*i+3}")
        A(f"v_add_f32 v5, v5, v6")
        A(f"v_mov_b32 v{vLS}, v5" if i == 0 else f"v_add_f32 v{vLS}, v{vLS}, v5")
        for r in range(4): A(f"v_cvt_pk_bf16_f32 v{vS+4*i+r}, v{vS+4*i+r}, v{vS+4*i+r}")
        A(f"ds_write_b128 v{vSL}, {vr(vS+4*i)} offset:{i*1024}")
        if i % 2 == 1: tickT()
    A(f"ds_read2_b32 {vr(vPP,2)}, v{vAP} offset0:0 offset1:8")
    def pv(reg, c, poff):
        beta, u = (c % 4) >> 1, c & 1
        pp = vPP + 2 * ((c // 4) & 1)
        if c % 4 == 0:
            A("s_waitcnt lgkmcnt(0)")
            A(f"ds_read2_b32 {vr(vPP + 2 * ((c // 4 + 1) & 1), 2)}, v{vAP} offset0:{poff//4} offset1:{poff//4+8}")
        if u == 0:
            for rr in range(4): A(f"v_and_b32 v{vBB+4*beta+rr}, v{pp+beta}, v{vMSK+rr}")
        A(f"v_mfma_f32_16x16x32_bf16 {vr(vACC+4*u)}, {reg}, {vr(vBB+4*beta)}, {vr(vACC+4*u)}")
    def side_stats():
        allreduce(vLS, vT, "v_add_f32", [1, 2, 4, 8])
        A(f"v_min_u32 v6, -2, v{vMAX}"); A(f"v_min_u32 v7, -2, v{vLS}")
        A(f"s_lshl_b32 s{sT0}, s3, 3"); A(f"s_add_u32 s{sT0}, s{sT0}, {L_ST}")
        A(f"v_mov_b32 v4, s{sT0}")
        A("ds_write_b64 v4, v[6:7]")
    vFW, vFR, vWA, vRO, vGO, vPO = 83, 84, 85, 86, 87, 88
    sREC, sGA, sGB, sP2, sP3, sOUT = 96, 97, 98, 99, 100, 101
    def side_tail1():
        A(f"s_lshl_b32 s{sT0}, s3, 11"); A(f"s_add_u32 s{sT0}, s{sT0}, {L_EX}")
        A(f"v_lshl_add_u32 v{vFW}, v{vL}, 4, s{sT0}")
        A(f"v_and_b32 v4, 1, v{vL}"); A("v_mul_u32_u24 v4, 40, v4")
        A(f"v_lshrrev_b32 v5, 3, v{vL}"); A("v_add_u32 v4, v4, v5"); A("v_lshlrev_b32 v4, 4, v4")
        A(f"v_bfe_u32 v6, v{vL}, 1, 2"); A("v_lshl_add_u32 v4, v6, 11, v4")
        A(f"s_lshr_b32 s{sT0}, s3, 1"); A(f"s_lshl_b32 s{sT0}, s{sT0}, 10")
        A(f"s_and_b32 s{sT1}, s3, 1"); A(f"s_lshl_b32 s{sT1}, s{sT1}, 8")
        A(f"s_add_u32 s{sT0}, s{sT0}, s{sT1}"); A(f"s_add_u32 s{sT0}, s{sT0}, {L_EX}")
        A(f"v_add_u32 v{vFR}, s{sT0}, v4")
        A(f"v_lshlrev_b32 v{vWA}, 2, v6"); A(f"v_add_u32 v{vWA}, {L_WGT}, v{vWA}")
        A(f"v_lshlrev_b32 v{vRO}, 3, v5")
    def side_tail2():
        A(f"s_mul_i32 s{sP2}, s2, {BS}"); A(f"s_add_u32 s{sP2}, s{sP2}, {BLK}")
        A(f"s_lshl_b32 s{sT0}, s3, 6"); A(f"s_add_u32 s{sREC}, s{sP2}, s{sT0}")
        A(f"s_lshl_b32 s{sT0}, s3, 9"); A(f"s_add_u32 s{sP2}, s{sP2}, s{sT0}")
        rec_producer(4, 5, 6)
        A(f"v_mul_u32_u24 v{vGO}, {BS}, v4"); A(f"v_lshl_add_u32 v{vGO}, v{vG}, 4, v{vGO}")
        A(f"s_lshr_b32 s{sGA}, s2, 7"); A(f"s_lshl_b32 s{sGA}, s{sGA}, 8"); A(f"s_add_u32 s{sGA}, s{sGA}, {BLK + O_REC}")
    def side_tail3():
        A(f"v_lshrrev_b32 v4, 2, v{vJ}"); A(f"v_lshlrev_b32 v{vPO}, 7, v4"); A(f"v_lshl_add_u32 v{vPO}, v{vG}, 5, v{vPO}")
        A(f"v_and_b32 v4, 3, v{vJ}"); A(f"v_lshl_add_u32 v{vPO}, v4, 3, v{vPO}")
        A(f"s_and_b32 s{sT1}, s2, 0x87"); A(f"s_mul_i32 s{sP3}, s{sT1}, {BS}"); A(f"s_add_u32 s{sP3}, s{sP3}, {BLK + O_P2}")
        A(f"s_and_b32 s{sT1}, s{sH1}, 15"); A(f"s_lshl_b32 s{sT0}, s{sT1}, 7"); A(f"s_add_u32 s{sP3}, s{sP3}, s{sT0}")
        A(f"s_lshl_b32 s{sT0}, s3, 4"); A(f"s_add_u32 s{sP3}, s{sP3}, s{sT0}")
        A(f"v_mul_u32_u24 v8, {8 * BS}, v{vJ}"); A(f"v_lshl_add_u32 v8, v{vG}, 5, v8")
        A(f"s_lshr_b32 s{sOUT}, s2, 7"); A(f"s_lshl_b32 s{sOUT}, s{sOUT}, 3"); A(f"s_add_u32 s{sOUT}, s{sOUT}, s{sKS}"); A(f"s_lshl_b32 s{sOUT}, s{sOUT}, 8")
        A(f"s_lshr_b32 s{sT0}, s{sT1}, 2"); A(f"s_lshl_b32 s{sT0}, s{sT0}, 6"); A(f"s_add_u32 s{sOUT}, s{sOUT}, s{sT0}")
        A(f"s_and_b32 s{sT0}, s{sT1}, 3"); A(f"s_lshl_b32 s{sT0}, s{sT0}, 3"); A(f"s_add_u32 s{sOUT}, s{sOUT}, s{sT0}")
        A(f"s_lshl_b32 s{sT0}, s3, 2"); A(f"s_add_u32 s{sOUT}, s{sOUT}, s{sT0}")
        A(f"v_lshlrev_b32 v9, 12, v{vG}"); A(f"v_lshl_add_u32 v9, v{vJ}, 5, v9")
        smask(sM, 0x0101010101010101); smask(sM + 2, 0x0002000200020002); smask(sM + 4, 0x0003000300030003)
    side = [side_stats, side_tail1, side_tail2, side_tail3, side_tr_addr]
    trs = [(t, ch, a) for t in tearly for ch in range(4) for a in range(2)]
    for i in range(0, len(trs), TRN): side.append(mk_tr(trs[i:i + TRN]))
    rc = 0
    while n < 16 or (n % 16) or side or rc != n - LAGV:
        assert rc >= n - 15, (rc, n)
        tickT()
        budget = 4
        while budget > 0 and rc <= n - 1 - LAGV:
            pv(ring_reg(rc), rc, (rc // 4 + 1) * 64); rc += 1; budget -= 1
        if budget >= 3 and side: side.pop(0)()
    stamp(5)
    A("; ---- V loop")
    A(f"v_add_u32 v{vAP}, {(n // 4 - 4) * 64}, v{vAP}")
    VT = (256 - n) // U
    lag = LAGV
    assert LAGV <= U - 1 or U == 16
    def vtick(i):
        loadV(lring(i))
        c = i - LAGV
        pv(lring(c), c, (c // 4 + 1 + 4) * 64)
    ctl_loop("L_v", LV, KT + VT, vtick, lambda: A(f"v_add_u32 v{vAP}, {16 * U}, v{vAP}"))
    A("; ---- V drain + deferred wo rows, in-workgroup combine, publish normalised o (bf16)")
    rem = list(range(-lag, 0)); late = list(wo_late); k = 0
    while rem:
        if late:
            go = wo_dma(late.pop(0))
            A(f"s_waitcnt vmcnt({DW})"); go()
            while rem and rem[0] <= k - DW - 1:
                c = rem.pop(0); pv(ring_reg(c), c, (c // 4 + 1 + 4) * 64)
            k += 1
        else:
            c = rem.pop(0)
            A(f"s_waitcnt vmcnt({k - 1 - c})")
            pv(ring_reg(c), c, (c // 4 + 1 + 4) * 64)
    for _ in range(min(BURST, len(late))): wo_dma(late.pop(0))()
    stamp(6)
    lstamp()
    A(f"ds_write_b128 v{vFW}, {vr(vACC)}")
    A(f"ds_write_b128 v{vFW}, {vr(vACC+4)} offset:1024")
    A(f"s_mov_b32 s{sSPIN}, {spin}")
    A("s_waitcnt lgkmcnt(0)")
    A("s_barrier")
    A(f"ds_read_b128 v[4:7], v{vFR}")
    A(f"ds_read_b32 v{vT}, v{vWA}")
    A(f"ds_read_b32 v{vDEC}, v92 offset:20")
    vGA = 64
    def gpoll():
        for t in range(4):
            A(f"buffer_load_dwordx4 {vr(vGA+4*t)}, v{vGO}, {sr(S_WS)}, s{sGA} offen offset:{t*64} {pfl}")
    A("s_waitcnt lgkmcnt(0)")
    for r in range(4): A(f"v_mul_f32 v{4+r}, v{4+r}, v{vT}")
    for mode in ("quad_perm:[1,0,3,2]", "quad_perm:[2,3,0,1]", "row_half_mirror"):
        for r in range(4): A(f"v_add_f32_dpp v{4+r}, v{4+r}, v{4+r} {mode} {FULL}")
    A("v_cvt_pk_bf16_f32 v4, v4, v5"); A("v_cvt_pk_bf16_f32 v5, v6, v7")
    A("v_min_u32 v4, -2, v4"); A("v_min_u32 v5, -2, v5")
    A(f"s_mov_b64 exec, s[{sM}:{sM+1}]")
    A(f"buffer_store_dwordx2 v[4:5], v{vRO}, {sr(S_WS)}, s{sREC} offen offset:{O_REC} {sfl}")
    A("s_mov_b64 exec, -1")
    stamp(7)
    while late:
        go = wo_dma(late.pop(0))
        A(f"s_waitcnt vmcnt({DW})"); go()
    A("; ---- output projection: gather 16 records, MFMA with wo fragments, publish partial sums")
    if GP1 == 1: gpoll()
    if NDEF:
        if GP1 == 2:
            A("s_waitcnt vmcnt(3)"); gpoll()
        A(f"s_waitcnt vmcnt({4 if GP1 else 0})")
        if GP1 == 0: gpoll()
        A("s_barrier")
        for ti, t in enumerate(tdef):
            if ti: A("s_waitcnt lgkmcnt(7)")
            mk_tr([(t, ch, a) for ch in range(4) for a in range(2)])()
        lstamp()
    A("s_branch L_gchk")
    A.label("L_gather")
    if gsleep: A(f"s_sleep {gsleep}")
    gpoll()
    A.label("L_gchk")
    A(f"s_waitcnt vmcnt(0)")
    A(f"v_max3_u32 v4, v{vGA}, v{vGA+1}, v{vGA+2}"); A(f"v_max3_u32 v5, v{vGA+3}, v{vGA+4}, v{vGA+5}")
    for k in range(6, 14, 4):
        A(f"v_max3_u32 v4, v4, v{vGA+k}, v{vGA+k+1}"); A(f"v_max3_u32 v5, v5, v{vGA+k+2}, v{vGA+k+3}")
    A(f"v_max3_u32 v4, v4, v{vGA+14}, v{vGA+15}"); A("v_max_u32 v4, v4, v5")
    A(f"v_cmp_eq_u32 s[{sE}:{sE+1}], -1, v4")
    A(f"s_sub_u32 s{sSPIN}, s{sSPIN}, 1"); A("s_cbranch_scc1 L_gdone")
    A(f"s_and_b64 exec, exec, s[{sE}:{sE+1}]")
    A("s_cbranch_scc1 L_gather")
    A.label("L_gdone")
    A("s_mov_b64 exec, -1")
    stamp(8)
    lstamp()
    vO = 112
    for t in range(4):
        if tdef and t == tdef[0]: A("s_waitcnt lgkmcnt(0)")
        for ch in range(4):
            A(f"v_mfma_f32_16x16x32_bf16 {vr(vO+4*ch)}, {vr(vGA+4*t)}, {ar(wofrag(t,ch))}, {'0' if t == 0 else vr(vO+4*ch)}")
    A(f"s_mov_b32 s{sSPIN}, {spin}")
    A(f"v_readfirstlane_b32 s{sT0}, v{vDEC}")
    A(f"s_cmp_eq_u32 s{sT0}, 1")
    for c2 in range(2):
        o = vO + 8 * c2
        A(f"v_add_f32 v{4+c2}, v{o}, v{o+1}"); A(f"v_add_f32 v{o+2}, v{o+2}, v{o+3}")
        A(f"v_add_f32 v{o+4}, v{o+4}, v{o+5}"); A(f"v_add_f32 v{o+6}, v{o+6}, v{o+7}")
    for c2 in range(2):
        o = vO + 8 * c2
        A(f"v_add_f32_dpp v{4+c2}, v{o+2}, v{4+c2} row_ror:8 row_mask:0xf bank_mask:0x3")
        A(f"v_add_f32_dpp v{4+c2}, v{o+4}, v{o+6} row_ror:8 row_mask:0xf bank_mask:0xc")
    A("v_min_u32 v4, -2, v4"); A("v_min_u32 v5, -2, v5")
    A(f"s_cbranch_scc1 L_p2loc")
    A(f"buffer_store_dwordx2 v[4:5], v{vPO}, {sr(S_WS)}, s{sP2} offen offset:{O_P2} {sfl}")
    A("s_branch L_p2done")
    A.label("L_p2loc")
    A(f"buffer_store_dwordx2 v[4:5], v{vPO}, {sr(S_WS)}, s{sP2} offen offset:{O_P2}")
    A.label("L_p2done")
    stamp(9)
    def dump():
        A(f"s_lshl_b32 s{sT0}, s2, 2"); A(f"s_add_u32 s{sT0}, s{sT0}, s3"); A(f"s_lshl_b32 s{sT0}, s{sT0}, 8"); A(f"s_add_u32 s{sT0}, s{sT0}, {TS}")
        A(f"v_lshlrev_b32 v62, 2, v{vL}")
        A(f"buffer_store_dword v63, v62, {sr(S_WS)}, s{sT0} offen")
    A("s_cmp_ge_u32 s3, 2")
    A("s_cbranch_scc1 L_dump" if prof2 else "s_cbranch_scc1 L_end")
    for _ in range(PIPE - 1):
        A(f"buffer_load_dwordx4 v[12:15], v8, {sr(S_WS)}, s{sP3} offen {pfl}")
        A(f"s_sleep {tsleep}")
    A.label("L_s3")
    if s3sleep: A(f"s_sleep {s3sleep}")
    A(f"buffer_load_dwordx4 v[12:15], v8, {sr(S_WS)}, s{sP3} offen {pfl}")
    A(f"s_waitcnt vmcnt({PIPE - 1})")
    A("v_max3_u32 v10, v12, v13, v14"); A("v_max_u32 v10, v10, v15")
    A(f"v_cmp_eq_u32 s[{sE}:{sE+1}], -1, v10")
    A(f"s_sub_u32 s{sSPIN}, s{sSPIN}, 1"); A("s_cbranch_scc1 L_s3done")
    A(f"s_and_b64 exec, exec, s[{sE}:{sE+1}]")
    A("s_cbranch_scc1 L_s3")
    A.label("L_s3done")
    A("s_mov_b64 exec, -1")
    for r in range(4): A(f"v_add_f32_dpp v{16+r}, v{12+r}, v{12+r} row_ror:8 {FULL}")
    for rot in (4, 2, 1):
        for r in range(4): A(f"v_add_f32_dpp v{16+r}, v{16+r}, v{16+r} row_ror:{rot} {FULL}")
    A("v_cvt_pk_bf16_f32 v4, v16, v18"); A("v_cvt_pk_bf16_f32 v5, v17, v19")
    A(f"v_cndmask_b32 v4, v4, v5, s[{sM+2}:{sM+3}]")
    A(f"s_mov_b64 exec, s[{sM+4}:{sM+5}]")
    A(f"buffer_store_dword v4, v9, {sr(S_O)}, s{sOUT} offen {osc1}")
    A("s_mov_b64 exec, -1")
    stamp(10)
    if prof2:
        A.label("L_dump"); lstamp(); dump()
    A("s_endpgm")

    A.label("L_helper")
    in_helper[0] = True
    S_DBG = S_O
    hO1, hO2, hO3 = 21, 22, 23
    sBLK, sGRP, sFL = 96, 97, 66
    def poll(name, load, reduce_to_v6, cmpop, cmpval, sl, pre_sleep=False):
        A(f"s_mov_b32 s{sSPIN}, {spin}")
        A.label(name)
        if pre_sleep: A(f"s_sleep {sl}")
        load()
        reduce_to_v6()
        A(f"{cmpop} s[{sE}:{sE+1}], {cmpval}, v6")
        A(f"s_cmp_eq_u64 s[{sE}:{sE+1}], 0"); A(f"s_cbranch_scc1 {name}_ok")
        spin_tail(name, sl)
        A.label(name + "_ok")
    A(f"v_lshlrev_b32 v{hO1}, 4, v{vL}")
    A(f"s_mul_i32 s{sBLK}, s2, {BS}"); A(f"s_add_u32 s{sBLK}, s{sBLK}, {BLK}")
    A(f"s_lshr_b32 s{sGRP}, s2, 7"); A(f"s_lshl_b32 s{sGRP}, s{sGRP}, 3"); A(f"s_add_u32 s{sGRP}, s{sGRP}, s{sKS}"); A(f"s_lshl_b32 s{sGRP}, s{sGRP}, 4")
    A("s_waitcnt lgkmcnt(0)")
    srd(S_WS, 28, WS_BYTES); srd(S_DBG, 26, 256)
    stamp(0)
    A("s_cmp_ge_u32 s2, 8"); A("s_cbranch_scc1 L_noinit")
    for r in range(4): A(f"v_mov_b32 v{4+r}, 0")
    A(f"s_lshl_b32 s{sT0}, s2, 12"); A(f"s_add_u32 s{sT0}, s{sT0}, {FLG}"); A(f"s_lshl_b32 s{sT1}, s2, 2")
    for i in range(4):
        A(f"buffer_store_dwordx4 v[4:7], v{hO1}, {sr(S_WS)}, s{sT0} offen offset:{i*1024} sc1")
    if LV:
        A(f"s_add_u32 s{sT0}, s{sT0}, {CNT - FLG}")
        for i in range(4):
            A(f"buffer_store_dwordx4 v[4:7], v{hO1}, {sr(S_WS)}, s{sT0} offen offset:{i*1024} sc1")
    A("v_mov_b32 v5, 1")
    A("s_waitcnt vmcnt(0)")
    A("s_mov_b64 exec, 1")
    A(f"buffer_store_dword v5, v4, {sr(S_DBG)}, s{sT1} offen sc1")
    A("s_mov_b64 exec, -1")
    A.label("L_noinit")
    for r in range(4): A(f"v_mov_b32 v{4+r}, -1")
    if "i" not in skip: A(f"buffer_store_dwordx4 v[4:7], v{hO1}, {sr(S_WS)}, s{sBLK} offen sc1")
    if "i" not in skip: A(f"buffer_store_dwordx4 v[4:7], v{hO1}, {sr(S_WS)}, s{sBLK} offen offset:1024 sc1")
    if preBP:
        A(f"s_lshl_b32 s{sT0}, s2, 11"); A(f"s_add_u32 s{sT0}, s{sT0}, {BP}")
        for i in range(2): A(f"buffer_store_dwordx4 v[4:7], v{hO1}, {sr(S_WS)}, s{sT0} offen offset:{i*1024} sc1")
    smask(sE, (1 << 56) - 1)
    A(f"s_mov_b64 exec, s[{sE}:{sE+1}]")
    if "i" not in skip: A(f"buffer_store_dwordx4 v[4:7], v{hO1}, {sr(S_WS)}, s{sBLK} offen offset:2048 sc1")
    A("s_mov_b64 exec, -1")
    A(f"v_mov_b32 v{hO2}, {L_ST}")
    A(f"ds_write_b128 v{hO2}, v[4:7]"); A(f"ds_write_b128 v{hO2}, v[4:7] offset:16")
    if LV:
        for r in range(4): A(f"v_mov_b32 v{30+r}, 0")
        A(f"ds_write_b128 v{hO2}, v[30:33] offset:{L_PRG - L_ST}"); A(f"ds_write_b128 v{hO2}, v[30:33] offset:{L_PRG - L_ST + 32}"); A(f"v_mov_b32 v34, {L0}"); A(f"ds_write_b32 v{hO2}, v34 offset:{L_PRG - L_ST + 16}")
    build_sel()
    A(f"v_lshrrev_b32 v4, 3, v{vJ}"); A(f"v_lshlrev_b32 v{hO2}, 9, v4")
    A(f"v_lshl_add_u32 v{hO2}, v{vG}, 7, v{hO2}")
    A(f"v_and_b32 v7, 7, v{vJ}"); A(f"v_lshl_add_u32 v{hO2}, v7, 4, v{hO2}")
    A(f"v_add_u32 v{hO3}, {L_SC}, v{hO1}")
    A(f"s_lshl_b32 s{sFL}, s2, 7"); A(f"s_add_u32 s{sFL}, s{sFL}, {FLG}")
    hQW, hQG, hFP, hD8, hQG2, hQW2 = 24, 25, 20, 26, 27, 28
    A(f"v_lshlrev_b32 v{hFP}, 7, v7")
    A(f"v_lshlrev_b32 v{hD8}, 2, v7")
    A(f"v_lshlrev_b32 v{hQW2}, 6, v4"); A(f"v_lshl_add_u32 v{hQW2}, v7, 1, v{hQW2}"); A(f"v_add_u32 v{hQW2}, {L_QBL}, v{hQW2}")
    A(f"v_lshlrev_b32 v{hQG2}, 11, v{vG}"); A(f"v_lshl_add_u32 v{hQG2}, v{vJ}, 4, v{hQG2}")
    A(f"v_lshrrev_b32 v4, 5, v{vL}"); A(f"v_and_b32 v5, 31, v{vL}")
    A(f"v_lshlrev_b32 v{hQG}, 11, v4"); A(f"v_lshl_add_u32 v{hQG}, v5, 4, v{hQG}")
    A("v_lshrrev_b32 v5, 3, v5"); A(f"v_lshlrev_b32 v{hQW}, 6, v5")
    A(f"v_lshl_add_u32 v{hQW}, v7, 1, v{hQW}"); A(f"v_add_u32 v{hQW}, {L_QL}, v{hQW}")
    sXC = 69
    A(f"s_getreg_b32 s{sXC}, hwreg(HW_REG_XCC_ID, 0, 4)"); A(f"s_add_u32 s{sXC}, s{sXC}, 16")
    A(f"v_mov_b32 v4, s{sXC}"); A("v_mov_b32 v5, 0")
    A(f"s_lshl_b32 s{sT0}, s2, 11")
    A(f"s_lshl_b32 s{sT2}, s{sH}, 10"); A(f"s_add_u32 s{sT2}, s{sT2}, {FLG}")
    A(f"s_lshl_b32 s{sT3}, s{sH}, 14"); A(f"s_lshl_b32 s{sCNT}, s{sB}, 9"); A(f"s_add_u32 s{sT3}, s{sT3}, s{sCNT}")
    if MX:
        A(f"s_and_b32 s{sCNT}, s{sH}, 1"); A(f"s_lshl_b32 s{sCNT}, s{sCNT}, 13"); A(f"s_add_u32 s{sT3}, s{sT3}, s{sCNT}")
    A(f"s_lshl_b32 s{sCNT}, s{sS}, 8"); A(f"s_add_u32 s{sCNT}, s{sCNT}, s{sT3}"); A(f"s_xor_b32 s{sCNT}, s{sCNT}, 8192")
    A("s_waitcnt lgkmcnt(0)")
    A("s_barrier")
    stamp(1)
    for i in range(2):
        for v in range(4): A(f"ds_read_b128 {vr(64+16*i+4*v)}, v{hO3} offset:{v*4096+i*1024}")
    for i in range(2):
        b = 64 + 16 * i
        A(f"s_waitcnt lgkmcnt({4 - 4 * i})")
        for r in range(4):
            A(f"v_add_f32 v{b+r}, v{b+r}, v{b+4+r}"); A(f"v_add_f32 v{b+8+r}, v{b+8+r}, v{b+12+r}")
        for r in range(4): A(f"v_add_f32 v{b+r}, v{b+r}, v{b+8+r}")
        A(f"buffer_store_dwordx4 {vr(b)}, v{hO2}, {sr(S_WS)}, s{sT0} offen offset:{i*1024} sc1")
    poll("L_pi", lambda: (A(f"buffer_load_dword v6, v{hD8}, {sr(S_DBG)}, 0 offen sc1"), A("s_waitcnt vmcnt(0)")), lambda: None, "v_cmp_ne_u32", 1, qsleep)
    A("s_mov_b64 exec, 1")
    A(f"buffer_store_dword v4, v5, {sr(S_WS)}, s{sFL} offen sc1")
    A("s_mov_b64 exec, -1")
    stamp(2)
    for _ in range(qpre): A("s_sleep 32")
    poll("L_pq", lambda: (A(f"buffer_load_dword v6, v{hFP}, {sr(S_WS)}, s{sT2} offen sc1"), A("s_waitcnt vmcnt(0)")), lambda: None, "v_cmp_eq_u32", 0, qsleep)
    stamp(3)
    A(f"buffer_load_dwordx4 {vr(64)}, v{hQG}, {sr(S_WS)}, s{sT3} offen sc1")
    A(f"s_add_u32 s{sT3}, s{sT3}, 4096")
    A(f"buffer_load_dwordx4 {vr(68)}, v{hQG}, {sr(S_WS)}, s{sT3} offen sc1")
    A(f"buffer_load_dwordx4 {vr(80)}, v{hQG2}, {sr(S_WS)}, s{sCNT} offen sc1")
    A("s_waitcnt vmcnt(1)")
    for r in range(4): A(f"v_add_f32 v{64+r}, v{64+r}, v{68+r}")
    for r in range(4): A(f"v_mov_b32 v{68+r}, v{64+r}")
    for r in range(4): A(f"v_permlane32_swap_b32 v{68+r}, v{64+r}")
    for r in range(4): A(f"v_add_f32 v{64+r}, v{64+r}, v{68+r}")
    def write_b16(addr, b, off):
        A(f"v_cvt_pk_bf16_f32 v{b}, v{b}, v{b+1}"); A(f"v_cvt_pk_bf16_f32 v{b+2}, v{b+2}, v{b+3}")
        A(f"ds_write_b16 v{addr}, v{b} offset:{off}"); A(f"ds_write_b16_d16_hi v{addr}, v{b} offset:{off+16}")
        A(f"ds_write_b16 v{addr}, v{b+2} offset:{off+32}"); A(f"ds_write_b16_d16_hi v{addr}, v{b+2} offset:{off+48}")
    write_b16(hQW, 64, 0)
    A("s_waitcnt vmcnt(0)")
    for r in range(4): allreduce(80 + r, 84 + r, "v_add_f32", [])
    write_b16(hQW2, 80, 0)
    A(f"v_and_b32 v4, 0x70, v{hO1}"); A(f"v_add_u32 v5, {L_QBL}, v4")
    A("ds_read_b128 v[80:83], v5")
    A("s_waitcnt lgkmcnt(0)")
    for r in range(4): A(f"v_min_u32 v{80+r}, -2, v{80+r}")
    A("s_mov_b64 exec, 0xff")
    A(f"buffer_store_dwordx4 v[80:83], v4, {sr(S_WS)}, s{sBLK} offen offset:{O_QB2} sc1")
    A("s_mov_b64 exec, -1")
    hR = 23
    A(f"v_add_u32 v{hR}, {L_R2}, v{hO1}")
    stamp(4)
    A("s_barrier")
    def lds_frags(off):
        for k in range(32):
            A(f"ds_read_b128 {ar(4*k)}, v{hR} offset:{off + k*1024}")
            if k % 8 == 7: A("s_waitcnt lgkmcnt(0)")
    A("; ---- branch B attention on this workgroup 128 keys x 8 heads")
    lds_frags(L_R3 - L_R2)
    rec_producer(5, 6, 7)
    A(f"v_add_u32 v4, s{sGRP}, v{vJ}")
    smask(sE, 0x00000000FFFF0000)
    A(f"v_cndmask_b32 v4, v4, v5, s[{sE}:{sE+1}]")
    sLG = 64
    A(f"s_and_b32 s{sLG}, s2, 0x87"); A(f"v_lshl_add_u32 v5, v{vJ}, 3, s{sLG}")
    smask(sE, 0x0000FFFF00000000)
    A(f"v_cndmask_b32 v4, v4, v5, s[{sE}:{sE+1}]")
    A(f"s_xor_b32 s{sT0}, s2, 1"); A(f"v_mov_b32 v5, s{sT0}")
    smask(sE, 0xFFFF000000000000)
    A(f"v_cndmask_b32 v4, v4, v5, s[{sE}:{sE+1}]"); A("v_lshlrev_b32 v4, 7, v4")
    A(f"s_mov_b32 s{sT1}, {FLG}")
    poll("L_pa", lambda: (A(f"buffer_load_dword v6, v4, {sr(S_WS)}, s{sT1} offen sc1"), A("s_waitcnt vmcnt(0)")), lambda: None, "v_cmp_eq_u32", 0, hsleep)
    A(f"v_cmp_ne_u32 s[{sE}:{sE+1}], s{sXC}, v6")
    A(f"s_and_b32 s{sT0}, s{sE+1}, 0xffff")
    A(f"s_cselect_b32 s{sT0}, 0, {LOC}")
    A(f"s_cselect_b32 s{sXC}, 0, {LOCB}")
    A(f"v_mov_b32 v4, {L_PRG}"); A(f"v_mov_b32 v5, s{sT0}"); A("ds_write_b32 v4, v5 offset:20")
    stamp(5)
    hETA = 28
    sGB_ = 98
    A(f"s_mul_i32 s{sGB_}, s{sGRP}, {BS}"); A(f"s_add_u32 s{sGB_}, s{sGB_}, {BLK}")
    A(f"v_bfe_u32 v4, v{vJ}, 1, 2"); A(f"v_lshrrev_b32 v5, 3, v{vJ}"); A(f"v_lshl_add_u32 v{hETA}, v4, 1, v5")
    A(f"v_mul_u32_u24 v4, {2 * BS}, v{hETA}"); A(f"v_lshl_add_u32 v4, v{vG}, 5, v4")
    A(f"v_and_b32 v5, 1, v{vJ}"); A("v_lshl_add_u32 v4, v5, 4, v4")
    hQ = 30
    def ldq():
        A(f"buffer_load_dwordx4 {vr(hQ)}, v4, {sr(S_WS)}, s{sGB_} offen offset:{O_QB2} sc1")
        A(f"buffer_load_dwordx4 {vr(hQ+4)}, v4, {sr(S_WS)}, s{sGB_} offen offset:{O_QB2 + BS} sc1")
        A("s_waitcnt vmcnt(0)")
    def redq():
        A(f"v_max3_u32 v6, v{hQ}, v{hQ+1}, v{hQ+2}"); A(f"v_max3_u32 v6, v6, v{hQ+3}, v{hQ+4}")
        A(f"v_max3_u32 v6, v6, v{hQ+5}, v{hQ+6}"); A(f"v_max_u32 v6, v6, v{hQ+7}")
    poll("L_q2", ldq, redq, "v_cmp_eq_u32", -1, hsleep)
    stamp(6)
    hS = 64
    hDD = 38
    def postB(g8):
        d = hDD + 4 * (g8 & 1)
        for r2 in range(2):
            A(f"v_mov_b32_dpp v{hS+2*g8+r2}, v{d+2*r2} quad_perm:[0,0,2,2] {FULL}")
            A(f"v_add_f32_dpp v{hS+2*g8+r2}, v{d+2*r2+1}, v{hS+2*g8+r2} quad_perm:[1,1,3,3] {FULL}")
    for g8 in range(16):
        d = hDD + 4 * (g8 & 1)
        A(f"v_mfma_f32_16x16x32_bf16 {vr(d)}, {ar(8*g8)}, {vr(hQ)}, 0")
        A(f"v_mfma_f32_16x16x32_bf16 {vr(d)}, {ar(8*g8+4)}, {vr(hQ+4)}, {vr(d)}")
        if g8 > 0: postB(g8 - 1)
    postB(15)
    lds_frags(0)
    hM, hL, hNM = 46, 47, 48
    A(f"v_max_f32 v{hM}, v{hS}, v{hS+1}")
    for k in range(2, 32, 2): A(f"v_max3_f32 v{hM}, v{hM}, v{hS+k}, v{hS+k+1}")
    allreduce(hM, 4, "v_max_f32", [])
    A(f"v_mul_f32 v{hM}, s{sC}, v{hM}"); A(f"v_sub_f32 v{hNM}, 0, v{hM}")
    for k in range(32): A(f"v_fma_f32 v{hS+k}, v{hS+k}, s{sC}, v{hNM}")
    for k in range(32): A(f"v_exp_f32 v{hS+k}, v{hS+k}")
    A(f"v_add_f32 v{hL}, v{hS}, v{hS+1}")
    for k in range(2, 32): A(f"v_add_f32 v{hL}, v{hL}, v{hS+k}")
    allreduce(hL, 4, "v_add_f32", [])
    for k in range(32): A(f"v_cvt_pk_bf16_f32 v{hS+k}, v{hS+k}, v{hS+k}")
    hOB = 96
    hBB = 50
    cnt = 0
    for k in range(32):
        for q in range(4):
            b = hBB + 4 * (cnt & 1); cnt += 1
            for rr in range(4):
                if q == rr: A(f"v_and_b32 v{b+rr}, v{hS+k}, v{vMSK+rr}")
                elif q > rr: A(f"v_and_b32_dpp v{b+rr}, v{hS+k}, v{vMSK+rr} row_shl:{2*(q-rr)} {FULL} bound_ctrl:0")
                else: A(f"v_and_b32_dpp v{b+rr}, v{hS+k}, v{vMSK+rr} row_shr:{2*(rr-q)} {FULL} bound_ctrl:0")
            A(f"v_mfma_f32_16x16x32_bf16 {vr(hOB+4*q)}, {ar(4*k)}, {vr(b)}, {'0' if k == 0 else vr(hOB+4*q)}")
    A(f"v_rcp_f32 v7, v{hL}"); A(f"v_log_f32 v{hL}, v{hL}"); A(f"v_add_f32 v{hM}, v{hM}, v{hL}"); A(f"v_min_u32 v{hM}, -2, v{hM}")
    for q in range(4):
        o = hOB + 4 * q
        A(f"v_mov_b32_dpp v5, v7 row_newbcast:{2*q} row_mask:0xf bank_mask:0x3")
        A(f"v_mov_b32_dpp v5, v7 row_newbcast:{8+2*q} row_mask:0xf bank_mask:0xc")
        for r in range(4): A(f"v_mul_f32 v{o+r}, v{o+r}, v5")
        A(f"v_cvt_pk_bf16_f32 v{o}, v{o}, v{o+1}"); A(f"v_cvt_pk_bf16_f32 v{o+1}, v{o+2}, v{o+3}")
    def bexch():
        A("; ---- branch B: publish partials, combine 16 of them")
        A(f"v_lshrrev_b32 v4, 1, v{hO2}")
        A(f"s_lshl_b32 s{sT0}, s2, 11"); A(f"s_add_u32 s{sT0}, s{sT0}, {BP}")
        A(f"v_lshlrev_b32 v5, 2, v{hETA}")
        A(f"s_cmp_eq_u32 s{sXC}, 1"); A("s_cbranch_scc1 L_bploc")
        for fl in ("sc1", ""):
            for q in range(4):
                A(f"buffer_store_dwordx2 {vr(hOB+4*q,2)}, v4, {sr(S_WS)}, s{sT0} offen offset:{q*512} {fl}")
            A("s_waitcnt vmcnt(0)")
            A("s_mov_b64 exec, 0x5555")
            A(f"buffer_store_dword v{hM}, v5, {sr(S_WS)}, s{sBLK} offen offset:{O_BST} {fl}")
            A("s_mov_b64 exec, -1")
            if fl: A("s_branch L_bpdone"); A.label("L_bploc")
        A.label("L_bpdone")
        stamp(7)
        A(f"v_mul_u32_u24 v4, {8 * BS}, v{vJ}")
        A(f"s_and_b32 s{sT2}, s{sH1}, 15")
        A(f"s_lshr_b32 s{sT1}, s{sT2}, 1"); A(f"s_lshl_b32 s{sT1}, s{sT1}, 2")
        A(f"s_mul_i32 s{sT0}, s{sLG}, {BS}"); A(f"s_add_u32 s{sT0}, s{sT0}, s{sT1}"); A(f"s_add_u32 s{sT0}, s{sT0}, {BLK}")
        for _ in range(l2pre): A("s_sleep 32")
        if "s" not in skip: poll("L_l2", lambda: (A(f"buffer_load_dword v6, v4, {sr(S_WS)}, s{sT0} offen offset:{O_BST} sc1"), A("s_waitcnt vmcnt(0)")), lambda: None, "v_cmp_eq_u32", -1, l2sleep, pre_sleep=not LATEB)
        A(f"v_lshlrev_b32 v5, 14, v{vJ}"); A(f"v_lshl_add_u32 v5, v{vG}, 4, v5")
        A(f"s_lshl_b32 s{sT0}, s{sLG}, 11"); A(f"s_lshl_b32 s{sT1}, s{sT2}, 7")
        A(f"s_add_u32 s{sT0}, s{sT0}, s{sT1}"); A(f"s_add_u32 s{sT0}, s{sT0}, {BP}")
        for i in range(2):
            if "l" not in skip: A(f"buffer_load_dwordx4 {vr(80+4*i)}, v5, {sr(S_WS)}, s{sT0} offen offset:{i*64} sc1")
        A("v_mov_b32 v7, v6")
        for r in (8, 4, 2, 1): A(f"v_max_f32_dpp v7, v7, v7 row_ror:{r} {FULL}")
        A("v_sub_f32 v6, v6, v7"); A("v_exp_f32 v6, v6"); A("v_mov_b32 v7, v6")
        for r in (8, 4, 2, 1): A(f"v_add_f32_dpp v7, v7, v7 row_ror:{r} {FULL}")
        A("v_rcp_f32 v7, v7"); A("v_mul_f32 v6, v6, v7")
        A("s_waitcnt vmcnt(0)")
        for r in range(8):
            A(f"v_lshlrev_b32 v{64+2*r}, 16, v{80+r}"); A(f"v_and_b32 v{65+2*r}, 0xffff0000, v{80+r}")
        for r in range(16): A(f"v_mul_f32 v{64+r}, v{64+r}, v6")
        for rot in (8, 4, 2, 1):
            for r in range(16): A(f"v_add_f32_dpp v{64+r}, v{64+r}, v{64+r} row_ror:{rot} {FULL}")
        smask(sE, 0x0001000100010001)
        for r in range(8):
            A(f"v_cvt_pk_bf16_f32 v{80+r}, v{64+2*r}, v{65+2*r}")
            A(f"v_min_u32 v{80+r}, -2, v{80+r}"); A(f"v_cndmask_b32 v{80+r}, 0, v{80+r}, s[{sE}:{sE+1}]")
        A(f"v_xor_b32 v4, s{sT2}, v{vJ}"); A(f"v_and_b32 v4, 1, v4"); A("v_lshlrev_b32 v4, 7, v4"); A(f"v_lshl_add_u32 v4, v{vG}, 4, v4")
        smask(sE, 0x0003000300030003)
        A(f"s_mov_b64 exec, s[{sE}:{sE+1}]")
        for i in range(2):
            if "r" not in skip: A(f"buffer_store_dwordx4 {vr(80+4*i)}, v4, {sr(S_WS)}, s{sBLK} offen offset:{O_REC + 256 + i*64} sc1")
        A("s_mov_b64 exec, -1")
        stamp(8)
    if not LATEB: bexch()
    hm, hl = 58, 59
    hMW, hLW, hZ = 60, 61, 20
    A(f"v_mov_b32 v{hZ}, 0")
    def astats():
        A(f"v_and_b32 v4, 3, v{vL}"); A("v_lshlrev_b32 v5, 3, v4"); A(f"v_add_u32 v5, {L_ST}, v5")
        poll("L_st", lambda: (A(f"ds_read_b64 {vr(hm,2)}, v5"), A("s_waitcnt lgkmcnt(0)")), lambda: A(f"v_max_u32 v6, v{hm}, v{hl}"), "v_cmp_eq_u32", -1, hsleep)
        A(f"v_mov_b32 v{hMW}, v{hm}")
        for mode in ("quad_perm:[1,0,3,2]", "quad_perm:[2,3,0,1]"): A(f"v_max_f32_dpp v{hMW}, v{hMW}, v{hMW} {mode} {FULL}")
        A(f"v_sub_f32 v6, v{hm}, v{hMW}"); A("v_exp_f32 v6, v6"); A(f"v_mul_f32 v{hLW}, v6, v{hl}")
        for mode in ("quad_perm:[1,0,3,2]", "quad_perm:[2,3,0,1]"): A(f"v_add_f32_dpp v{hLW}, v{hLW}, v{hLW} {mode} {FULL}")
        A(f"v_min_u32 v6, -2, v{hMW}"); A(f"v_min_u32 v7, -2, v{hLW}")
        A("s_mov_b64 exec, 1")
        A(f"buffer_store_dwordx2 v[6:7], v{hZ}, {sr(S_WS)}, s{sBLK} offen offset:{O_AST} sc1")
        A("s_mov_b64 exec, -1")

    def weights():
        A(f"s_xor_b32 s{sT0}, s2, 1"); A(f"s_mul_i32 s{sT0}, s{sT0}, {BS}"); A(f"s_add_u32 s{sT0}, s{sT0}, {BLK}")
        poll("L_ps", lambda: (A(f"buffer_load_dwordx2 v[36:37], v{hZ}, {sr(S_WS)}, s{sT0} offen offset:{O_AST} sc1"), A("s_waitcnt vmcnt(0)")), lambda: A("v_max_u32 v6, v36, v37"), "v_cmp_eq_u32", -1, psleep if not LV else 16, pre_sleep=not LV)
        A(f"v_max_f32 v4, v{hMW}, v36")
        A(f"v_sub_f32 v5, v{hMW}, v4"); A("v_sub_f32 v6, v36, v4"); A(f"v_sub_f32 v7, v{hm}, v4")
        A("v_exp_f32 v5, v5"); A("v_exp_f32 v6, v6"); A("v_exp_f32 v7, v7")
        A(f"v_mul_f32 v5, v5, v{hLW}"); A("v_fmac_f32 v5, v6, v37")
        A("v_rcp_f32 v5, v5"); A("v_mul_f32 v7, v7, v5")
        A(f"v_and_b32 v4, 3, v{vL}"); A("v_lshlrev_b32 v4, 2, v4"); A(f"v_add_u32 v4, {L_WGT}, v4")
        A("ds_write_b32 v4, v7")

    if True:
        sCA, sMI, sLN, sOW = 99, 100, 101, 65
        A(f"s_mul_i32 s{sLN}, s{sKS}, 3840"); A(f"s_add_u32 s{sLN}, s{sLN}, {CNT}")
        A(f"s_lshl_b32 s{sOW}, s{sH1}, 1"); A(f"s_add_u32 s{sOW}, s{sOW}, s{sLN}")
        A(f"s_mov_b32 s{sCA}, {CNT + 128}")
        A(f"v_mov_b32 v30, {L_PRG}"); A(f"v_lshlrev_b32 v31, 1, v{vL}")
        if CST >= 2: astats()
        A(f"s_mov_b32 s{sMI}, {M0 if KC else KT + CST}")
        A.label("L_cloop")
        A(f"s_lshl_b32 s{sT2}, s{sMI}, 2")
        A(f"s_mov_b32 s{sSPIN}, {spin}")
        A.label("L_cw")
        A("ds_read_b128 v[32:35], v30")
        A("s_waitcnt lgkmcnt(0)")
        A("v_add3_u32 v32, v32, v33, v34"); A("v_add3_u32 v32, v32, v35, 1")
        A(f"v_readfirstlane_b32 s{sT0}, v32")
        A(f"s_cmp_ge_u32 s{sT0}, s{sT2}"); A("s_cbranch_scc1 L_cw_ok")
        spin_tail("L_cw", csleep)
        A.label("L_cw_ok")
        A(f"s_add_u32 s{sT3}, s{sMI}, 1"); A(f"v_mov_b32 v32, s{sT3}")
        A(f"buffer_load_ushort v34, v31, {sr(S_WS)}, s{sLN} offen {lfl}")
        A("s_mov_b64 exec, 1")
        A(f"buffer_store_short v32, v{hZ}, {sr(S_WS)}, s{sOW} offen")
        A("s_mov_b64 exec, -1")
        A("s_waitcnt vmcnt(0)")
        A(f"v_cmp_lt_u32 s[{sE}:{sE+1}], s{sMI}, v34"); A(f"s_bcnt1_i32_b32 s{sT0}, s{sE}")
        A(f"s_mov_b32 s{sT1}, 0")
        for k in range(1, NCMP):
            A(f"v_cmp_lt_u32 s[{sE}:{sE+1}], s{sT3}, v34"); A(f"s_bcnt1_i32_b32 s{sT2}, s{sE}")
            A(f"s_add_u32 s{sT1}, s{sT1}, s{sT2}"); A(f"s_add_u32 s{sT3}, s{sT3}, 1")
        if XB:
            A(f"v_readlane_b32 s{sT2}, v34, 32")
            A(f"s_min_u32 s{sT2}, s{sT2}, 7"); A(f"s_mul_i32 s{sT2}, s{sT2}, {XB}")
            A(f"s_add_u32 s{sT1}, s{sT1}, s{sT2}")
        A(f"s_add_u32 s{sT1}, s{sT0}, s{sT1}")
        A(f"s_mov_b32 s{sT2}, 0")
        for li, t in enumerate(TAU):
            A(f"s_cmp_ge_u32 s{sT1}, {t}"); A(f"s_cselect_b32 s{sT2}, {li+1}, s{sT2}")
        A(f"v_mov_b32 v33, s{sT2}"); A("ds_write_b32 v30, v33 offset:16")
        if XB:
            A(f"s_and_b32 s{sT2}, s{sMI}, {XP - 1}"); A("s_cbranch_scc1 L_nrep")
            A(f"s_add_u32 s{sCA}, s{sCA}, 1280")
            A(f"s_cmp_lg_u32 s{sT0}, 15"); A("s_cbranch_scc1 L_nrep")
            A("v_mov_b32 v32, 1")
            A("s_mov_b64 exec, 1")
            A(f"buffer_atomic_add v32, v{hZ}, {sr(S_WS)}, s{sCA} offen sc0 sc1")
            A("s_waitcnt vmcnt(0)")
            A(f"buffer_store_short v32, v{hZ}, {sr(S_WS)}, s{sLN} offen offset:64")
            A("s_mov_b64 exec, -1")
            A.label("L_nrep")
            assert 128 + 1280 * ((KT + VT - (M0 if KC else KT)) // XP + 1) < 32768
        A(f"s_add_u32 s{sMI}, s{sMI}, 1")
        if CST < 2:
            A(f"s_cmp_lg_u32 s{sMI}, {KT + 2}"); A("s_cbranch_scc1 L_na")
            astats()
            A.label("L_na")
        A(f"s_cmp_lg_u32 s{sMI}, {KT + max(VT // 2, CST + 1)}"); A("s_cbranch_scc1 L_nw")
        weights()
        A.label("L_nw")
        A(f"s_cmp_le_u32 s{sMI}, {KT + VT - LASTD}"); A("s_cbranch_scc1 L_cloop")
    if LATEB:
        if PREW:
            A(f"v_mul_u32_u24 v4, {8 * BS}, v{vJ}")
            A(f"s_mul_i32 s{sT0}, s{sLG}, {BS}"); A(f"s_add_u32 s{sT0}, s{sT0}, {BLK}")
            A(f"buffer_load_dword v6, v4, {sr(S_WS)}, s{sT0} offen offset:{O_BST} sc1")
        if TRIG:
            A(f"s_mov_b32 s{sSPIN}, {spin}")
            A.label("L_tw")
            A("ds_read_b128 v[32:35], v30 offset:32")
            A("s_waitcnt lgkmcnt(0)")
            A("v_add3_u32 v32, v32, v33, v34"); A("v_add3_u32 v32, v32, v35, 1")
            A(f"v_readfirstlane_b32 s{sT0}, v32")
            A(f"s_cmp_ge_u32 s{sT0}, {4 * (KT + VT - TRIG)}"); A("s_cbranch_scc1 L_tw_ok")
            spin_tail("L_tw", csleep)
            A.label("L_tw_ok")
        bexch()
    stamp(10); stamp(11)
    A("s_waitcnt vmcnt(0) lgkmcnt(0)")
    A.label("L_end")
    A("s_endpgm")

    nn = A.fix_hazards()
    out = HEADER
    out += f"; @launch grid=(256,1,1) block=(320,1,1) lds={LDS_BYTES}\n"
    out += '.amdgcn_target "amdgcn-amd-amdhsa--gfx950"\n.text\n'
    out += f".globl {NAME}_kernel\n.p2align 8\n.type {NAME}_kernel,@function\n{NAME}_kernel:\n"
    out += A.text()
    out += '.section .rodata,"a"\n.p2align 6\n'
    out += f".amdhsa_kernel {NAME}_kernel\n"
    out += "  .amdhsa_next_free_vgpr 256\n  .amdhsa_next_free_sgpr 102\n  .amdhsa_accum_offset 128\n"
    out += "  .amdhsa_group_segment_fixed_size 0\n  .amdhsa_kernarg_size 104\n  .amdhsa_user_sgpr_count 2\n"
    out += "  .amdhsa_user_sgpr_kernarg_segment_ptr 1\n  .amdhsa_system_sgpr_workgroup_id_x 1\n"
    out += "  .amdhsa_float_denorm_mode_32 3\n"
    out += ".end_amdhsa_kernel\n"
    return out

if __name__ == "__main__":
    import json
    kw = json.loads(sys.argv[2]) if len(sys.argv) > 2 else {}
    open(sys.argv[1], "w").write(gen(**kw))
```
